```python
import torch

def _softmax(x, axis=-1):
    return torch.softmax(x, dim=axis)
def _gelu(x):
    return torch.nn.functional.gelu(x, approximate="tanh")
def _silu(x):
    return torch.nn.functional.silu(x)
def _sigmoid(x):
    return torch.sigmoid(x)
def _layernorm(x, axis=-1, eps=1e-5):
    m = x.mean(dim=axis, keepdim=True)
    v = x.var(dim=axis, keepdim=True, unbiased=False)
    return (x - m) / torch.sqrt(v + eps)
def _scatter_add(tgt, idx, src, axis=0):
    return tgt.clone().index_add_(axis, idx, src)
def _segment_sum(src, seg, n):
    out = torch.zeros((n,) + src.shape[1:], dtype=src.dtype)
    return out.index_add_(0, seg, src)
def _pad(x, pw):
    flat = tuple(v for pair in reversed(pw) for v in pair)
    return torch.nn.functional.pad(x, flat)

kernel_name = 'concat_heads__linear_kernel_hedgehog__ssm_conv_s5__prompt'

def setup_inputs():

    _w = (lambda a: (lambda t: t.to(torch.bfloat16) if t.is_floating_point() else t)(torch.as_tensor(a)))
    def _A_setup():
        B, S, D, H = 1, 2048, 640, 32
        Dh = D // H
        return {
            "x": _w((lambda *s: torch.randn(*s, dtype=torch.bfloat16) * 0.4)(B, S, D)),
            "wqkv": _w((lambda *s: torch.randn(*s, dtype=torch.bfloat16) * 0.4)(D, 3 * D)),
            "w_phi": _w((lambda *s: torch.randn(*s, dtype=torch.bfloat16) * 0.4)(H, Dh, Dh) * (Dh ** -0.5)),
            "wo": _w((lambda *s: torch.randn(*s, dtype=torch.bfloat16) * 0.05)(D, D)),
        }
    _A_in = _A_setup()

    def _B_setup():
        B, S, D = 1, 2048, 640
        P = D
        Lambda_re = -0.5 * (lambda _x: torch.exp(torch.as_tensor(_x)))((lambda *s: torch.randn(*s, dtype=torch.bfloat16) * 0.8)(P))
        Lambda_im = (lambda *s: torch.randn(*s, dtype=torch.bfloat16) * 0.8)(P) * 1.0
        B_re = (lambda *s: torch.randn(*s, dtype=torch.bfloat16) * 0.8)(P, D) * (D ** -0.5)
        B_im = (lambda *s: torch.randn(*s, dtype=torch.bfloat16) * 0.8)(P, D) * (D ** -0.5)
        C_re = (lambda *s: torch.randn(*s, dtype=torch.bfloat16) * 0.8)(D, P) * (P ** -0.5)
        C_im = (lambda *s: torch.randn(*s, dtype=torch.bfloat16) * 0.8)(D, P) * (P ** -0.5)
        log_dt = (lambda *s: torch.randn(*s, dtype=torch.bfloat16) * 0.8)(P) * 0.3 - 2.0
        Dskip = (lambda *s: torch.randn(*s, dtype=torch.bfloat16) * 0.8)(D)
        return {
            "x": _w((lambda *s: torch.randn(*s, dtype=torch.bfloat16) * 0.05)(B, S, D)),
            "Lambda_re": _w(Lambda_re),
            "Lambda_im": _w(Lambda_im),
            "B_re": _w(B_re),
            "B_im": _w(B_im),
            "C_re": _w(C_re),
            "C_im": _w(C_im),
            "log_dt": _w(log_dt),
            "Dskip": _w(Dskip),
        }
    _B_in = _B_setup()

    return {
        "A_x": _A_in["x"],
        "A_wqkv": _A_in["wqkv"],
        "A_w_phi": _A_in["w_phi"],
        "A_wo": _A_in["wo"],
        "B_x": _B_in["x"],
        "B_Lambda_re": _B_in["Lambda_re"],
        "B_Lambda_im": _B_in["Lambda_im"],
        "B_B_re": _B_in["B_re"],
        "B_B_im": _B_in["B_im"],
        "B_C_re": _B_in["C_re"],
        "B_C_im": _B_in["C_im"],
        "B_log_dt": _B_in["log_dt"],
        "B_Dskip": _B_in["Dskip"],
    }

def reference(A_x, A_wqkv, A_w_phi, A_wo, B_x, B_Lambda_re, B_Lambda_im, B_B_re, B_B_im, B_C_re, B_C_im, B_log_dt, B_Dskip):
    def _A_ref(x, wqkv, w_phi, wo):
        B, S, D = x.shape
        H = 32; Dh = D // H
        qkv = (lambda x, *d: x.permute(*d))((x @ wqkv).reshape(B, S, 3, H, Dh), 2, 0, 3, 1, 4)
        q, k, v = qkv[0], qkv[1], qkv[2]
        pq = torch.einsum("bhsd,hdf->bhsf", q, w_phi)
        pk = torch.einsum("bhsd,hdf->bhsf", k, w_phi)
        phi_q = torch.concatenate([_softmax(pq, axis=-1), _softmax(-pq, axis=-1)], axis=-1)
        phi_k = torch.concatenate([_softmax(pk, axis=-1), _softmax(-pk, axis=-1)], axis=-1)
        kv = torch.einsum("bhsf,bhsd->bhfd", phi_k, v)
        z  = torch.einsum("bhsf->bhf", phi_k)
        num = torch.einsum("bhqf,bhfd->bhqd", phi_q, kv)
        den = torch.einsum("bhqf,bhf->bhq", phi_q, z)[..., None] + 1e-6
        o = num / den
        return (lambda x, *d: x.permute(*d))(o, 0, 2, 1, 3).reshape(B, S, D) @ wo

    def _B_ref(x, Lambda_re, Lambda_im, B_re, B_im, C_re, C_im, log_dt, Dskip):
        Bsz, L, H = x.shape
        Lam = Lambda_re + 1j * Lambda_im
        Bmat = B_re + 1j * B_im
        Cmat = C_re + 1j * C_im
        dt = torch.exp(log_dt)
        Lam_bar = torch.exp(dt * Lam)
        B_bar = ((Lam_bar - 1.0) / Lam)[:, None] * Bmat
        Bu = torch.einsum("bld,pd->blp", x + 0j, B_bar)
        h = torch.zeros_like(Bu[:, 0, :])
        hs = []
        for t in range(L):
            h = Lam_bar[None, :] * h + Bu[:, t, :]
            hs.append(h)
        hseq = torch.stack(hs, 1)
        y = 2.0 * torch.einsum("blp,dp->bld", hseq, Cmat).real + x * Dskip[None, None, :]
        return y

    a = _A_ref(A_x, A_wqkv, A_w_phi, A_wo)
    b = _B_ref(B_x, B_Lambda_re, B_Lambda_im, B_B_re, B_B_im, B_C_re, B_C_im, B_log_dt, B_Dskip)
    return torch.concatenate([a, b], axis=-1)
```

```python
import re

_REG = re.compile(r'(?<![\w.])(-?\|?)(v|s|a)(?:(\d+)|\[(\d+):(\d+)\])')
TRANS = ('v_exp_f32', 'v_log_f32', 'v_rcp_f32', 'v_rsq_f32', 'v_sqrt_f32', 'v_sin_f32', 'v_cos_f32')

def regs_of(tok):
    out = set()
    tok = tok.strip()
    if tok == 'vcc': return {('s', 106), ('s', 107)}
    if tok == 'vcc_lo': return {('s', 106)}
    if tok == 'vcc_hi': return {('s', 107)}
    if tok == 'exec': return {('s', 126), ('s', 127)}
    if tok == 'exec_lo': return {('s', 126)}
    if tok == 'exec_hi': return {('s', 127)}
    if tok == 'm0': return {('s', 124)}
    for m in _REG.finditer(tok):
        f = m.group(2)
        if m.group(3) is not None:
            out.add((f, int(m.group(3))))
        else:
            for i in range(int(m.group(4)), int(m.group(5)) + 1):
                out.add((f, i))
    return out

class Ins:
    __slots__ = ('text', 'op', 'kind', 'w', 'r', 'srcc', 'ab', 'passes', 'ws', 'dpp', 'trans', 'perm', 'lane', 'wide', 'data', 'ldsdma', 'target', 'label')
    def __init__(self, text):
        self.text = text
        self.label = None
        t = text.split(';')[0].strip()
        parts = t.split(None, 1)
        op = parts[0]
        self.op = op
        rest = parts[1] if len(parts) > 1 else ''
        ops = [x.strip() for x in re.split(r',(?![^\[]*\])', rest)] if rest else []
        mods = ''
        if ops:
            sp = ops[-1].split(None, 1)
            if len(sp) > 1 and not ops[-1].startswith('hwreg'):
                ops[-1] = sp[0]; mods = sp[1]
        self.w = set(); self.r = set(); self.srcc = set(); self.ab = set(); self.passes = 0
        self.ws = 1; self.dpp = False; self.trans = False; self.perm = False; self.lane = False
        self.wide = False; self.data = set(); self.ldsdma = False; self.target = None
        R = [regs_of(o) for o in ops]
        if op == 's_nop':
            self.kind = 'nop'; self.ws = int(ops[0], 0) + 1
        elif op.startswith('v_mfma'):
            self.kind = 'mfma'
            self.passes = 8 if '32x32x16' in op else 4
            self.w = R[0]; self.ab = R[1] | R[2]; self.srcc = R[3]; self.r = self.ab | self.srcc
        elif op.startswith('v_'):
            self.kind = 'valu'
            base = op.replace('_e32', '').replace('_e64', '').replace('_dpp', '')
            self.dpp = op.endswith('_dpp')
            self.trans = base in TRANS
            if base.startswith('v_permlane'):
                self.perm = True; self.w = R[0] | R[1]; self.r = R[0] | R[1]
            elif base.startswith('v_cmp'):
                self.w = R[0]; self.r = set().union(*R[1:])
            elif base in ('v_readfirstlane_b32', 'v_readlane_b32'):
                self.lane = True; self.w = R[0]; self.r = set().union(*R[1:])
            elif base in ('v_add_co_u32', 'v_sub_co_u32', 'v_addc_co_u32'):
                self.w = R[0] | R[1]; self.r = set().union(*R[2:])
            elif base == 'v_nop':
                pass
            else:
                self.w = R[0]; self.r = set().union(*R[1:]) if len(R) > 1 else set()
                if base in ('v_fmac_f32', 'v_pk_fmac_f16', 'v_mov_b32') and (base != 'v_mov_b32' or self.dpp):
                    self.r |= R[0]
                if base == 'v_cndmask_b32' and len(ops) == 3:
                    self.r |= regs_of('vcc')
        elif op.startswith('ds_'):
            self.kind = 'ds'
            if 'read' in op or 'permute' in op or 'swizzle' in op:
                self.w = R[0]; self.r = set().union(*R[1:])
            else:
                self.r = set().union(*R)
        elif op.startswith('buffer_') or op.startswith('global_'):
            self.kind = 'vmem'
            allmods = mods.split()
            if 'lds' in allmods or 'load_lds' in op:
                self.ldsdma = True; self.r = set().union(*R) | regs_of('m0')
            elif 'load' in op:
                self.w = R[0]; self.r = set().union(*R[1:])
                if 'd16' in op: self.r |= R[0]
            else:
                self.r = set().union(*R)
                d = R[0] if op.startswith('buffer_') else R[1]
                if 'x4' in op or 'x3' in op:
                    self.wide = True; self.data = d
                if 'atomic' in op and 'sc0' in allmods:
                    self.w = R[0]
        elif op.startswith('s_'):
            self.kind = 'salu'
            if op.startswith('s_cbranch') or op == 's_branch':
                self.kind = 'branch'; self.target = ops[0]
            elif op.startswith('s_cmp') or op.startswith('s_bitcmp') or op in ('s_waitcnt', 's_barrier', 's_endpgm', 's_sleep', 's_setprio'):
                self.r = set().union(*R) if R else set()
            elif op.startswith('s_load') or op in ('s_memtime', 's_memrealtime'):
                self.kind = 'smem'; self.w = R[0]; self.r = set().union(*R[1:]) if len(R) > 1 else set()
            else:
                self.w = R[0]; self.r = set().union(*R[1:]) if len(R) > 1 else set()
                if 'saveexec' in op:
                    self.w |= regs_of('exec')
        else:
            raise ValueError("unknown instr: " + text)

def V(s): return {x for x in s if x[0] in 'va'}
def S(s): return {x for x in s if x[0] == 's'}

def need(p, c):
    n = 0
    if p.kind == 'valu':
        pw = V(p.w); ps = S(p.w)
        if c.kind == 'mfma' and pw & c.r: n = max(n, 2)
        if c.kind == 'valu':
            if c.dpp and pw & c.r: n = max(n, 2)
            if c.perm and pw & c.r: n = max(n, 2)
            if c.lane and pw & c.r: n = max(n, 1)
            if ps & c.r: n = max(n, 4 if c.lane else 2)
        if p.trans and pw & c.r and not (c.kind == 'valu' and c.trans): n = max(n, 1)
        if c.kind == 'vmem' and ps & c.r: n = max(n, 5)
    elif p.kind == 'mfma':
        big = 12 if p.passes == 8 else 8
        if c.kind == 'mfma':
            if p.w & c.ab: n = max(n, big)
            if p.w & c.srcc:
                if not (c.srcc == p.w and c.passes == p.passes):
                    n = max(n, 10 if p.passes == 8 else 6)
            elif p.w & c.w:
                n = max(n, big)
        elif c.kind in ('valu',):
            if p.w & (c.r | c.w): n = max(n, big)
            if p.srcc & V(c.w): n = max(n, 7 if p.passes == 8 else 3)
        elif c.kind in ('ds', 'vmem'):
            if p.w & (c.r | c.w): n = max(n, big)
    elif p.kind == 'salu':
        if ('s', 124) in p.w and c.ldsdma: n = max(n, 1)
    elif p.kind == 'vmem':
        if p.wide and p.data & c.w:
            n = max(n, 2 if c.kind in ('valu', 'mfma') else 1)
    return n

class Asm:
    def __init__(self):
        self.items = []
        self.launch = []
        self.kd = []
        self.uid = 0
    def __call__(self, s):
        for line in s.strip().split('\n'):
            line = line.strip()
            if line and not line.startswith(';'):
                self.items.append(Ins(line))
    def label(self, l): self.items.append(('label', l))
    def raw(self, t): self.items.append(('raw', t))
    def comment(self, c): self.items.append(('raw', '    ; ' + c))
    def newlabel(self, p='L'):
        self.uid += 1
        return f"{p}_{self.uid}"
    def kernel_begin(self, name, grid, block, lds):
        self.launch.append(f"; @launch kernel={name} grid=({grid},1,1) block=({block},1,1) lds={lds}")
        self.raw(f".globl {name}\n.p2align 8\n.type {name},@function\n{name}:")
    def kernel_end(self, name, vgpr, sgpr=102, accum=None):
        if accum is None:
            accum = min(256, (vgpr + 3) // 4 * 4)
        self.kd.append(f""".p2align 6
.amdhsa_kernel {name}
  .amdhsa_next_free_vgpr {vgpr}
  .amdhsa_next_free_sgpr {sgpr}
  .amdhsa_accum_offset {accum}
  .amdhsa_group_segment_fixed_size 0
  .amdhsa_kernarg_size 128
  .amdhsa_user_sgpr_count 2
  .amdhsa_user_sgpr_kernarg_segment_ptr 1
  .amdhsa_system_sgpr_workgroup_id_x 1
.end_amdhsa_kernel""")
    def srd(self, d, base, nbytes):
        self(f"s_mov_b32 s{d}, s{base}")
        self(f"s_and_b32 s{d+1}, s{base+1}, 0xffff")
        self(f"s_mov_b32 s{d+2}, {nbytes}")
        self(f"s_mov_b32 s{d+3}, 0x00020000")
    def pad(self):
        out = []
        hist = []
        H = 24
        def req(hist, c):
            dist = 0; n = 0
            for p in reversed(hist):
                k = need(p, c) - dist
                if k > n: n = k
                dist += p.ws
                if dist >= 20: break
            return n
        for it in self.items:
            if isinstance(it, Ins):
                n = req(hist, it)
                while n > 0:
                    k = min(n, 16)
                    nop = Ins(f"s_nop {k-1}")
                    out.append(nop); hist.append(nop); n -= k
                out.append(it); hist.append(it)
                if it.op in ('s_branch', 's_endpgm'):
                    hist = []
                hist = hist[-H:]
            else:
                out.append(it)
        self.items = out
        pos = {}
        for i, it in enumerate(out):
            if not isinstance(it, Ins) and it[0] == 'label': pos[it[1]] = i
        for i, it in enumerate(out):
            if isinstance(it, Ins) and it.kind == 'branch':
                pre = []
                j = i
                while j >= 0 and len(pre) < H:
                    x = out[j]
                    if isinstance(x, Ins):
                        if j != i and x.op in ('s_branch', 's_endpgm'): break
                        pre.append(x)
                    j -= 1
                pre.reverse()
                j = pos[it.target]; cnt = 0
                h = list(pre)
                while j < len(out) and cnt < H:
                    x = out[j]
                    if isinstance(x, Ins):
                        n = req(h, x)
                        if n > 0:
                            raise RuntimeError(f"hazard across branch to {it.target}: '{x.text}' needs {n} more wait states")
                        h.append(x); cnt += 1
                        if x.op in ('s_branch', 's_endpgm'): break
                    j += 1
    def text(self, header=""):
        self.pad()
        lines = []
        for it in self.items:
            if isinstance(it, Ins): lines.append("    " + it.text)
            elif it[0] == 'label': lines.append(it[1] + ":")
            else: lines.append(it[1])
        return (header + "\n".join(self.launch) + '\n.amdgcn_target "amdgcn-amd-amdhsa--gfx950"\n.text\n'
                + "\n".join(lines) + '\n.section .rodata,"a"\n' + "\n".join(self.kd) + "\n")
```

```python
import sys
from asm2 import Asm

KNAME = "concat_heads__linear_kernel_hedgehog__ssm_conv_s5__prompt_kernel"
WS_FLAG_W, WS_FLAG_AG, WS_FLAG_KV, WS_FLAG_H, WS_FLAG_O = 0x1000, 0x2000, 0x3000, 0x4000, 0x5000
WS_PROF = 0x10000
WS_WP, WS_AGG, WS_KVP, WS_H, WS_O = 0x100000, 0x400000, 0x500000, 0x800000, 0xE00000
WS_BYTES = 0x1100000
OOB = 0x40000000
LDS_TOTAL = 163840
RING = 32768
L_STG = 0
L_TAB = 16384
L_WPH = L_TAB + 2560
L_SEG = L_WPH + 2688
L_KVI = 0
L_DUM = L_SEG + 6400
assert L_DUM + 64 <= RING
L_IMG = RING + 81920
L_HT = RING + 81920 + 33920
L_HT = RING + 81920
IMGP = 264
P_AX, P_WQKV, P_WPHI, P_WO, P_BX, P_LRE, P_LIM, P_BRE, P_BIM, P_CRE, P_CIM, P_LDT, P_DSK, P_OUT, P_DBG, P_WS = [4 + 2*i for i in range(16)]
S_WS, S_R1, S_R2, S_R3, S_R4 = 36, 40, 44, 48, 52
sC, sG, sW, sROT, sTAG, sL = 56, 57, 58, 59, 60, 61
sT0, sT1, sT2, sT3, sT4, sT5, sT6, sT7 = 62, 63, 64, 65, 66, 67, 68, 69
sKS, sKSW, sLX, sLW, sIT, sC2 = 70, 71, 72, 73, 74, 75
sLOG2E = 76
sM = 78
sM2, sR2, sD0, sROT2 = 80, 81, 82, 83
sPT = 84
sL2X = 100
KMUL = 0x9e3779b1
WFLAG_IT = 0
NLOCK = 0
SPEC = 2
GAHEAD = 6
FLIPBIT = 0
WGATE = 7
NTS = 0
DPP = "row_ror:8 row_mask:0xf bank_mask:0xf"

class K:
    def __init__(self, prof=False, opts=()):
        self.a = Asm()
        self.prof = prof
        self.opts = opts
        self.ost = 'nt' if 'ont' in opts else ('sc1' if 'osc1' in opts else '')
        self.ws = f"s[{S_WS}:{S_WS+3}]"

    def tag_from(self, v):
        a = self.a
        a(f"v_readfirstlane_b32 s{sTAG}, v{v}")
        a(f"s_add_u32 s{sTAG}, s{sTAG}, 1")
        a(f"s_mul_i32 s{sTAG}, s{sTAG}, {KMUL:#x}")

    def stamp(self, idx, late=False):
        if late and 'sprof' in self.opts: return
        if self.prof:
            self.a(f"s_memrealtime s[{sPT+2*idx}:{sPT+2*idx+1}]")

    def stamp_flush(self, vtmp, half=0):
        if not self.prof: return
        a = self.a
        a("s_waitcnt lgkmcnt(0)")
        a(f"s_lshl_b32 s{sT0}, s2, 3")
        a(f"s_add_u32 s{sT0}, s{sT0}, s{sW}")
        a(f"s_lshl_b32 s{sT0}, s{sT0}, 5")
        a(f"s_add_u32 s{sT0}, s{sT0}, {WS_PROF + 0x10000*half}")
        for i in range(8):
            a(f"v_mov_b32 v{vtmp+i}, s{sPT+2*i}")
        a(f"v_mov_b32 v{vtmp+8}, s{sT0}")
        a("s_mov_b64 exec, 1")
        a(f"buffer_store_dwordx4 v[{vtmp}:{vtmp+3}], v{vtmp+8}, {self.ws}, 0 offen")
        a(f"buffer_store_dwordx4 v[{vtmp+4}:{vtmp+7}], v{vtmp+8}, {self.ws}, 0 offen offset:16")
        a("s_mov_b64 exec, -1")
        a("s_waitcnt vmcnt(0)")

    def bstamp(self, idx):
        if 'bprof' not in self.opts: return
        a = self.a
        a(f"s_memrealtime s[{sPT}:{sPT+1}]")
        a("s_waitcnt lgkmcnt(0)")
        a(f"v_writelane_b32 v255, s{sPT}, {idx}")

    def bflush(self):
        if 'bprof' not in self.opts: return
        a = self.a
        a(f"s_lshl_b32 s{sT0}, s2, 3")
        a(f"s_add_u32 s{sT0}, s{sT0}, s{sW}")
        a(f"s_lshl_b32 s{sT0}, s{sT0}, 8")
        a(f"s_add_u32 s{sT0}, s{sT0}, {WS_PROF + 0x40000}")
        a(f"v_lshl_add_u32 v254, v1, 2, s{sT0}")
        a(f"buffer_store_dword v255, v254, {self.ws}, 0 offen")
        a("s_waitcnt vmcnt(0)")

    def itstamp(self):
        if not self.prof: return
        a = self.a
        a(f"s_memrealtime s[{sM}:{sM+1}]")
        a(f"s_lshl_b32 m0, s{sIT}, 1")
        a("s_waitcnt lgkmcnt(0)")
        a(f"s_movreld_b32 s{sPT+6}, s{sM}")

    def flag_store(self, soff, vt):
        a = self.a
        a(f"v_mov_b32 v{vt}, 0")
        a(f"v_mov_b32 v{vt+1}, s{sTAG}")
        a("s_mov_b64 exec, 1")
        a(f"buffer_store_dword v{vt+1}, v{vt}, {self.ws}, s{soff} offen sc1")
        a("s_mov_b64 exec, -1")

    def flag_addr(self, sd, base, srow, scol, colmul, sidx):
        a = self.a
        a(f"s_mul_i32 s{sd}, s{scol}, {colmul}")
        a(f"s_add_u32 s{sd}, s{sd}, s{sidx}")
        a(f"s_lshl_b32 s{sd}, s{sd}, 2")
        a(f"s_lshl_b32 s{sT7}, s{srow}, 8")
        a(f"s_add_u32 s{sd}, s{sd}, s{sT7}")
        a(f"s_add_u32 s{sd}, s{sd}, {base}")

    def poll_issue(self, vaddr, vdst):
        self.a(f"buffer_load_dword v{vdst}, v{vaddr}, {self.ws}, 0 offen sc1")

    def poll_wait(self, vaddr, vdst, smask=None):
        a = self.a
        l0 = a.newlabel("Lpoll"); l1 = a.newlabel("Lpollok")
        a(f"s_mov_b32 s{sT7}, 0")
        a.label(l0)
        a("s_waitcnt vmcnt(0)")
        a(f"v_cmp_eq_u32 vcc, s{sTAG}, v{vdst}")
        if smask is None:
            a(f"s_cmp_eq_u64 vcc, -1")
        else:
            a(f"s_and_b32 s{sT6}, vcc_lo, s{smask}")
            a(f"s_cmp_eq_u32 s{sT6}, s{smask}")
        a(f"s_cbranch_scc1 {l1}")
        a("s_sleep 1")
        self.poll_issue(vaddr, vdst)
        a(f"s_add_u32 s{sT7}, s{sT7}, 1")
        a(f"s_cmp_lt_u32 s{sT7}, 0x40000")
        a(f"s_cbranch_scc1 {l0}")
        a("s_waitcnt vmcnt(0)")
        a.label(l1)

    def poll_addr(self, v, base, srow, lanemask=63, sextra=None):
        a = self.a
        a(f"s_lshl_b32 s{sT0}, s{srow}, 8")
        a(f"s_add_u32 s{sT0}, s{sT0}, {base}")
        if sextra is not None:
            a(f"s_add_u32 s{sT0}, s{sT0}, s{sextra}")
        a(f"v_and_b32 v{v}, {lanemask}, v1")
        a(f"v_lshl_add_u32 v{v}, v{v}, 2, s{sT0}")

    def prologue(self):
        a = self.a
        a("s_cmp_ge_u32 s2, 256")
        a("s_cbranch_scc1 L_end")
        a("s_load_dwordx16 s[4:19], s[0:1], 0")
        a("s_load_dwordx16 s[20:35], s[0:1], 64")
        a("v_lshrrev_b32 v2, 6, v0")
        a("v_and_b32 v1, 63, v0")
        a(f"v_readfirstlane_b32 s{sW}, v2")
        a(f"s_bfe_u32 s{sT0}, s2, 0x20001")
        a(f"s_lshl_b32 s{sT0}, s{sT0}, 2")
        a(f"s_bfe_u32 s{sT1}, s2, 0x20003")
        a(f"s_add_u32 s{sC}, s{sT0}, s{sT1}")
        a(f"s_and_b32 s{sT0}, s2, 1")
        a(f"s_lshl_b32 s{sT0}, s{sT0}, 3")
        a(f"s_lshr_b32 s{sT2}, s2, 5")
        a(f"s_add_u32 s{sG}, s{sT0}, s{sT2}")
        a(f"s_mov_b32 s{sLOG2E}, 0x3fb8aa3b")
        a(f"s_mov_b32 s{sLOG2E+1}, 0x3fb8aa3b")
        a(f"s_cmp_lt_u32 s{sW}, 4")
        a("s_cbranch_scc1 L_compute")

    def p2_role(self):
        a = self.a
        a(f"s_and_b32 s{sC2}, s2, 7")
        a(f"s_lshl_b32 s{sC2}, s{sC2}, 1")
        a(f"s_lshr_b32 s{sT0}, s2, 7")
        a(f"s_add_u32 s{sC2}, s{sC2}, s{sT0}")
        a(f"s_bfe_u32 s{sR2}, s2, 0x40003")
        a(f"s_sub_u32 s{sT0}, s{sR2}, 10")
        a(f"s_mul_i32 s{sT1}, s{sT0}, 3")
        a(f"s_and_b32 s{sT1}, s{sT1}, 7")
        a(f"s_cmp_lt_u32 s{sR2}, 10")
        a(f"s_cselect_b32 s{sD0}, s{sR2}, s{sT0}")
        a(f"s_cselect_b32 s{sROT2}, s{sR2}, s{sT1}")
        a(f"s_cselect_b32 s{sT0}, 5, 4")
        a(f"s_lshl_b32 s{sT1}, s{sT0}, 1")
        a(f"s_bitcmp1_b32 s2, {FLIPBIT}")
        a(f"s_cselect_b32 s{sT0}, s{sT0}, 0")
        a(f"s_add_u32 s{sROT2}, s{sROT2}, s{sT0}")
        a(f"s_cmp_ge_u32 s{sROT2}, s{sT1}")
        a(f"s_cselect_b32 s{sT1}, s{sT1}, 0")
        a(f"s_sub_u32 s{sROT2}, s{sROT2}, s{sT1}")

    def softmax2(self, D, P, E, T, hook=None):
        a = self.a
        L = f"s[{sLOG2E}:{sLOG2E+1}]"
        def both(fn):
            for e in range(2): fn(e)
        def mx(e):
            d, t = D[e], T[e]
            a(f"v_max3_f32 v{t}, v{d}, v{d+1}, v{d+2}")
            a(f"v_max3_f32 v{t+1}, -v{d}, -v{d+1}, -v{d+2}")
            for i in (3, 5, 7):
                a(f"v_max3_f32 v{t}, v{t}, v{d+i}, v{d+i+1}")
                a(f"v_max3_f32 v{t+1}, v{t+1}, -v{d+i}, -v{d+i+1}")
            a(f"v_max_f32 v{t}, v{t}, v{d+9}")
            a(f"v_max_f32_e64 v{t+1}, v{t+1}, -v{d+9}")
        both(mx)
        both(lambda e: a(f"v_permlane32_swap_b32 v{T[e]}, v{T[e]+1}"))
        both(lambda e: a(f"v_max_f32 v{T[e]}, v{T[e]}, v{T[e]+1}"))
        both(lambda e: a(f"v_mov_b32 v{T[e]+1}, v{T[e]}"))
        both(lambda e: a(f"v_permlane32_swap_b32 v{T[e]}, v{T[e]+1}"))
        both(lambda e: a(f"v_pk_mul_f32 v[{T[e]+2}:{T[e]+3}], v[{T[e]}:{T[e]+1}], {L} neg_lo:[0,1] neg_hi:[0,1]"))
        for i in range(5):
            for e in range(2):
                d, t, x = D[e] + 2*i, T[e] + 2, E[e] + 2*i
                a(f"v_pk_fma_f32 v[{x}:{x+1}], v[{d}:{d+1}], {L}, v[{t}:{t+1}] op_sel:[0,0,0] op_sel_hi:[1,1,0]")
                a(f"v_pk_fma_f32 v[{x+10}:{x+11}], v[{d}:{d+1}], {L}, v[{t}:{t+1}] op_sel:[0,0,1] op_sel_hi:[1,1,1] neg_lo:[0,1,0] neg_hi:[0,1,0]")
        for i in range(20):
            for e in range(2):
                a(f"v_exp_f32 v{E[e]+i}, v{E[e]+i}")
        if hook: hook()
        for e in range(2):
            x, t = E[e], T[e]
            a(f"v_pk_add_f32 v[{t}:{t+1}], v[{x}:{x+1}], v[{x+2}:{x+3}]")
            a(f"v_pk_add_f32 v[{t+2}:{t+3}], v[{x+10}:{x+11}], v[{x+12}:{x+13}]")
        for i in (4, 6, 8):
            for e in range(2):
                x, t = E[e], T[e]
                a(f"v_pk_add_f32 v[{t}:{t+1}], v[{t}:{t+1}], v[{x+i}:{x+i+1}]")
                a(f"v_pk_add_f32 v[{t+2}:{t+3}], v[{t+2}:{t+3}], v[{x+10+i}:{x+11+i}]")
        for e in range(2):
            t = T[e]
            a(f"v_add_f32 v{t}, v{t}, v{t+1}")
            a(f"v_add_f32 v{t+1}, v{t+2}, v{t+3}")
        both(lambda e: a(f"v_permlane32_swap_b32 v{T[e]}, v{T[e]+1}"))
        both(lambda e: a(f"v_add_f32 v{T[e]}, v{T[e]}, v{T[e]+1}"))
        both(lambda e: a(f"v_rcp_f32 v{T[e]}, v{T[e]}"))
        both(lambda e: a(f"v_mov_b32 v{T[e]+1}, v{T[e]}"))
        both(lambda e: a(f"v_permlane32_swap_b32 v{T[e]}, v{T[e]+1}"))
        for i in range(5):
            for e in range(2):
                x, t = E[e] + 2*i, T[e]
                a(f"v_pk_mul_f32 v[{x}:{x+1}], v[{x}:{x+1}], v[{t}:{t+1}] op_sel:[0,0] op_sel_hi:[1,0]")
                a(f"v_pk_mul_f32 v[{x+10}:{x+11}], v[{x+10}:{x+11}], v[{t}:{t+1}] op_sel:[0,1] op_sel_hi:[1,1]")
        for i in range(10):
            for e in range(2):
                a(f"v_cvt_pk_bf16_f32 v{P[e]+i}, v{E[e]+2*i}, v{E[e]+2*i+1}")

    def compute(self):
        a = self.a
        ws = self.ws
        U = 16; ACC = 56; OPS = 120; SC = 200; TMP = 220
        vX0, vX1, vW0, vW1 = 4, 5, 6, 7
        vPA, vPD = 8, 9
        vJ, vGm, vN, vHH = 10, 11, 12, 13
        self.stamp(0)
        SQ = S_R4
        rq = f"s[{SQ}:{SQ+3}]"
        a(f"v_and_b32 v{vJ}, 15, v1")
        a(f"v_lshrrev_b32 v{vGm}, 4, v1")
        a(f"v_min_u32 v2, 14, v{vJ}")
        a(f"v_mul_u32_u24 v3, 52, v2")
        a(f"v_lshrrev_b32 v3, 8, v3")
        a(f"v_mul_u32_u24 v3, {1280 - 80}, v3")
        a(f"v_lshl_add_u32 v2, v2, 4, v3")
        a(f"v_mul_u32_u24 v3, 3840, v{vGm}")
        a(f"v_add_u32 v2, v2, v3")
        a(f"v_add_u32 v3, {4*3840 - 1024}, v2")
        a(f"s_mul_i32 s{sT0}, s{sC}, {40*3840}")
        a(f"s_mul_i32 s{sT1}, s{sG}, 80")
        a(f"s_add_u32 s{sT0}, s{sT0}, s{sT1}")
        a(f"s_mul_i32 s{sT1}, s{sW}, {8*3840}")
        a(f"s_add_u32 s{sT1}, s{sT0}, s{sT1}")
        a(f"s_add_u32 s{sT0}, s{sT0}, {32*3840}")
        a(f"s_cmp_lg_u32 s{sW}, 0")
        a(f"s_cselect_b32 s{sT0}, {OOB}, s{sT0}")
        a(f"s_lshl_b32 s{sT2}, s{sW}, 11")
        a(f"s_mov_b32 m0, s{sT2}")
        a("s_waitcnt lgkmcnt(0)")
        a.srd(SQ, P_WQKV, 2457600)
        a(f"buffer_load_dwordx4 v2, {rq}, s{sT1} offen lds")
        a(f"buffer_load_dwordx4 v3, {rq}, s{sT1} offen offset:1024 lds")
        a(f"s_add_u32 m0, s{sT2}, 8192")
        a(f"buffer_load_dwordx4 v2, {rq}, s{sT0} offen lds")
        a(f"buffer_load_dwordx4 v3, {rq}, s{sT0} offen offset:1024 lds")
        vS = 130
        a.srd(S_WS, P_WS, WS_BYTES)
        a("v_mov_b32 v2, 0")
        a(f"buffer_load_dword v15, v2, {ws}, 0 offen sc1")
        a(f"v_min_u32 v3, 39, v1")
        a(f"s_mul_i32 s{sT1}, s{sG}, 40")
        a(f"v_add_lshl_u32 v2, v3, s{sT1}, 1")
        a(f"s_cmp_eq_u32 s{sW}, 1")
        a(f"s_cselect_b32 s{sT0}, 0, {OOB}")
        a.srd(S_R1, P_LRE, 1280); a.srd(S_R2, P_LIM, 1280); a.srd(S_R3, P_LDT, 1280)
        a(f"buffer_load_ushort v{vS+1}, v2, s[{S_R1}:{S_R1+3}], s{sT0} offen")
        a(f"buffer_load_ushort v{vS+2}, v2, s[{S_R2}:{S_R2+3}], s{sT0} offen")
        a(f"buffer_load_ushort v{vS+3}, v2, s[{S_R3}:{S_R3+3}], s{sT0} offen")
        a(f"v_mul_u32_u24 v2, 40, v3")
        a(f"s_mul_i32 s{sT1}, s{sG}, 1600")
        a(f"s_cmp_eq_u32 s{sW}, 2")
        a(f"s_cselect_b32 s{sT0}, s{sT1}, {OOB}")
        a.srd(SQ, P_WPHI, 25600)
        for i in range(5):
            a(f"buffer_load_dwordx2 v[{vS+4+2*i}:{vS+5+2*i}], v2, {rq}, s{sT0} offen offset:{8*i}")
        a(f"s_getpc_b64 s[{sM}:{sM+1}]")
        a.label("L_pc")
        a(f"s_lshr_b32 s{sT0}, s2, 3")
        a(f"s_lshl_b32 s{sT0}, s{sT0}, 2")
        a(f"s_add_u32 s{sT0}, s{sT0}, s{sW}")
        a(f"s_lshl_b32 s{sT0}, s{sT0}, 8")
        a(f"v_and_b32 v2, 1, v1")
        a(f"v_lshl_add_u32 v2, v2, 7, s{sT0}")
        a(f"s_sub_u32 s{sM}, s{sM}, L_pc-{KNAME}")
        a(f"s_subb_u32 s{sM+1}, s{sM+1}, 0")
        a(f"v_min_u32 v2, L_end-{KNAME}, v2")
        a(f"global_load_dword v255, v2, s[{sM}:{sM+1}]")
        a(f"v_and_b32 v{vN}, 31, v1")
        a(f"v_lshrrev_b32 v{vHH}, 5, v1")
        t = 150
        a(f"v_and_b32 v{t}, 3, v1")
        a(f"v_lshl_add_u32 v{t}, v{vGm}, 2, v{t}")
        a(f"v_min_u32 v{t+1}, 14, v{t}")
        a(f"v_lshlrev_b32 v{t+1}, 3, v{t+1}")
        a(f"v_mov_b32 v{t+2}, 80")
        a(f"v_mov_b32 v{t+3}, 32")
        a(f"v_cmp_gt_u32 vcc, 10, v{t}")
        a(f"v_cndmask_b32 v{t+2}, v{t+2}, v{t+3}, vcc")
        a(f"v_mov_b32 v{t+3}, 72")
        a(f"v_cmp_eq_u32 vcc, 5, v{t}")
        a(f"v_cndmask_b32 v{t+2}, v{t+2}, v{t+3}, vcc")
        a(f"v_mov_b32 v{t+3}, 0")
        a(f"v_cmp_gt_u32 vcc, 5, v{t}")
        a(f"v_cndmask_b32 v{t+2}, v{t+2}, v{t+3}, vcc")
        a(f"v_add_u32 v{t+1}, v{t+1}, v{t+2}")
        a(f"v_bfe_u32 v{t+2}, v1, 2, 2")
        a(f"v_lshl_add_u32 v{t+1}, v{t+2}, 8, v{t+1}")
        vRL = t + 1
        a(f"v_add_u32 v{vRL}, s{sT2}, v{t+1}")
        a(f"s_add_u32 s{sT3}, s{sC}, s{sW}")
        a(f"s_and_b32 s{sT3}, s{sT3}, 1")
        a(f"v_mov_b32 v{t+2}, 512")
        a(f"v_mov_b32 v{t+3}, 448")
        a(f"v_cmp_lt_u32 vcc, 31, v1")
        a(f"v_cndmask_b32 v{t+2}, v{t+2}, v{t+3}, vcc")
        a(f"v_mul_lo_u32 v{t+2}, v{t+2}, s{sT3}")
        a(f"v_lshl_add_u32 v{t+2}, v{vN}, 4, v{t+2}")
        a(f"v_lshl_add_u32 v{t+2}, v{vHH}, 10, v{t+2}")
        a(f"v_mov_b32 v{t+3}, {OOB}")
        a(f"v_cmp_lt_u32 vcc, 59, v1")
        a(f"v_cndmask_b32 v{t+2}, v{t+2}, v{t+3}, vcc")
        vRS = t + 2
        a(f"s_mul_i32 s{sT2}, s{sG}, 153600")
        a(f"s_add_u32 s{sT2}, s{sT2}, {WS_WP}")
        a(f"s_mul_i32 s{sT4}, s{sC}, 5")
        a(f"s_add_u32 s{sT4}, s{sT4}, s{sW}")
        a(f"s_lshr_b32 s{sT4}, s{sT4}, 1")
        a(f"s_mul_i32 s{sT4}, s{sT4}, 3840")
        a(f"s_add_u32 s{sT4}, s{sT4}, s{sT2}")
        a(f"s_add_u32 s{sT5}, s{sT4}, 7680")
        a(f"s_cmp_lg_u32 s{sW}, 0")
        a(f"s_cselect_b32 s{sT5}, {OOB}, s{sT5}")
        R = 156
        a("s_waitcnt vmcnt(10)")
        for m in range(2):
            for e in range(2):
                r = R + 8*m + 4*e
                a(f"ds_read_b64_tr_b16 v[{r}:{r+1}], v{vRL} offset:{8192*m + 40*e}")
                a(f"ds_read_b64_tr_b16 v[{r+2}:{r+3}], v{vRL} offset:{8192*m + 40*e + 1024}")
        for m in range(2):
            for e in range(2):
                r = R + 8*m + 4*e
                a(f"s_waitcnt lgkmcnt({6 - 2*(2*m+e)})")
                a(f"buffer_store_dwordx4 v[{r}:{r+3}], v{vRS}, {ws}, s{sT4 if m == 0 else sT5} offen offset:{1920*e} sc1")
        if 'sprof' in self.opts: self.stamp(5)
        a(f"v_lshrrev_b32 v14, 1, v{vJ}")
        a(f"v_xor_b32 v14, v14, v{vGm}")
        a(f"v_lshlrev_b32 v14, 4, v14")
        a(f"v_lshl_add_u32 v14, v{vJ}, 7, v14")
        a(f"s_lshl_b32 s{sT0}, s{sW}, 12")
        a(f"v_add_u32 v{vX0}, s{sT0}, v14")
        a(f"v_add_u32 v{vW0}, 16384, v14")
        a(f"v_xor_b32 v{vX1}, 64, v{vX0}")
        a(f"v_xor_b32 v{vW1}, 64, v{vW0}")
        self.poll_addr(vPA, WS_FLAG_W, sG)
        self.flag_addr(sM2, WS_FLAG_W, sG, sC, 4, sW)
        self.p2_role()
        for i in range(40): a(f"v_mov_b32 v{U+i}, 0")
        a("s_waitcnt vmcnt(4)")
        self.tag_from(15)
        self.side_jobs(vS)
        for i in range(64): a(f"v_mov_b32 v{ACC+i}, 0")
        a("s_barrier")
        self.stamp(1)
        if 'clk' in self.opts: a(f"s_memtime s[{sPT+14}:{sPT+15}]")
        def b_reads(st, kx, kw):
            b = OPS + 28*st
            for tr in range(2):
                a(f"ds_read_b128 v[{b+4*tr}:{b+4*tr+3}], v{kx} offset:{RING + 2048*tr}")
            for tc in range(5):
                a(f"ds_read_b128 v[{b+8+4*tc}:{b+8+4*tc+3}], v{kw} offset:{RING + 2048*tc}")
        def b_mfma(st):
            b = OPS + 28*st
            for tc in range(5):
                for tr in range(2):
                    d = U + 8*tc + 4*tr
                    a(f"v_mfma_f32_16x16x32_bf16 v[{d}:{d+3}], v[{b+4*tr}:{b+4*tr+3}], v[{b+8+4*tc}:{b+8+4*tc+3}], v[{d}:{d+3}]")
        b_reads(0, vX0, vW0)
        a(f"s_mov_b32 s{sIT}, 0")
        def inter(ms, rs):
            per = -(-len(rs) // max(1, len(ms) - 1)) if rs else 0
            ri = 0
            for i, m in enumerate(ms):
                a(m)
                for _ in range(per):
                    if ri < len(rs): a(rs[ri]); ri += 1
            while ri < len(rs): a(rs[ri]); ri += 1
        def b_reads_l(st, kx, kw):
            b = OPS + 28*st
            return ([f"ds_read_b128 v[{b+4*tr}:{b+4*tr+3}], v{kx} offset:{RING + 2048*tr}" for tr in range(2)] +
                    [f"ds_read_b128 v[{b+8+4*tc}:{b+8+4*tc+3}], v{kw} offset:{RING + 2048*tc}" for tc in range(5)])
        def b_mfma_l(st):
            b = OPS + 28*st
            return [f"v_mfma_f32_16x16x32_bf16 v[{U+8*tc+4*tr}:{U+8*tc+4*tr+3}], v[{b+4*tr}:{b+4*tr+3}], v[{b+8+4*tc}:{b+8+4*tc+3}], v[{U+8*tc+4*tr}:{U+8*tc+4*tr+3}]"
                    for tc in range(5) for tr in range(2)]
        self.inter = inter
        a("s_waitcnt lgkmcnt(0)")
        a.label("LB_loop")
        inter(b_mfma_l(0)[:8], b_reads_l(1, vX1, vW1))
        a(f"v_add_u32 v{vX0}, 0x8000, v{vX0}")
        a(f"v_add_u32 v{vW0}, 0x8000, v{vW0}")
        a(b_mfma_l(0)[8])
        a(f"v_and_b32 v{vX0}, 0x1ffff, v{vX0}")
        a(f"v_and_b32 v{vW0}, 0x1ffff, v{vW0}")
        a(b_mfma_l(0)[9])
        a(f"v_xor_b32 v{vX1}, 64, v{vX0}")
        a(f"v_xor_b32 v{vW1}, 64, v{vW0}")
        a(f"s_cmp_lg_u32 s{sIT}, {WFLAG_IT}")
        a("s_cbranch_scc1 LB_nf")
        a("s_waitcnt vmcnt(0)")
        self.flag_store(sM2, 2)
        a.label("LB_nf")
        a(f"s_cmp_lg_u32 s{sW}, 0")
        a("s_cbranch_scc1 LB_np")
        a(f"s_cmp_lg_u32 s{sIT}, {WGATE-3}")
        a("s_cbranch_scc1 LB_n5")
        self.poll_issue(vPA, vPD)
        a.label("LB_n5")
        a(f"s_cmp_lg_u32 s{sIT}, {WGATE-1}")
        a("s_cbranch_scc1 LB_np")
        self.poll_wait(vPA, vPD)
        a.label("LB_np")
        a("s_waitcnt lgkmcnt(0)")
        for m in b_mfma_l(1)[:2]: a(m)
        a("s_barrier")
        inter(b_mfma_l(1)[2:], b_reads_l(0, vX0, vW0))
        a(f"s_add_u32 s{sIT}, s{sIT}, 1")
        a(f"s_cmp_lt_u32 s{sIT}, 10")
        a("s_waitcnt lgkmcnt(0)")
        a("s_cbranch_scc1 LB_loop")
        self.stamp(2)
        a(f"v_lshlrev_b32 v14, 5, v{vJ}")
        for tc in range(5):
            a(f"ds_read_b128 v[{SC+4*tc}:{SC+4*tc+3}], v14 offset:{L_TAB + 512*tc}")
        vXA = [4, 5, 6, 7]; vWA = 15
        a(f"v_bfe_u32 v14, v1, 1, 3")
        a(f"v_xor_b32 v14, v14, v{vHH}")
        a(f"v_lshlrev_b32 v14, 4, v14")
        a(f"v_lshl_add_u32 v14, v{vN}, 7, v14")
        a(f"s_lshl_b32 s{sT0}, s{sW}, 12")
        a(f"s_add_u32 s{sT0}, s{sT0}, 0x10000")
        a(f"v_add_u32 v{vXA[0]}, s{sT0}, v14")
        for k in range(1, 4):
            a(f"v_xor_b32 v{vXA[k]}, {32*k}, v{vXA[0]}")
        a(f"v_lshlrev_b32 v{vWA}, 4, v1")
        a(f"v_add_u32 v{vWA}, {0x10000 + 16384}, v{vWA}")
        vSEG = 14
        a(f"v_mul_u32_u24 v{vSEG}, 80, v{vJ}")
        a(f"v_lshl_add_u32 v{vSEG}, v{vGm}, 2, v{vSEG}")
        a(f"s_lshl_b32 s{sT0}, s{sW}, 4")
        a(f"s_add_u32 s{sT0}, s{sT0}, {L_SEG}")
        a(f"v_add_u32 v{vSEG}, s{sT0}, v{vSEG}")
        a("s_waitcnt lgkmcnt(0)")
        def a_reads(k):
            b = OPS + 20*k
            a(f"ds_read_b128 v[{b}:{b+3}], v{vXA[k]} offset:{RING}")
            for f in range(4):
                if 'halfread' in self.opts and f >= 1:
                    a(f"ds_read_b32 v{b+4+4*f}, v{vWA} offset:{RING + (4*k+f)*1024}")
                    continue
                a(f"ds_read_b128 v[{b+4+4*f}:{b+7+4*f}], v{vWA} offset:{RING + (4*k+f)*1024}")
        def a_mfma(k):
            b = OPS + 20*k
            if 'nomfma' in self.opts: return
            for f in range(4):
                d = ACC + 16*f
                a(f"v_mfma_f32_32x32x16_bf16 v[{d}:{d+15}], v[{b+4+4*f}:{b+7+4*f}], v[{b}:{b+3}], v[{d}:{d+15}]")
        A0, A1 = TMP, TMP + 5
        def ureg(tc, tt): return U + 8*tc + tt
        prev = [ureg(tc, 0) for tc in range(5)]
        for tt in range(1, 8):
            cur = A0 if tt % 2 else A1
            for tc in range(5):
                a(f"v_fma_f32 v{cur+tc}, v{SC+4*tc}, v{prev[tc]}, v{ureg(tc, tt)}")
            for tc in range(5):
                a(f"v_fmac_f32_dpp v{cur+tc}, v{prev[tc]}, v{SC+4*tc+1} {DPP}")
            prev = [cur + tc for tc in range(5)]
        for tc in range(5):
            a(f"ds_write_b32 v{vSEG}, v{prev[tc]} offset:{1280*tc}")
        a("s_waitcnt lgkmcnt(0)")
        a_reads(0)
        a_reads(1)
        self.stamp(3)
        if 'clk' in self.opts: a(f"s_memtime s[{sPT+10}:{sPT+11}]")
        a(f"s_mov_b32 s{sIT}, 0")
        def a_reads_l(k):
            b = OPS + 20*k
            return ([f"ds_read_b128 v[{b}:{b+3}], v{vXA[k]} offset:{RING}"] +
                    [f"ds_read_b128 v[{b+4+4*f}:{b+7+4*f}], v{vWA} offset:{RING + (4*k+f)*1024}" for f in range(4)])
        def a_mfma_l(k):
            b = OPS + 20*k
            return [f"v_mfma_f32_32x32x16_bf16 v[{ACC+16*f}:{ACC+16*f+15}], v[{b+4+4*f}:{b+7+4*f}], v[{b}:{b+3}], v[{ACC+16*f}:{ACC+16*f+15}]" for f in range(4)]
        a.label("LA_loop")
        a("s_waitcnt lgkmcnt(5)")
        inter(a_mfma_l(0), a_reads_l(2))
        a("s_waitcnt lgkmcnt(5)")
        inter(a_mfma_l(1), a_reads_l(3))
        a("s_waitcnt lgkmcnt(5)")
        m2 = a_mfma_l(2)
        a(m2[0])
        a(f"v_add_u32 v{vXA[0]}, 0x8000, v{vXA[0]}")
        a(f"v_add_u32 v{vWA}, 0x8000, v{vWA}")
        a(f"v_and_b32 v{vXA[0]}, 0x1ffff, v{vXA[0]}")
        a(f"v_and_b32 v{vWA}, 0x1ffff, v{vWA}")
        a(m2[1])
        for k in range(1, 4):
            a(f"v_xor_b32 v{vXA[k]}, {32*k}, v{vXA[0]}")
        a("s_waitcnt lgkmcnt(0)")
        a("s_barrier")
        r0 = a_reads_l(0)
        a(m2[2]); a(r0[0]); a(r0[1]); a(r0[2]); a(m2[3]); a(r0[3]); a(r0[4])
        inter(a_mfma_l(3), a_reads_l(1))
        a(f"s_add_u32 s{sIT}, s{sIT}, 1")
        a(f"s_cmp_lt_u32 s{sIT}, 10")
        a("s_cbranch_scc1 LA_loop")
        self.stamp(4)
        if 'clk' in self.opts: a(f"s_memtime s[{sPT+12}:{sPT+13}]")
        WF = 160
        PK = 224
        v1a, v3a, v4a = 4, 5, 6
        a(f"v_bfe_u32 v7, v1, 2, 2")
        a(f"v_and_b32 v8, 3, v1")
        a(f"v_lshlrev_b32 v8, 3, v8")
        a(f"v_bfe_u32 v9, v1, 4, 1")
        a(f"v_lshl_add_u32 v8, v9, 5, v8")
        a(f"v_add_u32 v8, {L_WPH}, v8")
        a(f"v_lshl_add_u32 v{v1a}, v{vHH}, 2, v7")
        a(f"v_lshl_add_u32 v{v1a}, v{v1a}, 6, v8")
        a(f"v_add_u32 v9, 16, v7")
        a(f"v_mov_b32 v2, 20")
        a(f"v_cmp_lt_u32 vcc, 31, v1")
        a(f"v_cndmask_b32 v{v3a}, v9, v2, vcc")
        a(f"v_cndmask_b32 v{v4a}, v2, v9, vcc")
        a(f"v_lshl_add_u32 v{v3a}, v{v3a}, 6, v8")
        a(f"v_lshl_add_u32 v{v4a}, v{v4a}, 6, v8")
        a("s_waitcnt lgkmcnt(0)")
        for e in range(2):
            w = WF + 16*e; o = 1344*e
            a(f"ds_read_b64_tr_b16 v[{w+8}:{w+9}], v{v4a} offset:{o}")
            a(f"ds_read_b64_tr_b16 v[{w+10}:{w+11}], v{v1a} offset:{o}")
            a(f"ds_read_b64_tr_b16 v[{w+12}:{w+13}], v{v1a} offset:{o+512}")
            a(f"ds_read_b64_tr_b16 v[{w}:{w+1}], v{v1a} offset:{o}")
            a(f"ds_read_b64_tr_b16 v[{w+2}:{w+3}], v{v1a} offset:{o+512}")
            a(f"ds_read_b64_tr_b16 v[{w+4}:{w+5}], v{v3a} offset:{o}")
            for z in (6, 7, 14, 15): a(f"v_mov_b32 v{w+z}, 0")
        vIP, vIV = 7, 8
        a(f"v_mul_u32_u24 v{vIP}, {IMGP}, v{vN}")
        a(f"s_mul_i32 s{sT0}, s{sW}, {32*IMGP}")
        a(f"s_add_u32 s{sT0}, s{sT0}, {L_IMG}")
        a(f"v_add_u32 v{vIP}, s{sT0}, v{vIP}")
        a(f"v_lshl_add_u32 v{vIV}, v{vHH}, 3, v{vIP}")
        a(f"v_mul_u32_u24 v2, 40, v{vHH}")
        a(f"v_add_u32 v{vIP}, v{vIP}, v2")
        order = [4, 5, 6, 7, 8, 9, 10, 11, 0, 1, 2, 3, 12, 13, 14, 15]
        for i in order[:8]:
            for e in range(2):
                s = ACC + 32*e + 2*i
                a(f"v_cvt_pk_bf16_f32 v{PK+16*e+i}, v{s}, v{s+1}")
        DK = [120, 136]; DQ = [ACC, ACC + 16]
        a("s_waitcnt lgkmcnt(0)")
        for e in range(2):
            w = WF + 16*e; p = PK + 16*e
            a(f"v_mfma_f32_32x32x16_bf16 v[{DK[e]}:{DK[e]+15}], v[{w+8}:{w+11}], v[{p+4}:{p+7}], 0")
        for e in range(2):
            w = WF + 16*e; p = PK + 16*e
            a(f"v_mfma_f32_32x32x16_bf16 v[{DK[e]}:{DK[e]+15}], v[{w+12}:{w+15}], v[{p+8}:{p+11}], v[{DK[e]}:{DK[e]+15}]")
        for i in order[8:]:
            for e in range(2):
                s = ACC + 32*e + 2*i
                a(f"v_cvt_pk_bf16_f32 v{PK+16*e+i}, v{s}, v{s+1}")
        a(f"v_mov_b32 v2, 0x3f80")
        a(f"v_mov_b32 v3, 0")
        for e in range(2):
            p = PK + 16*e
            a(f"v_cndmask_b32 v{p+14}, v{p+14}, v2, vcc")
            a(f"v_cndmask_b32 v{p+15}, v{p+15}, v3, vcc")
        for e in range(2):
            w = WF + 16*e; p = PK + 16*e
            a(f"v_mfma_f32_32x32x16_bf16 v[{DQ[e]}:{DQ[e]+15}], v[{w}:{w+3}], v[{p}:{p+3}], 0")
        for e in range(2):
            w = WF + 16*e; p = PK + 16*e
            a(f"v_mfma_f32_32x32x16_bf16 v[{DQ[e]}:{DQ[e]+15}], v[{w+4}:{w+7}], v[{p+4}:{p+7}], v[{DQ[e]}:{DQ[e]+15}]")
        for e in range(2):
            p = PK + 16*e
            for m in range(3):
                a(f"ds_write_b64 v{vIV}, v[{p+10+2*m}:{p+11+2*m}] offset:{160 + 48*e + 16*m}")
        E = [88, 152]; T = [108, 112]
        PKK = [PK, PK + 16]
        self.softmax2(DK, PKK, E, T)
        for e in range(2):
            for m in range(5):
                a(f"ds_write_b64 v{vIP}, v[{PKK[e]+2*m}:{PKK[e]+2*m+1}] offset:{80*e + 8*m}")
        a(f"v_and_b32 v2, 1, v{vGm}")
        a(f"v_lshlrev_b32 v2, 4, v2")
        a(f"v_bfe_u32 v3, v1, 2, 2")
        a(f"v_lshl_add_u32 v2, v3, 2, v2")
        a(f"v_lshl_add_u32 v2, v{vHH}, 1, v2")
        a(f"v_mul_u32_u24 v2, {IMGP}, v2")
        a(f"v_and_b32 v3, 3, v1")
        a(f"v_lshl_add_u32 v2, v3, 3, v2")
        a(f"s_lshr_b32 s{sT0}, s{sW}, 1")
        a(f"s_and_b32 s{sT1}, s{sW}, 1")
        a(f"s_mul_i32 s{sT2}, s{sT0}, 80")
        a(f"s_add_u32 s{sT2}, s{sT2}, {L_IMG}")
        vKA, vKB = 6, 7
        a(f"v_add_u32 v{vKA}, s{sT2}, v2")
        a(f"s_mul_i32 s{sT2}, s{sT0}, 48")
        a(f"s_lshl_b32 s{sT3}, s{sT1}, 5")
        a(f"s_add_u32 s{sT2}, s{sT2}, s{sT3}")
        a(f"s_add_u32 s{sT2}, s{sT2}, {L_IMG + 160}")
        a(f"v_add_u32 v4, s{sT2}, v2")
        vKS, vKS2 = 8, 9
        a(f"s_lshl_b32 s{sT2}, s{sG}, 4")
        a(f"s_add_u32 s{sT2}, s{sT2}, s{sC}")
        a(f"s_mul_i32 s{sT2}, s{sT2}, 7168")
        a(f"s_mul_i32 s{sT3}, s{sT0}, 3360")
        a(f"s_add_u32 s{sT2}, s{sT2}, s{sT3}")
        a(f"s_add_u32 s{sT2}, s{sT2}, {WS_KVP}")
        a(f"s_lshl_b32 s{sT3}, s{sT1}, 4")
        a(f"v_add_u32 v2, s{sT3}, v{vJ}")
        a(f"v_mul_u32_u24 v3, 21, v{vGm}")
        a(f"v_add_u32 v3, v3, v2")
        a(f"v_lshl_add_u32 v5, v3, 4, s{sT2}")
        a(f"v_mov_b32 v3, {OOB}")
        a(f"v_cmp_lt_u32 vcc, 20, v2")
        a(f"v_cndmask_b32 v5, v5, v3, vcc")
        a(f"v_cmp_lt_u32 vcc, 31, v1")
        a(f"v_cndmask_b32 v{vKS2}, v5, v3, vcc")
        vKB = 4; vKS = 5
        a("s_waitcnt lgkmcnt(0)")
        a("s_barrier")
        FA = 120
        FB = 168
        DKV = 184
        for k in range(4):
            for rd in range(2):
                a(f"ds_read_b64_tr_b16 v[{FB+4*k+2*rd}:{FB+4*k+2*rd+1}], v{vKB} offset:{k*32*IMGP + rd*IMGP}")
            for ft in range(3):
                for rd in range(2):
                    r = FA + 12*k + 4*ft + 2*rd
                    a(f"ds_read_b64_tr_b16 v[{r}:{r+1}], v{vKA} offset:{k*32*IMGP + rd*IMGP + 32*ft}")
        for k in range(4):
            a(f"s_waitcnt lgkmcnt({min(15, 8*(3-k))})")
            for ft in range(3):
                r = FA + 12*k + 4*ft; d = DKV + 4*ft
                c = "0" if k == 0 else f"v[{d}:{d+3}]"
                a(f"v_mfma_f32_16x16x32_bf16 v[{d}:{d+3}], v[{r}:{r+3}], v[{FB+4*k}:{FB+4*k+3}], {c}")
        a(f"v_mov_b32 v2, 0xfff")
        for i in range(12):
            a(f"v_bfi_b32 v{DKV+i}, v2, s{sTAG}, v{DKV+i}")
        for ft in range(3):
            d = DKV + 4*ft
            a(f"buffer_store_dwordx4 v[{d}:{d+3}], v{vKS2 if ft == 2 else vKS}, {ws}, 0 offen offset:{1344*ft} sc1")
        a("s_barrier")
        PQ = [224, 236]
        E = [88, 120]; T = [108, 112]
        self.softmax2(DQ, PQ, E, T)
        for e in range(2):
            a(f"v_mov_b32 v{PQ[e]+10}, 0")
            a(f"v_mov_b32 v{PQ[e]+11}, 0")
        if 'clk' not in self.opts: self.stamp(5)
        SO, SXB = S_R1, S_R2
        ro = f"s[{SO}:{SO+3}]"; rxb = f"s[{SXB}:{SXB+3}]"
        a.srd(SO, P_OUT, 2048*1280*4)
        a.srd(SXB, P_BX, 2621440)
        vF, vO, vA0 = 4, 5, 6
        a(f"s_lshl_b32 s{sIT}, s{sC2}, 2")
        a(f"s_add_u32 s{sIT}, s{sIT}, s{sW}")
        a(f"s_lshl_b32 s{sT2}, s{sIT}, 5")
        a(f"v_lshl_add_u32 v2, v{vHH}, 2, s{sT2}")
        for i in range(64): a(f"v_mov_b32 v{ACC+i}, 0")
        a(f"s_cmp_ge_u32 s{sR2}, 10")
        a("s_cbranch_scc1 L_early_a")
        a(f"s_lshl_b32 s{sT3}, s{sD0}, 6")
        a(f"v_add_lshl_u32 v3, v{vN}, s{sT3}, 1")
        a(f"v_mul_u32_u24 v8, 1280, v2")
        a(f"v_add_u32 v8, v8, v3")
        a(f"v_mov_b32 v9, v3")
        a(f"v_mul_u32_u24 v{vO}, 5120, v2")
        a(f"v_lshl_add_u32 v{vO}, v3, 1, v{vO}")
        a(f"v_add_u32 v{vO}, 2560, v{vO}")
        a(f"s_mul_i32 s{sT4}, s{sIT}, 81920")
        a(f"s_add_u32 s{sT4}, s{sT4}, {WS_H}")
        a(f"v_lshl_add_u32 v{vF}, v1, 4, s{sT4}")
        a(f"v_bfe_u32 v{vA0}, v1, 1, 3")
        a(f"v_lshlrev_b32 v{vA0}, 4, v{vA0}")
        a(f"v_lshl_add_u32 v{vA0}, v{vN}, 7, v{vA0}")
        a(f"v_lshl_add_u32 v{vA0}, v{vHH}, 13, v{vA0}")
        a("s_branch L_early_e")
        a.label("L_early_a")
        a(f"s_lshl_b32 s{sT3}, s{sD0}, 7")
        a(f"v_add_lshl_u32 v3, v{vN}, s{sT3}, 2")
        a(f"v_mul_u32_u24 v{vO}, 5120, v2")
        a(f"v_add_u32 v{vO}, v{vO}, v3")
        a(f"s_mul_i32 s{sT4}, s{sIT}, 40960")
        a(f"s_add_u32 s{sT4}, s{sT4}, {WS_O}")
        a(f"v_lshl_add_u32 v{vF}, v1, 4, s{sT4}")
        a(f"v_bfe_u32 v3, v1, 2, 2")
        a(f"v_mul_u32_u24 v{vA0}, 320, v3")
        a(f"v_lshl_add_u32 v{vA0}, v{vHH}, 11, v{vA0}")
        a(f"v_bfe_u32 v3, v1, 4, 1")
        a(f"v_lshl_add_u32 v{vA0}, v3, 5, v{vA0}")
        a(f"v_and_b32 v3, 3, v1")
        a(f"v_lshl_add_u32 v{vA0}, v3, 3, v{vA0}")
        a(f"v_mov_b32 v8, 0")
        a(f"v_mov_b32 v9, 0")
        a.label("L_early_e")
        a("s_barrier")
        SV = 120
        for tc in range(5):
            a(f"ds_read_b32 v{SV+tc}, v{vSEG} offset:{1280*tc}")
        vHW, vHR, vHS = 2, 3, 15
        a(f"s_mul_i32 s{sT0}, s{sW}, 5120")
        a(f"s_add_u32 s{sT0}, s{sT0}, {L_HT}")
        a(f"v_lshlrev_b32 v{vHW}, 6, v{vJ}")
        a(f"v_lshl_add_u32 v{vHW}, v{vGm}, 4, v{vHW}")
        a(f"v_add_u32 v{vHW}, s{sT0}, v{vHW}")
        a(f"v_bfe_u32 v{vHR}, v1, 2, 2")
        a(f"v_lshl_add_u32 v{vHR}, v{vHH}, 3, v{vHR}")
        a(f"v_lshlrev_b32 v{vHR}, 6, v{vHR}")
        a(f"v_bfe_u32 v{vHS}, v1, 4, 1")
        a(f"v_lshl_add_u32 v{vHR}, v{vHS}, 5, v{vHR}")
        a(f"v_and_b32 v{vHS}, 3, v1")
        a(f"v_lshl_add_u32 v{vHR}, v{vHS}, 3, v{vHR}")
        a(f"v_add_u32 v{vHR}, s{sT0}, v{vHR}")
        a(f"s_lshl_b32 s{sT1}, s{sC}, 2")
        a(f"s_add_u32 s{sT1}, s{sT1}, s{sW}")
        a(f"s_mul_i32 s{sT2}, s{sT1}, 81920")
        a(f"s_mul_i32 s{sT3}, s{sG}, 5120")
        a(f"s_add_u32 s{sT2}, s{sT2}, s{sT3}")
        a(f"s_add_u32 s{sT2}, s{sT2}, {WS_H}")
        a(f"v_lshl_add_u32 v{vHS}, v1, 4, s{sT2}")
        a("s_waitcnt lgkmcnt(0)")
        prev = [SV + tc for tc in range(5)]
        for tt in range(8):
            for tc in range(5):
                u = ureg(tc, tt)
                a(f"v_fma_f32 v{u}, v{SC+4*tc}, v{prev[tc]}, v{u}")
            for tc in range(5):
                u = ureg(tc, tt)
                a(f"v_fmac_f32_dpp v{u}, v{prev[tc]}, v{SC+4*tc+1} {DPP}")
            prev = [ureg(tc, tt) for tc in range(5)]
        HP = 128; OTm = [148, 156]
        for tc in range(5):
            o = OTm[tc & 1]
            for tt in range(8):
                a(f"v_mul_f32 v{o+tt}, v{SC+4*tc+2}, v{ureg(tc, tt)}")
            for tt in range(8):
                a(f"v_fmac_f32_dpp v{o+tt}, v{ureg(tc, tt)}, v{SC+4*tc+3} {DPP}")
            for i in range(4):
                a(f"v_cvt_pk_bf16_f32 v{HP+4*tc+i}, v{o+2*i}, v{o+2*i+1}")
            a(f"ds_write_b128 v{vHW}, v[{HP+4*tc}:{HP+4*tc+3}] offset:{1024*tc}")
        a("s_waitcnt lgkmcnt(0)")
        HF = 164
        for tc in range(5):
            for rd in range(2):
                a(f"ds_read_b64_tr_b16 v[{HF+4*tc+2*rd}:{HF+4*tc+2*rd+1}], v{vHR} offset:{1024*tc + 256*rd}")
        def hstores():
            a(f"s_mov_b32 s{sT0}, 4096")
            for tc in range(5):
                if 'hlate' not in self.opts: a(f"s_waitcnt lgkmcnt({2*(4-tc)})")
                if tc < 4:
                    a(f"buffer_store_dwordx4 v[{HF+4*tc}:{HF+4*tc+3}], v{vHS}, {ws}, 0 offen offset:{1024*tc} sc1")
                else:
                    a(f"buffer_store_dwordx4 v[{HF+4*tc}:{HF+4*tc+3}], v{vHS}, {ws}, s{sT0} offen sc1")
        if 'hlate' not in self.opts: hstores()
        if 'clk' not in self.opts: self.stamp(6)
        self.flag_addr(sT5, WS_FLAG_H, sC, sW, 16, sG)
        a(f"v_mul_u32_u24 v2, 112, v{vN}")
        a(f"v_mul_u32_u24 v3, 48, v{vHH}")
        a(f"v_add_u32 v7, v2, v3")
        a(f"s_mul_i32 s{sT2}, s{sT1}, 40960")
        a(f"s_lshr_b32 s{sT3}, s{sG}, 1")
        a(f"s_mul_i32 s{sT3}, s{sT3}, 5120")
        a(f"s_add_u32 s{sT2}, s{sT2}, s{sT3}")
        a(f"s_add_u32 s{sT2}, s{sT2}, {WS_O}")
        a(f"v_lshl_add_u32 v14, v1, 4, s{sT2}")
        a(f"s_and_b32 s{sT3}, s{sG}, 1")
        a(f"s_lshl_b32 s{sT4}, s{sT3}, 11")
        a(f"s_lshl_b32 s{sT3}, s{sT3}, 3")
        a(f"s_add_u32 s{sT3}, s{sT3}, 4096")
        if 'hlate' not in self.opts:
            a("s_waitcnt vmcnt(0)")
            self.flag_store(sT5, 2)
        a(f"s_add_u32 s{sT5}, s{sT5}, {WS_FLAG_O - WS_FLAG_H}")
        a(f"s_lshl_b32 s{sT1}, s{sW}, 6")
        a(f"s_add_u32 s{sT2}, s{sT1}, {WS_FLAG_O - WS_FLAG_H}")
        a(f"s_cmp_ge_u32 s{sR2}, 10")
        a(f"s_cselect_b32 s{sT1}, s{sT2}, s{sT1}")
        vPA2 = 10
        self.poll_addr(vPA2, WS_FLAG_H, sC2, 15, sT1)
        a("s_barrier")
        KF = 120
        for e in range(2):
            for k in range(3):
                r = KF + 12*e + 4*k
                a(f"ds_read_b128 v[{r}:{r+3}], v7 offset:{L_KVI + 3584*e + 16*k}")
        DO = [16, 32]
        a("s_waitcnt lgkmcnt(0)")
        for k in range(3):
            for e in range(2):
                r = KF + 12*e + 4*k; d = DO[e]
                c = "0" if k == 0 else f"v[{d}:{d+15}]"
                a(f"v_mfma_f32_32x32x16_bf16 v[{d}:{d+15}], v[{r}:{r+3}], v[{PQ[e]+4*k}:{PQ[e]+4*k+3}], {c}")
        OP = 144
        for e in range(2):
            a(f"v_add_f32 v{DO[e]+10}, 0x358637bd, v{DO[e]+10}")
        for e in range(2):
            a(f"v_rcp_f32 v{DO[e]+10}, v{DO[e]+10}")
        for i in range(5):
            for e in range(2):
                d = DO[e]
                a(f"v_pk_mul_f32 v[{d+2*i}:{d+2*i+1}], v[{d+2*i}:{d+2*i+1}], v[{d+10}:{d+11}] op_sel:[0,0] op_sel_hi:[1,0]")
        for e in range(2):
            for i in range(5):
                a(f"v_cvt_pk_bf16_f32 v{OP+5*e+i}, v{DO[e]+2*i}, v{DO[e]+2*i+1}")
        a(f"buffer_store_dwordx4 v[{OP}:{OP+3}], v14, {ws}, s{sT4} offen sc1")
        a(f"buffer_store_dwordx4 v[{OP+4}:{OP+7}], v14, {ws}, s{sT4} offen offset:1024 sc1")
        a(f"buffer_store_dwordx2 v[{OP+8}:{OP+9}], v14, {ws}, s{sT3} offen sc1")
        if 'hlate' in self.opts:
            hstores()
            a("s_waitcnt vmcnt(5)")
            self.flag_store(sT5, 2)
            a(f"s_sub_u32 s{sT5}, s{sT5}, {WS_FLAG_O - WS_FLAG_H}")
            a("s_waitcnt vmcnt(1)")
            self.flag_store(sT5, 2)
        else:
            a("s_waitcnt vmcnt(0)")
            self.flag_store(sT5, 2)
        if 'clk' not in self.opts: self.stamp(7)
        self.stamp_flush(160, 0)
        a("s_barrier")
        a(f"s_cmp_eq_u32 s{sR2}, 15")
        a("s_cbranch_scc1 L_end")
        HR = 120
        vAD = [7, 8, 9, 11]
        self.poll_issue(vPA2, 3)
        self.poll_wait(vPA2, 3)
        self.stamp(0)
        a(f"s_cmp_ge_u32 s{sR2}, 10")
        a("s_cbranch_scc1 LP2_A")
        WB = 184
        a.srd(S_R3, P_DSK, 1280)
        if 'noskip' in self.opts: a(f"s_mov_b32 s{SXB+2}, 0")
        a(f"buffer_load_ushort v14, v9, s[{S_R3}:{S_R3+3}], 0 offen")
        a(f"buffer_load_ushort v15, v9, s[{S_R3}:{S_R3+3}], 0 offen offset:64")
        for r in range(16):
            a(f"s_movk_i32 s{sT4}, {(8*(r >> 2) + (r & 3))*1280}") if (8*(r >> 2) + (r & 3))*1280 < 32768 else a(f"s_mov_b32 s{sT4}, {(8*(r >> 2) + (r & 3))*1280}")
            for t in range(2):
                a(f"buffer_load_short_d16_hi v{ACC+16*t+r}, v8, {rxb}, s{sT4} offen offset:{64*t}")
        a(f"s_lshl_b32 s{sKS}, s{sROT2}, 13")
        def ld(slot, kk):
            r = HR + 4*slot
            so = sKS if kk < 4 else sKSW
            return f"buffer_load_dwordx4 v[{r}:{r+3}], v{vF}, {ws}, s{so} offen offset:{1024*(kk & 3)} sc1"
        def adv(step, lim):
            a(f"s_add_u32 s{sKS}, s{sKS}, {step}")
            a(f"s_cmp_eq_u32 s{sKS}, {lim}")
            a(f"s_cselect_b32 s{sKS}, 0, s{sKS}")
        def lds_adv(step):
            a(f"v_add_u32 v{vAD[0]}, s{sLW}, v{vA0}")
            a(f"s_add_u32 s{sLW}, s{sLW}, {step}")
            a(f"s_cmp_ge_u32 s{sLW}, {LDS_TOTAL}")
            a(f"s_cselect_b32 s{sLW}, 0, s{sLW}")
        for st in range(2):
            a(f"s_add_u32 s{sKSW}, s{sKS}, 4096")
            for kk in range(8): a(ld(8*st + kk, kk))
            adv(8192, 81920)
        a(f"s_mov_b32 s{sIT}, 0")
        a(f"s_mov_b32 s{sLW}, {RING}")
        def rdB(rho):
            b = WB + 8*(rho & 3)
            return [f"v_xor_b32 v{vAD[1 + (rho & 1)]}, {16*(rho & 7)}, v{vAD[0]}"] + \
                   [f"ds_read_b128 v[{b+4*t}:{b+4*t+3}], v{vAD[1 + (rho & 1)]} offset:{4096*t}" for t in range(2)]
        a("s_barrier")
        lds_adv(16384)
        for rho in range(3):
            for x in rdB(rho): a(x)
        a("s_waitcnt vmcnt(16)")
        a(f"v_lshlrev_b32 v14, 16, v14")
        a(f"v_lshlrev_b32 v15, 16, v15")
        for t in range(2):
            for r in range(0, 16, 2):
                x = ACC + 16*t + r
                a(f"v_mul_f32 v{x}, v{x}, v{14+t}")
                a(f"v_mul_f32 v{x+1}, v{x+1}, v{14+t}")
                a(f"v_cvt_pk_bf16_f32 v{x+1}, v{x}, v{x+1}")
                a(f"v_lshlrev_b32 v{x}, 16, v{x+1}")
                a(f"v_and_b32 v{x+1}, 0xffff0000, v{x+1}")
        a.label("LP2B_loop")
        a(f"s_cmp_ge_u32 s{sIT}, 4")
        a(f"s_cselect_b32 s{sKS}, {OOB}, s{sKS}")
        for sidx in range(16):
            st, kk = sidx >> 3, sidx & 7
            rho = sidx + 3
            if kk == 0: a(f"s_add_u32 s{sKSW}, s{sKS}, 4096")
            if rho == 16:
                a(f"s_cmp_ge_u32 s{sIT}, 4")
                a("s_cbranch_scc1 LP2B_nb")
                a("s_barrier")
                a.label("LP2B_nb")
            if rho in (8, 16): lds_adv(16384)
            rr = rdB(rho)
            a(rr[0])
            a(f"s_waitcnt vmcnt(15) lgkmcnt(4)")
            b = WB + 8*(sidx & 3); h = HR + 4*sidx
            for t in range(2):
                d = ACC + 16*t
                a(f"v_mfma_f32_32x32x16_bf16 v[{d}:{d+15}], v[{h}:{h+3}], v[{b+4*t}:{b+4*t+3}], v[{d}:{d+15}]")
                a(rr[1+t])
            a(ld(sidx, kk))
            if kk == 7: adv(8192, 81920)
        self.itstamp()
        a(f"s_add_u32 s{sIT}, s{sIT}, 1")
        a(f"s_cmp_lt_u32 s{sIT}, 5")
        a("s_cbranch_scc1 LP2B_loop")
        self.stamp(1)
        for r in range(16):
            a(f"s_mov_b32 s{sT4}, {(8*(r >> 2) + (r & 3))*5120}")
            for t in range(2):
                a(f"buffer_store_dword v{ACC+16*t+r}, v{vO}, {ro}, s{sT4} offen offset:{128*t} {self.ost}")
        a("s_branch LP2_end")
        a.label("LP2_A")
        HA = 120
        WBA = [16, 32, None]
        def wreg(buf, t):
            if buf < 2: return WBA[buf] + 4*t
            return [48, 52, 248, 252][t]
        a(f"s_mul_i32 s{sKS}, s{sROT2}, 5120")
        def ldA(u):
            kk = u % 5
            if kk == 0: a(f"s_add_u32 s{sKSW}, s{sKS}, 4096")
            r = HA + 4*(u % 32)
            so = sKS if kk < 4 else sKSW
            a(f"buffer_load_dwordx4 v[{r}:{r+3}], v{vF}, {ws}, s{so} offen offset:{1024*(kk & 3)} sc1")
            if kk == 4: adv(5120, 40960)
        def rdA_addr(u):
            base = (RING + 4096*u) % LDS_TOTAL
            a(f"v_add_u32 v{vAD[0]}, {base}, v{vA0}")
            for t in range(1, 4):
                a(f"v_xor_b32 v{vAD[t]}, {64*t}, v{vAD[0]}")
        def rdA(u):
            return [f"ds_read_b64_tr_b16 v[{wreg(u % 3, t)+2*rd}:{wreg(u % 3, t)+2*rd+1}], v{vAD[t]} offset:{1024*rd}" for t in range(4) for rd in range(2)]
        for u in range(32): ldA(u)
        for u in range(2):
            rdA_addr(u)
            for x in rdA(u): a(x)
        for u in range(40):
            if u + 2 in (20, 30): a("s_barrier")
            rr = []
            if u + 2 < 40:
                rdA_addr(u + 2)
                rr = rdA(u + 2)
            nout = (31 if u < 8 else 39 - u)
            a(f"s_waitcnt vmcnt({nout}) lgkmcnt({8 if u < 39 else 0})")
            h = HA + 4*(u % 32)
            for t in range(4):
                d = ACC + 16*t; b = wreg(u % 3, t)
                a(f"v_mfma_f32_32x32x16_bf16 v[{d}:{d+15}], v[{h}:{h+3}], v[{b}:{b+3}], v[{d}:{d+15}]")
                if rr: a(rr[2*t]); a(rr[2*t+1])
            if u < 8: ldA(32 + u)
            if self.prof and u % 10 == 9: self.stamp(3 + u // 10)
        a(f"s_xor_b32 s{sT0}, s2, 80")
        a(f"s_or_b32 s{sT0}, s{sT0}, s{sW}")
        a(f"s_cmp_lg_u32 s{sT0}, 0")
        a(f"s_cselect_b32 s{sT1}, {OOB}, 0")
        a(f"s_mul_i32 s{sTAG}, s{sTAG}, {pow(KMUL, -1, 1 << 32):#x}")
        self.flag_store(sT1, 2)
        self.stamp(1)
        for r in range(16):
            a(f"s_mov_b32 s{sT4}, {(8*(r >> 2) + (r & 3))*5120}")
            for t in range(4):
                a(f"buffer_store_dword v{ACC+16*t+r}, v{vO}, {ro}, s{sT4} offen offset:{128*t} {self.ost}")
        a.label("LP2_end")
        if self.prof:
            a("s_waitcnt vmcnt(0)")
        self.stamp(2)
        self.stamp_flush(160, 1)
        a("s_endpgm")

    def loader(self):
        a = self.a
        ws = self.ws
        SX, SB, SXA, STR = S_R1, S_R2, S_R3, S_R4
        rx = f"s[{SX}:{SX+3}]"; rb = f"s[{SB}:{SB+3}]"; rxa = f"s[{SXA}:{SXA+3}]"; rt = f"s[{STR}:{STR+3}]"
        self.stamp(0)
        a(f"s_sub_u32 s{sL}, s{sW}, 4")
        if 'bprof' in self.opts: a("v_mov_b32 v255, 0")
        self.bstamp(32)
        out = []
        def issue(txt, lab):
            a(txt); out.append(lab)
        def wait_for(lab):
            idx = max(i for i, l in enumerate(out) if l == lab)
            n = len(out) - 1 - idx
            assert n <= 63
            a(f"s_waitcnt vmcnt({n})")
            del out[:idx+1]
        vXB = [4, 5, 6, 7]; vXA = [8, 9, 10, 11]; vBM = [12, 13, 14]; vWP = [28, 29, 30, 31]; vT = 15; vTW = 27
        sTLO, sTHI = sM, sM + 1
        a(f"s_lshl_b32 s{sT1}, s{sC}, 7")
        a(f"s_mul_i32 s{sT3}, s{sG}, 40")
        a(f"s_and_b32 s{sT4}, s{sG}, 7")
        a(f"s_and_b32 s{sT5}, s{sC}, 3")
        a(f"s_lshl_b32 s{sT6}, s{sT5}, 1")
        a(f"s_add_u32 s{sT6}, s{sT6}, s{sT4}")
        a(f"s_and_b32 s{sM}, s{sT6}, 7")
        a(f"s_lshl_b32 s{sM}, s{sM}, 7")
        a(f"s_add_u32 s{sT6}, s{sT6}, s{sT5}")
        a(f"s_cmp_ge_u32 s{sT6}, 10")
        a(f"s_cselect_b32 s{sT5}, 10, 0")
        a(f"s_sub_u32 s{sT6}, s{sT6}, s{sT5}")
        a(f"s_lshl_b32 s{sM+1}, s{sT6}, 7")
        a(f"s_mov_b32 s{sM2}, s{sM+1}")
        a(f"v_lshrrev_b32 v2, 3, v1")
        a(f"v_and_b32 v3, 7, v1")
        a(f"v_lshrrev_b32 v16, 1, v2")
        a(f"v_xor_b32 v32, v3, v16")
        a(f"v_xor_b32 v33, 4, v32")
        a(f"v_lshlrev_b32 v32, 4, v32")
        a(f"v_lshlrev_b32 v33, 4, v33")
        a(f"s_lshl_b32 s{sT0}, s{sL}, 5")
        a(f"s_add_u32 s{sT0}, s{sT0}, s{sT1}")
        a(f"s_mul_i32 s{sT0}, s{sT0}, 1280")
        a(f"v_mul_u32_u24 v34, 1280, v2")
        a(f"v_lshrrev_b32 v35, 2, v2")
        a(f"v_lshlrev_b32 v35, 3, v35")
        a(f"v_and_b32 v36, 3, v2")
        a(f"v_add_u32 v35, v35, v36")
        a(f"v_mul_u32_u24 v35, 1280, v35")
        for i in range(4):
            a(f"v_add3_u32 v{vXB[i]}, v35, v{32 + (i & 1)}, s{sT0}")
            if i: a(f"v_add_u32 v{vXB[i]}, {(16*(i & 1) + 4*(i >> 1))*1280 - i*1024}, v{vXB[i]}")
        a(f"s_and_b32 s{sT1}, s{sL}, 1")
        a(f"s_lshl_b32 s{sT1}, s{sT1}, 6")
        a(f"v_xor_b32 v36, s{sT1}, v32")
        a(f"s_lshr_b32 s{sT2}, s{sL}, 1")
        a(f"s_lshl_b32 s{sT2}, s{sT2}, 3")
        a(f"s_add_u32 s{sT2}, s{sT2}, s{sT3}")
        a(f"s_mul_i32 s{sT2}, s{sT2}, 1280")
        a(f"v_add3_u32 v{vBM[0]}, v34, v36, s{sT2}")
        a(f"v_add_u32 v{vBM[1]}, {16*1280}, v{vBM[0]}")
        a(f"s_cmp_ge_u32 s{sL}, 2")
        a(f"s_cselect_b32 s{sT3}, {OOB}, {32*1280}")
        a(f"v_add_u32 v{vBM[2]}, s{sT3}, v{vBM[0]}")
        a(f"s_lshl_b32 s{sLX}, s{sL}, 12")
        a(f"s_lshl_b32 s{sLW}, s{sL}, 10")
        a("s_waitcnt lgkmcnt(0)")
        a.srd(SX, P_BX, 2621440)
        a(f"s_cmp_eq_u32 s{sT1}, 64")
        a(f"s_cselect_b32 s{SB}, s{P_BIM}, s{P_BRE}")
        a(f"s_cselect_b32 s{SB+1}, s{P_BIM+1}, s{P_BRE+1}")
        a(f"s_and_b32 s{SB+1}, s{SB+1}, 0xffff")
        a(f"s_mov_b32 s{SB+2}, 819200")
        a(f"s_mov_b32 s{SB+3}, 0x00020000")
        def adv(reg, lim=1280):
            a(f"s_add_u32 s{reg}, s{reg}, 128")
            a(f"s_cmp_ge_u32 s{reg}, {lim}")
            a(f"s_cselect_b32 s{reg}, 0, s{reg}")
        def stageB(S):
            sl = RING + (S % 4) * 32768
            a(f"s_add_u32 m0, s{sLX}, {sl}")
            if S < NLOCK:
                a(f"s_movk_i32 s{sKS}, {128*S}")
            else:
                a(f"s_add_u32 s{sKS}, s{sM}, {128*NLOCK}")
                adv(sM, 128*(10 - NLOCK))
            for i in range(4):
                issue(f"buffer_load_dwordx4 v{vXB[i]}, {rx}, s{sKS} offen offset:{1024*i} {'nt' if S < NTS else ''} lds", f'st{S}')
            for m in range(3):
                a(f"s_add_u32 m0, s{sLW}, {sl + 16384 + 4096*m}")
                issue(f"buffer_load_dwordx4 v{vBM[m]}, {rb}, s{sKS} offen {'nt' if S < NTS else ''} lds", f'st{S}')
        def stageAx(S):
            sl = RING + (S % 4) * 32768
            a(f"s_add_u32 m0, s{sLX}, {sl}")
            for i in range(4):
                issue(f"buffer_load_dwordx4 v{vXA[i]}, {rxa}, s{sM+1} offen offset:{1024*i} lds", f'st{S}')
            adv(sM + 1)
        def stageAw(S):
            sl = RING + (S % 4) * 32768
            a(f"s_add_u32 m0, s{sLX}, {sl + 16384}")
            a(f"s_mul_i32 s{sKS}, s{sM2}, 120")
            for i in range(4):
                issue(f"buffer_load_dwordx4 v{vWP[i]}, {ws}, s{sKS} offen offset:{1024*i} sc1 lds", f'st{S}')
            adv(sM2)
        stageB(0); stageB(1)
        self.stamp(1)
        a.srd(S_WS, P_WS, WS_BYTES)
        vS = 26
        a("v_mov_b32 v2, 0")
        issue(f"buffer_load_dword v{vS}, v2, {ws}, 0 offen sc1", 'ep')
        a.srd(SXA, P_AX, 2621440)
        for i in range(4):
            a(f"v_add3_u32 v{vXA[i]}, v34, v{32 + (i & 1)}, s{sT0}")
            if i: a(f"v_add_u32 v{vXA[i]}, {i*8*1280 - i*1024}, v{vXA[i]}")
        a(f"s_mul_i32 s{sT2}, s{sG}, 153600")
        a(f"s_add_u32 s{sT2}, s{sT2}, {WS_WP}")
        a(f"s_mul_i32 s{sT3}, s{sL}, 3840")
        a(f"s_add_u32 s{sT3}, s{sT3}, s{sT2}")
        a(f"v_lshl_add_u32 v{vWP[0]}, v1, 4, s{sT3}")
        a(f"v_and_b32 v36, 31, v1")
        a(f"v_min_u32 v37, 27, v36")
        a(f"v_lshlrev_b32 v37, 4, v37")
        a(f"v_lshrrev_b32 v35, 5, v1")
        a(f"v_mul_u32_u24 v34, 448, v35")
        a(f"v_add3_u32 v{vWP[1]}, v37, v34, s{sT3}")
        a(f"v_subrev_u32 v{vWP[2]}, 128, v{vWP[0]}")
        a(f"v_subrev_u32 v{vWP[3]}, 128, v{vWP[1]}")
        vQ = 38
        a(f"v_and_b32 v{vQ}, 15, v1")
        a(f"v_add_u32 v{vQ}, 64, v{vQ}")
        a(f"s_cmp_eq_u32 s{sL}, 0")
        a(f"s_cselect_b64 vcc, -1, 0")
        a(f"v_cndmask_b32 v{vQ}, v{vQ}, v1, vcc")
        self.p2_role()
        SG, TB, vSA = 40, 56, 39
        for S in range(17):
            wait_for(f'st{S}')
            a("s_barrier")
            self.bstamp(S)
            if S == 0:
                self.stamp(2)
                stageB(2); stageB(3)
            elif S <= 6:
                stageB(S + 3)
            else:
                stageAx(S + 3)
                if S == WGATE:
                    for q in range(10, S + 4): stageAw(q)
                elif S > WGATE:
                    stageAw(S + 3)
            if S == 2:
                self.tag_from(vS)
            if S == 11:
                a(f"v_mul_u32_u24 v{vSA}, 80, v{vQ}")
                for m in range(4):
                    a(f"ds_read_b128 v[{SG+4*m}:{SG+4*m+3}], v{vSA} offset:{L_SEG + 16*m}")
                a(f"v_lshlrev_b32 v2, 5, v{vQ}")
                a(f"ds_read_b128 v[{TB}:{TB+3}], v2 offset:{L_TAB + 16}")
                a(f"s_lshl_b32 s{sT0}, s{sG}, 4")
                a(f"s_add_u32 s{sT0}, s{sT0}, s{sC}")
                a(f"s_mul_i32 s{sT0}, s{sT0}, 384")
                a(f"s_add_u32 s{sT0}, s{sT0}, {WS_AGG}")
                a(f"v_lshl_add_u32 v3, v{vQ}, 2, s{sT0}")
                a(f"s_cmp_ge_u32 s{sL}, 2")
                a(f"s_cselect_b32 s{sT5}, {OOB}, 0")
                a("s_waitcnt lgkmcnt(0)")
                prev = SG
                for sg in range(1, 8):
                    cur = 60 + (sg & 1)
                    a(f"v_fma_f32 v{cur}, v{TB}, v{prev}, v{SG+sg}")
                    a(f"v_fmac_f32_dpp v{cur}, v{prev}, v{TB+1} {DPP}")
                    prev = cur
            if S == 12:
                for sg in range(8, 16):
                    cur = 60 + (sg & 1)
                    a(f"v_fma_f32 v{cur}, v{TB}, v{prev}, v{SG+sg}")
                    a(f"v_fmac_f32_dpp v{cur}, v{prev}, v{TB+1} {DPP}")
                    prev = cur
                issue(f"buffer_store_dword v{prev}, v3, {ws}, s{sT5} offen sc1", 'agg')
            if S == 13: self.reduce_addrs(0)
            if S == 14: self.reduce_addrs(1)
            if S == 15: self.p2_loader_setup()
            if S == 16:
                assert 'agg' not in out
                self.flag_addr(sT5, WS_FLAG_AG, sG, sC, 2, sL)
                a(f"s_cmp_ge_u32 s{sL}, 2")
                a(f"s_cselect_b32 s{sT5}, {OOB}, s{sT5}")
                self.flag_store(sT5, 2); out.append('flag')
        a(f"s_cmp_ge_u32 s{sL}, 2")
        a("s_cbranch_scc1 LL_hi")
        out_save = list(out)
        vPA, vPD = 2, 3
        wait_for('st17'); a("s_barrier"); self.bstamp(17)
        wait_for('st18'); a("s_barrier"); self.bstamp(18)
        self.poll_addr(vPA, WS_FLAG_AG, sG, 31)
        a(f"s_lshl_b32 s{sT0}, s{sC}, 1")
        a(f"s_lshl_b32 s{sM2}, 1, s{sT0}")
        a(f"s_sub_u32 s{sM2}, s{sM2}, 1")
        wait_for('st19'); a("s_barrier"); self.bstamp(19)
        self.poll_issue(vPA, vPD)
        a("s_barrier")
        self.bstamp(20)
        self.stamp(4, True)
        self.poll_wait(vPA, vPD, sM2)
        AG = 64
        a(f"s_mul_i32 s{sT0}, s{sG}, {16*384}")
        a(f"s_add_u32 s{sT0}, s{sT0}, {WS_AGG}")
        a(f"v_lshl_add_u32 v3, v{vQ}, 2, s{sT0}")
        for m in range(15):
            a(f"s_sub_u32 s{sT1}, s{sC}, {15 - m}")
            a(f"s_mul_i32 s{sT2}, s{sT1}, 384")
            a(f"s_cmp_lt_i32 s{sT1}, 0")
            a(f"s_cselect_b32 s{sT2}, {OOB}, s{sT2}")
            a(f"buffer_load_dword v{AG+m}, v3, {ws}, s{sT2} offen sc1")
        a("s_barrier")
        self.bstamp(21)
        a("s_barrier")
        self.bstamp(22)
        prev = AG
        for m in range(1, 15):
            cur = 60 + (m & 1) if m < 14 else 80
            a(f"s_waitcnt vmcnt({14 - m})")
            a(f"v_fma_f32 v{cur}, v{TB+2}, v{prev}, v{AG+m}")
            a(f"v_fmac_f32_dpp v{cur}, v{prev}, v{TB+3} {DPP}")
            prev = cur
        SS = 80
        for sg in range(15):
            a(f"v_fma_f32 v{SS+sg+1}, v{TB}, v{SS+sg}, v{SG+sg}")
            a(f"v_fmac_f32_dpp v{SS+sg+1}, v{SS+sg}, v{TB+1} {DPP}")
        for m in range(4):
            a(f"ds_write_b128 v{vSA}, v[{SS+4*m}:{SS+4*m+3}] offset:{L_SEG + 16*m}")
        a("s_waitcnt lgkmcnt(0)")
        self.stamp(5, True)
        if 'gprof' in self.opts: self.stamp(5)
        a("s_branch LL_reduce")
        a.label("LL_hi")
        out[:] = out_save
        sK2 = sROT
        def piece(lo, hi, role=None):
            la = a.newlabel("Lpc_a"); le = a.newlabel("Lpc_e")
            if role is None:
                a(f"s_cmp_ge_u32 s{sR2}, 10")
                a(f"s_cbranch_scc1 {la}")
            for j in (range(lo // 4, hi // 4) if role != 'A' else []):
                base = (RING + 16384*j) % LDS_TOTAL
                for vv in range(2):
                    a(f"s_add_u32 m0, s{sL2X}, {base + 4096*vv}")
                    for i in range(4):
                        a(f"buffer_load_dwordx4 v{100+4*vv+i}, s[{S_R4}:{S_R4+3}], s{sK2} offen offset:{1024*i} lds")
                adv(sK2)
            if role is None:
                a(f"s_branch {le}")
                a.label(la)
            for u in (range(lo, hi) if role != 'B' else []):
                base = (RING + 4096*u) % LDS_TOTAL
                a(f"s_add_u32 m0, s{sL2X}, {base}")
                st = u % 5
                for vv in range(2):
                    a(f"buffer_load_dwordx4 v{100+5*vv+st}, s[{S_R4}:{S_R4+3}], s{sK2} offen offset:{1024*vv} lds")
                if st == 4:
                    a(f"s_add_u32 s{sK2}, s{sK2}, {80*1280}")
                    a(f"s_cmp_ge_u32 s{sK2}, {640*1280}")
                    a(f"s_cselect_b32 s{sK2}, 0, s{sK2}")
            if role is None: a.label(le)
            for u in range(lo, hi):
                out.extend([f'u{u}'] * 2)
        pre = 'nopre' not in self.opts
        wait_for('st17'); a("s_barrier")
        if pre: piece(0, 8)
        wait_for('st18'); a("s_barrier")
        if pre: piece(8, 16)
        wait_for('st19'); a("s_barrier")
        if pre: piece(16, 20)
        a("s_barrier")
        if 'pf2' in self.opts:
            la = a.newlabel("Lpf_a"); le = a.newlabel("Lpf_e")
            a(f"s_cmp_ge_u32 s{sR2}, 10")
            a(f"s_cbranch_scc1 {la}")
            a(f"s_lshl_b32 s{sT0}, s{sD0}, 6")
            a(f"v_add_u32 v2, s{sT0}, v1")
            a(f"v_mul_u32_u24 v2, 1280, v2")
            a(f"s_mov_b32 s{sT1}, s{sK2}")
            for i in range(5):
                a(f"buffer_load_dword v254, v2, s[{S_R4}:{S_R4+3}], s{sT1} offen")
                adv(sT1)
            a(f"s_branch {le}")
            a.label(la)
            a(f"s_min_u32 s{sT0}, s{sD0}, 4")
            a(f"s_lshl_b32 s{sT0}, s{sT0}, 8")
            a(f"s_sub_u32 s{sT1}, s{sL}, 2")
            a(f"s_lshl_b32 s{sT1}, s{sT1}, 7")
            a(f"s_add_u32 s{sT0}, s{sT0}, s{sT1}")
            a(f"v_mul_u32_u24 v2, 1280, v1")
            a(f"v_add_u32 v2, s{sK2}, v2")
            for i in range(5):
                a(f"v_subrev_u32 v3, {640*1280}, v2")
                a(f"v_min_u32 v3, v3, v2")
                a(f"buffer_load_dword v254, v3, s[{S_R4}:{S_R4+3}], s{sT0} offen")
                a(f"v_add_u32 v2, {64*1280}, v2")
            a.label(le)
        a("s_barrier")
        a("s_barrier")
        if 'gprof' in self.opts: self.stamp(5)
        a.label("LL_reduce")
        LA = [112 + 4*i for i in range(16)]
        LB = [176 + 4*i for i in range(16)]
        vLA, vLB, vDA, vDA2, vDB, vDB2 = 16, 17, 18, 19, 20, 21
        sCR = sM + 1
        vPR = 23
        a(f"s_mov_b32 s{sT7}, 0")
        a(f"s_and_b32 s{sCR}, s{sC}, 3")
        a(f"s_mul_i32 s{sCR}, s{sCR}, {4*7168}")
        a("s_barrier")
        if 'bprof' in self.opts: a(f"s_mov_b32 s{sT6}, 0"); self.bstamp(26)
        a.label("LL_probe")
        a(f"buffer_load_dword v72, v{vPR}, {ws}, 0 offen sc1")
        a(f"s_add_u32 s{sT7}, s{sT7}, 1")
        a(f"s_cmp_ge_u32 s{sT7}, 0x40000")
        a("s_cbranch_scc1 LL_sum")
        a("s_waitcnt vmcnt(0)")
        a(f"v_xor_b32 v72, s{sTAG}, v72")
        a(f"v_and_b32 v72, 0xfff, v72")
        a(f"v_cmp_ne_u32 vcc, 0, v72")
        a(f"s_cmp_lg_u64 vcc, 0")
        a("s_cbranch_scc1 LL_probe")
        self.stamp(6, True)
        self.bstamp(23)
        if 'bprof' in self.opts: a(f"s_add_u32 s{sT6}, s{sT6}, 1")
        a(f"s_mov_b32 s{sT0}, s{sCR}")
        a("v_mov_b32 v72, 0")
        a("v_mov_b32 v73, 0")
        AHEAD = GAHEAD
        def gl(cc):
            a(f"buffer_load_dwordx4 v[{LA[cc]}:{LA[cc]+3}], v{vLA}, {ws}, s{sT0} offen sc1")
            a(f"buffer_load_dwordx4 v[{LB[cc]}:{LB[cc]+3}], v{vLB}, {ws}, s{sT0} offen sc1")
            if cc < 15:
                a(f"s_add_u32 s{sT0}, s{sT0}, 7168")
                if cc % 4 == 3:
                    a(f"s_cmp_eq_u32 s{sT0}, {16*7168}")
                    a(f"s_cselect_b32 s{sT0}, 0, s{sT0}")
        for cc in range(AHEAD): gl(cc)
        for cc in range(16):
            if cc + AHEAD < 16: gl(cc + AHEAD)
            a(f"s_waitcnt vmcnt({2*min(AHEAD, 15-cc)})")
            for i in (range(4) if 'nochk' not in self.opts else []):
                a(f"v_xor_b32 v{64+i}, s{sTAG}, v{LA[cc]+i}")
                a(f"v_xor_b32 v{68+i}, s{sTAG}, v{LB[cc]+i}")
            for i in (range(4) if 'nochk' not in self.opts else []):
                a(f"v_or3_b32 v{72 + (i >> 1)}, v{72 + (i >> 1)}, v{64+2*i}, v{65+2*i}")
            if cc:
                for Ls in (LA, LB):
                    for h in range(2):
                        d = Ls[0] + 2*h; s_ = Ls[cc] + 2*h
                        a(f"v_pk_add_f32 v[{d}:{d+1}], v[{d}:{d+1}], v[{s_}:{s_+1}]")
        a(f"v_and_b32 v72, 0xfff, v72")
        a(f"v_and_or_b32 v72, v73, v24, v72")
        a(f"v_cmp_ne_u32 vcc, 0, v72")
        a(f"s_cmp_lg_u64 vcc, 0")
        a("s_cbranch_scc1 LL_probe")
        a.label("LL_sum")
        if 'bprof' in self.opts:
            a(f"v_writelane_b32 v255, s{sT6}, 40")
            a(f"v_writelane_b32 v255, s{sT7}, 41")
        for Ls in (LA, LB):
            a(f"v_cvt_pk_bf16_f32 v{Ls[1]}, v{Ls[0]}, v{Ls[0]+1}")
            a(f"v_cvt_pk_bf16_f32 v{Ls[1]+1}, v{Ls[0]+2}, v{Ls[0]+3}")
        a(f"ds_write_b64 v{vDA}, v[{LA[1]}:{LA[1]+1}]")
        a(f"ds_write_b64 v{vDA2}, v[{LA[1]}:{LA[1]+1}]")
        a(f"ds_write_b64 v{vDB}, v[{LB[1]}:{LB[1]+1}]")
        a(f"ds_write_b64 v{vDB2}, v[{LB[1]}:{LB[1]+1}]")
        a("s_waitcnt lgkmcnt(0)")
        self.stamp(7, True)
        self.bstamp(24)
        a("s_barrier")
        self.bstamp(25)
        self.bflush()
        self.stamp_flush(112, 0)
        a(f"s_cmp_lt_u32 s{sL}, 2")
        a("s_cbranch_scc1 L_end")
        if not pre:
            piece(0, 20)
            a("s_waitcnt vmcnt(0)")
        a("s_barrier")
        a(f"s_cmp_eq_u32 s{sR2}, 15")
        a("s_cbranch_scc1 L_end")
        out[:] = []
        if 'nop34' in self.opts: a(f"s_mov_b32 s{S_R4+2}, 0")
        la = a.newlabel("Ly_a")
        a(f"s_cmp_ge_u32 s{sR2}, 10")
        a(f"s_cbranch_scc1 {la}")
        a("s_barrier")
        piece(20, 40, 'B')
        a("s_barrier")
        wait_for('u23'); a("s_barrier")
        wait_for('u31'); a("s_barrier")
        wait_for('u39'); a("s_barrier")
        a("s_endpgm")
        a.label(la)
        out[:] = []
        piece(20, 40, 'A')
        wait_for('u29'); a("s_barrier")
        wait_for('u39'); a("s_barrier")
        a("s_endpgm")

    def reduce_addrs(self, part):
        a = self.a
        vLA, vLB, vDA, vDA2, vDB, vDB2 = 16, 17, 18, 19, 20, 21
        vt = 22
        if part == 0:
            a(f"v_subrev_u32 v{vt}, 256, v0")
            a(f"s_mul_i32 s{sT2}, s{sG}, {16*7168}")
            a(f"s_add_u32 s{sT2}, s{sT2}, {WS_KVP}")
            a(f"v_lshl_add_u32 v{vLA}, v{vt}, 4, s{sT2}")
            a(f"v_add_u32 v{vLB}, 4096, v{vLA}")
            a(f"v_cmp_lt_u32 vcc, 163, v{vt}")
            a(f"v_mov_b32 v2, {OOB}")
            a(f"v_cndmask_b32 v{vLB}, v{vLB}, v2, vcc")
            a(f"v_mov_b32 v24, 0xfff")
            a(f"v_mov_b32 v2, 0")
            a(f"v_cndmask_b32 v24, v24, v2, vcc")
            a(f"s_and_b32 s{sT3}, s{sC}, 3")
            a(f"s_lshl_b32 s{sT3}, s{sT3}, 2")
            a(f"v_add_u32 v23, s{sT3}, v1")
            a(f"v_and_b32 v23, 15, v23")
            a(f"v_mul_u32_u24 v23, 7168, v23")
            a(f"s_lshr_b32 s{sT3}, s{sL}, 1")
            a(f"s_mul_i32 s{sT3}, s{sT3}, 3360")
            a(f"s_add_u32 s{sT2}, s{sT2}, s{sT3}")
            a(f"s_and_b32 s{sT3}, s{sL}, 1")
            a(f"s_lshl_b32 s{sT3}, s{sT3}, 8")
            a(f"s_add_u32 s{sT2}, s{sT2}, s{sT3}")
            a(f"v_add_u32 v23, s{sT2}, v23")
            a(f"v_add_u32 v23, {168*16}, v23")
        def lds_dst(qoff, vd, vd2, t0):
            q, e_, fq, dd, x, y = t0, t0+1, t0+2, t0+3, t0+4, t0+5
            a(f"v_add_u32 v{q}, {qoff}, v{vt}")
            a(f"v_cmp_lt_u32 vcc, 209, v{q}")
            a(f"v_mov_b32 v{x}, 0")
            a(f"v_mov_b32 v{y}, 210")
            a(f"v_cndmask_b32 v{e_}, v{x}, v{y}, vcc")
            a(f"v_sub_u32 v{q}, v{q}, v{e_}")
            a(f"v_mov_b32 v{y}, {32*112}")
            a(f"v_cndmask_b32 v{e_}, v{x}, v{y}, vcc")
            a(f"v_mul_u32_u24 v{fq}, 3121, v{q}")
            a(f"v_lshrrev_b32 v{fq}, 16, v{fq}")
            a(f"v_mul_u32_u24 v{x}, 21, v{fq}")
            a(f"v_sub_u32 v{dd}, v{q}, v{x}")
            a(f"v_lshl_add_u32 v{e_}, v{fq}, 3, v{e_}")
            a(f"v_add_u32 v{x}, 8, v{e_}")
            a(f"v_cmp_lt_u32 vcc, 4, v{fq}")
            a(f"v_cndmask_b32 v{e_}, v{e_}, v{x}, vcc")
            a(f"v_subrev_u32 v{x}, 10, v{dd}")
            a(f"v_cmp_lt_u32 vcc, 9, v{dd}")
            a(f"v_cndmask_b32 v{x}, v{dd}, v{x}, vcc")
            a(f"v_mov_b32 v{y}, 0")
            a(f"v_mov_b32 v{q}, 4")
            a(f"v_cndmask_b32 v{y}, v{y}, v{q}, vcc")
            a(f"v_lshrrev_b32 v{q}, 2, v{x}")
            a(f"v_lshl_add_u32 v{y}, v{q}, 3, v{y}")
            a(f"v_and_b32 v{x}, 3, v{x}")
            a(f"v_add_u32 v{y}, v{y}, v{x}")
            a(f"v_mul_u32_u24 v{y}, 112, v{y}")
            a(f"v_add_u32 v{vd}, v{y}, v{e_}")
            a(f"v_subrev_u32 v{x}, {4*112}, v{vd}")
            a(f"v_cmp_eq_u32 vcc, 20, v{dd}")
            a(f"v_cndmask_b32 v{vd2}, v{vd}, v{x}, vcc")
        assert L_KVI == 0
        if part == 0:
            lds_dst(0, vDA, vDA2, 64)
            return
        lds_dst(256, vDB, vDB2, 64)
        a(f"v_mov_b32 v2, {L_DUM}")
        a(f"v_cmp_lt_u32 vcc, 163, v{vt}")
        a(f"v_cndmask_b32 v{vDB}, v{vDB}, v2, vcc")
        a(f"v_cndmask_b32 v{vDB2}, v{vDB2}, v2, vcc")
        a(f"v_mov_b32 v64, 0")
        a(f"v_mov_b32 v65, 0")
        a(f"v_mul_u32_u24 v66, 112, v1")
        a(f"ds_write_b64 v66, v[64:65] offset:{L_KVI+40}")
        a(f"ds_write_b64 v66, v[64:65] offset:{L_KVI+88}")
        a("s_waitcnt lgkmcnt(0)")

    def p2_loader_setup(self):
        a = self.a
        SW_ = S_R4
        la = a.newlabel("Lp2ls_a"); le = a.newlabel("Lp2ls_e")
        a(f"s_cmp_ge_u32 s{sR2}, 10")
        a(f"s_cbranch_scc1 {la}")
        a(f"s_cmp_eq_u32 s{sL}, 3")
        a(f"s_cselect_b32 s{SW_}, s{P_CIM}, s{P_CRE}")
        a(f"s_cselect_b32 s{SW_+1}, s{P_CIM+1}, s{P_CRE+1}")
        a(f"v_lshrrev_b32 v110, 3, v1")
        a(f"v_mul_u32_u24 v110, 1280, v110")
        a(f"s_mul_i32 s{sT0}, s{sD0}, {64*1280}")
        for vv in range(2):
            for i in range(4):
                a(f"v_add3_u32 v{100+4*vv+i}, v110, v{32 + (i & 1)}, s{sT0}")
                if i or vv: a(f"v_add_u32 v{100+4*vv+i}, {(32*vv + 8*i)*1280 - i*1024}, v{100+4*vv+i}")
        a(f"v_mov_b32 v108, v100")
        a(f"v_mov_b32 v109, v100")
        a(f"s_lshl_b32 s{sROT}, s{sROT2}, 7")
        a(f"s_sub_u32 s{sL2X}, s{sL}, 2")
        a(f"s_lshl_b32 s{sL2X}, s{sL2X}, 13")
        a(f"s_branch {le}")
        a.label(la)
        a(f"s_mov_b32 s{SW_}, s{P_WO}")
        a(f"s_mov_b32 s{SW_+1}, s{P_WO+1}")
        a(f"v_lshrrev_b32 v110, 4, v1")
        a(f"v_bfe_u32 v111, v1, 2, 2")
        a(f"v_xor_b32 v111, v111, v110")
        a(f"v_lshlrev_b32 v111, 6, v111")
        a(f"v_and_b32 v2, 3, v1")
        a(f"v_lshl_add_u32 v111, v2, 4, v111")
        a(f"s_min_u32 s{sT0}, s{sD0}, 4")
        a(f"s_lshl_b32 s{sT0}, s{sT0}, 8")
        a(f"v_add_u32 v111, s{sT0}, v111")
        a(f"s_sub_u32 s{sT0}, s{sL}, 2")
        a(f"s_mul_i32 s{sT0}, s{sT0}, 10")
        a(f"v_add_u32 v3, s{sT0}, v110")
        for vv in range(2):
            for st in range(4):
                base = 8*(st & 1) + 4*vv
                dst = 100 + 5*vv + st
                if base == 8:
                    a(f"v_add_u32 v2, 10, v3")
                    a(f"v_cmp_lt_u32 vcc, 1, v110")
                    a(f"v_cndmask_b32 v2, v3, v2, vcc")
                    a(f"v_add_u32 v2, {40*(st >> 1) + base}, v2")
                else:
                    a(f"v_add_u32 v2, {40*(st >> 1) + base + (10 if base > 8 else 0)}, v3")
                a(f"v_mul_u32_u24 v2, 1280, v2")
                a(f"v_add_u32 v{dst}, v2, v111")
                if vv: a(f"v_subrev_u32 v{dst}, 1024, v{dst}")
            dst = 100 + 5*vv + 4
            a(f"v_add_u32 v2, {40*vv + 26}, v3")
            a(f"v_mul_u32_u24 v2, 1280, v2")
            a(f"v_add_u32 v{dst}, v2, v111")
            if vv: a(f"v_subrev_u32 v{dst}, 1024, v{dst}")
        a(f"s_mul_i32 s{sROT}, s{sROT2}, {80*1280}")
        a(f"s_sub_u32 s{sL2X}, s{sL}, 2")
        a(f"s_lshl_b32 s{sL2X}, s{sL2X}, 11")
        a.label(le)
        a(f"s_and_b32 s{SW_+1}, s{SW_+1}, 0xffff")
        a(f"s_mov_b32 s{SW_+2}, 819200")
        a(f"s_mov_b32 s{SW_+3}, 0x00020000")

    def side_jobs(self, vS):
        a = self.a
        lend = a.newlabel("Lside_end"); l3 = a.newlabel("Lside3")
        a(f"s_cmp_eq_u32 s{sW}, 2")
        a(f"s_cbranch_scc1 {l3}")
        a(f"s_cmp_lg_u32 s{sW}, 1")
        a(f"s_cbranch_scc1 {lend}")
        lre, lim, ldt = 64, 65, 66
        a(f"v_lshlrev_b32 v{lre}, 16, v{vS+1}")
        a(f"v_lshlrev_b32 v{lim}, 16, v{vS+2}")
        a(f"v_lshlrev_b32 v{ldt}, 16, v{vS+3}")
        a(f"v_mul_f32 v{ldt}, s{sLOG2E}, v{ldt}")
        a(f"v_exp_f32 v{ldt}, v{ldt}")
        a(f"v_cvt_pk_bf16_f32 v{ldt}, v{ldt}, v{ldt}")
        a(f"v_lshlrev_b32 v{ldt}, 16, v{ldt}")
        a(f"v_mul_f32 v67, v{ldt}, v{lre}")
        a(f"v_mul_f32 v68, v{ldt}, v{lim}")
        a(f"v_mul_f32 v67, s{sLOG2E}, v67")
        a(f"v_exp_f32 v67, v67")
        a(f"v_mul_f32 v68, 0.15915494, v68")
        a(f"v_rndne_f32 v69, v68")
        a(f"v_sub_f32 v68, v68, v69")
        a(f"v_cos_f32 v69, v68")
        a(f"v_sin_f32 v70, v68")
        RE, IM = 72, 80
        a(f"v_mul_f32 v{RE}, v67, v69")
        a(f"v_mul_f32 v{IM+1}, v67, v70")
        a(f"v_mov_b32 v{IM}, v{RE}")
        a(f"v_sub_f32 v{RE+1}, 0, v{IM+1}")
        a(f"v_add_f32 v67, -1.0, v{RE}")
        a(f"v_mul_f32 v68, v{lre}, v{lre}")
        a(f"v_fmac_f32 v68, v{lim}, v{lim}")
        a(f"v_rcp_f32 v68, v68")
        a(f"v_mul_f32 v69, v67, v{lre}")
        a(f"v_fmac_f32 v69, v{IM+1}, v{lim}")
        a(f"v_mul_f32 v70, v{IM+1}, v{lre}")
        a(f"v_fma_f32 v70, -v67, v{lim}, v70")
        a(f"v_add_f32 v68, v68, v68")
        a(f"v_mul_f32 v{RE+2}, v69, v68")
        a(f"v_sub_f32 v{IM+2}, 0, v{RE+2}")
        a(f"v_mul_f32_e64 v{RE+3}, -v70, v68")
        a(f"v_mov_b32 v{IM+3}, v{RE+3}")
        x, y = RE, IM + 1
        for it in range(7):
            if it == 2: nx, ny = RE + 4, IM + 5
            elif it == 6: nx, ny = RE + 6, IM + 7
            else: nx, ny = (67, 68) if (x, y) != (67, 68) else (69, 70)
            a(f"v_mul_f32 v71, v{y}, v{y}")
            a(f"v_mul_f32 v{ny}, v{x}, v{y}")
            a(f"v_fma_f32 v{nx}, v{x}, v{x}, -v71")
            a(f"v_add_f32 v{ny}, v{ny}, v{ny}")
            x, y = nx, ny
        for o in (4, 6):
            a(f"v_mov_b32 v{IM+o}, v{RE+o}")
            a(f"v_sub_f32 v{RE+o+1}, 0, v{IM+o+1}")
        a(f"v_min_u32 v67, 39, v1")
        a(f"v_lshrrev_b32 v68, 3, v67")
        a(f"v_and_b32 v67, 7, v67")
        a(f"v_lshl_add_u32 v67, v68, 4, v67")
        a(f"v_lshlrev_b32 v67, 5, v67")
        a(f"ds_write_b128 v67, v[{RE}:{RE+3}] offset:{L_TAB}")
        a(f"ds_write_b128 v67, v[{RE+4}:{RE+7}] offset:{L_TAB+16}")
        a(f"ds_write_b128 v67, v[{IM}:{IM+3}] offset:{L_TAB+256}")
        a(f"ds_write_b128 v67, v[{IM+4}:{IM+7}] offset:{L_TAB+256+16}")
        a(f"s_branch {lend}")
        a.label(l3)
        for i in range(4): a(f"v_mov_b32 v{64+i}, 0")
        a(f"v_lshlrev_b32 v68, 4, v1")
        a(f"ds_write_b128 v68, v[64:67] offset:{L_WPH}")
        a(f"ds_write_b128 v68, v[64:67] offset:{L_WPH+1024}")
        a(f"v_min_u32 v68, {39*16}, v68")
        a(f"ds_write_b128 v68, v[64:67] offset:{L_WPH+2048}")
        a(f"v_min_u32 v64, 39, v1")
        a(f"v_add_u32 v65, 1, v64")
        a(f"v_cmp_lt_u32 vcc, 19, v64")
        a(f"v_cndmask_b32 v64, v64, v65, vcc")
        a(f"v_lshlrev_b32 v64, 6, v64")
        a(f"v_add_u32 v64, {L_WPH}, v64")
        for i, (o0, o1) in enumerate([(0, 1), (4, 5), (8, 2), (3, 6), (7, 10)]):
            a(f"ds_write2_b32 v64, v{vS+4+2*i}, v{vS+5+2*i} offset0:{o0} offset1:{o1}")
        a.label(lend)
        a("s_waitcnt lgkmcnt(0)")

    def build(self):
        a = self.a
        a.kernel_begin(KNAME, 256, 512, LDS_TOTAL)
        a.launch = [f"; @launch grid=(256,1,1) block=(512,1,1) lds={LDS_TOTAL}"] if 'single' in self.opts else a.launch
        self.prologue()
        self.loader()
        a.label("L_compute")
        self.compute()
        a.label("L_end")
        a("s_endpgm")
        a.kernel_end(KNAME, 256)
        return a

if __name__ == "__main__":
    for o in sys.argv[2:]:
        if '=' in o:
            kk, vv = o.split('='); globals()[kk] = int(vv)
    k = K(prof='prof' in sys.argv, opts=sys.argv[2:])
    a = k.build()
    hdr = "".join(open("concat_heads__linear_kernel_hedgehog__ssm_conv_s5__prompt.s.ref").read().splitlines(True)[:17]) if 'final' in sys.argv else ""
    open(sys.argv[1], "w").write(a.text(hdr))
```

```python
import sys
from asm2 import Asm

KNAME = "concat_heads__linear_kernel_hedgehog__ssm_conv_s5__prompt_kernel"
WS_FLAG_W, WS_FLAG_AG, WS_FLAG_KV, WS_FLAG_H, WS_FLAG_O = 0x1000, 0x2000, 0x3000, 0x4000, 0x5000
WS_PROF = 0x10000
WS_WP, WS_AGG, WS_KVP, WS_H, WS_O = 0x100000, 0x400000, 0x500000, 0x800000, 0xE00000
WS_BYTES = 0x1100000
OOB = 0x40000000
LDS_TOTAL = 163840
RING = 32768
L_STG = 0
L_TAB = 16384
L_WPH = L_TAB + 2560
L_SEG = L_WPH + 2688
L_KVI = 0
L_DUM = L_SEG + 6400
assert L_DUM + 64 <= RING
L_IMG = RING + 81920
L_HT = RING + 81920 + 33920
L_HT = RING + 81920
IMGP = 264
P_AX, P_WQKV, P_WPHI, P_WO, P_BX, P_LRE, P_LIM, P_BRE, P_BIM, P_CRE, P_CIM, P_LDT, P_DSK, P_OUT, P_DBG, P_WS = [4 + 2*i for i in range(16)]
S_WS, S_R1, S_R2, S_R3, S_R4 = 36, 40, 44, 48, 52
sC, sG, sW, sROT, sTAG, sL = 56, 57, 58, 59, 60, 61
sT0, sT1, sT2, sT3, sT4, sT5, sT6, sT7 = 62, 63, 64, 65, 66, 67, 68, 69
sKS, sKSW, sLX, sLW, sIT, sC2 = 70, 71, 72, 73, 74, 75
sLOG2E = 76
sM = 78
sM2, sR2, sD0, sROT2 = 80, 81, 82, 83
sPT = 84
sL2X = 100
KMUL = 0x9e3779b1
WFLAG_IT = 0
NLOCK = 0
SPEC = 2
GAHEAD = 6
FLIPBIT = 0
WGATE = 7
NTS = 0
DPP = "row_ror:8 row_mask:0xf bank_mask:0xf"

class K:
    def __init__(self, prof=False, opts=()):
        self.a = Asm()
        self.prof = prof
        self.opts = opts
        self.ost = 'nt' if 'ont' in opts else ('sc1' if 'osc1' in opts else '')
        self.ws = f"s[{S_WS}:{S_WS+3}]"

    def tag_from(self, v):
        a = self.a
        a(f"v_readfirstlane_b32 s{sTAG}, v{v}")
        a(f"s_add_u32 s{sTAG}, s{sTAG}, 1")
        a(f"s_mul_i32 s{sTAG}, s{sTAG}, {KMUL:#x}")

    def stamp(self, idx, late=False):
        if late and 'sprof' in self.opts: return
        if self.prof:
            self.a(f"s_memrealtime s[{sPT+2*idx}:{sPT+2*idx+1}]")

    def stamp_flush(self, vtmp, half=0):
        if not self.prof: return
        a = self.a
        a("s_waitcnt lgkmcnt(0)")
        a(f"s_lshl_b32 s{sT0}, s2, 3")
        a(f"s_add_u32 s{sT0}, s{sT0}, s{sW}")
        a(f"s_lshl_b32 s{sT0}, s{sT0}, 5")
        a(f"s_add_u32 s{sT0}, s{sT0}, {WS_PROF + 0x10000*half}")
        for i in range(8):
            a(f"v_mov_b32 v{vtmp+i}, s{sPT+2*i}")
        a(f"v_mov_b32 v{vtmp+8}, s{sT0}")
        a("s_mov_b64 exec, 1")
        a(f"buffer_store_dwordx4 v[{vtmp}:{vtmp+3}], v{vtmp+8}, {self.ws}, 0 offen")
        a(f"buffer_store_dwordx4 v[{vtmp+4}:{vtmp+7}], v{vtmp+8}, {self.ws}, 0 offen offset:16")
        a("s_mov_b64 exec, -1")
        a("s_waitcnt vmcnt(0)")

    def bstamp(self, idx):
        if 'bprof' not in self.opts: return
        a = self.a
        a(f"s_memrealtime s[{sPT}:{sPT+1}]")
        a("s_waitcnt lgkmcnt(0)")
        a(f"v_writelane_b32 v255, s{sPT}, {idx}")

    def bflush(self):
        if 'bprof' not in self.opts: return
        a = self.a
        a(f"s_lshl_b32 s{sT0}, s2, 3")
        a(f"s_add_u32 s{sT0}, s{sT0}, s{sW}")
        a(f"s_lshl_b32 s{sT0}, s{sT0}, 8")
        a(f"s_add_u32 s{sT0}, s{sT0}, {WS_PROF + 0x40000}")
        a(f"v_lshl_add_u32 v254, v1, 2, s{sT0}")
        a(f"buffer_store_dword v255, v254, {self.ws}, 0 offen")
        a("s_waitcnt vmcnt(0)")

    def itstamp(self):
        if not self.prof: return
        a = self.a
        a(f"s_memrealtime s[{sM}:{sM+1}]")
        a(f"s_lshl_b32 m0, s{sIT}, 1")
        a("s_waitcnt lgkmcnt(0)")
        a(f"s_movreld_b32 s{sPT+6}, s{sM}")

    def flag_store(self, soff, vt):
        a = self.a
        a(f"v_mov_b32 v{vt}, 0")
        a(f"v_mov_b32 v{vt+1}, s{sTAG}")
        a("s_mov_b64 exec, 1")
        a(f"buffer_store_dword v{vt+1}, v{vt}, {self.ws}, s{soff} offen sc1")
        a("s_mov_b64 exec, -1")

    def flag_addr(self, sd, base, srow, scol, colmul, sidx):
        a = self.a
        a(f"s_mul_i32 s{sd}, s{scol}, {colmul}")
        a(f"s_add_u32 s{sd}, s{sd}, s{sidx}")
        a(f"s_lshl_b32 s{sd}, s{sd}, 2")
        a(f"s_lshl_b32 s{sT7}, s{srow}, 8")
        a(f"s_add_u32 s{sd}, s{sd}, s{sT7}")
        a(f"s_add_u32 s{sd}, s{sd}, {base}")

    def poll_issue(self, vaddr, vdst):
        self.a(f"buffer_load_dword v{vdst}, v{vaddr}, {self.ws}, 0 offen sc1")

    def poll_wait(self, vaddr, vdst, smask=None):
        a = self.a
        l0 = a.newlabel("Lpoll"); l1 = a.newlabel("Lpollok")
        a(f"s_mov_b32 s{sT7}, 0")
        a.label(l0)
        a("s_waitcnt vmcnt(0)")
        a(f"v_cmp_eq_u32 vcc, s{sTAG}, v{vdst}")
        if smask is None:
            a(f"s_cmp_eq_u64 vcc, -1")
        else:
            a(f"s_and_b32 s{sT6}, vcc_lo, s{smask}")
            a(f"s_cmp_eq_u32 s{sT6}, s{smask}")
        a(f"s_cbranch_scc1 {l1}")
        a("s_sleep 1")
        self.poll_issue(vaddr, vdst)
        a(f"s_add_u32 s{sT7}, s{sT7}, 1")
        a(f"s_cmp_lt_u32 s{sT7}, 0x40000")
        a(f"s_cbranch_scc1 {l0}")
        a("s_waitcnt vmcnt(0)")
        a.label(l1)

    def poll_addr(self, v, base, srow, lanemask=63, sextra=None):
        a = self.a
        a(f"s_lshl_b32 s{sT0}, s{srow}, 8")
        a(f"s_add_u32 s{sT0}, s{sT0}, {base}")
        if sextra is not None:
            a(f"s_add_u32 s{sT0}, s{sT0}, s{sextra}")
        a(f"v_and_b32 v{v}, {lanemask}, v1")
        a(f"v_lshl_add_u32 v{v}, v{v}, 2, s{sT0}")

    def prologue(self):
        a = self.a
        a("s_cmp_ge_u32 s2, 256")
        a("s_cbranch_scc1 L_end")
        a("s_load_dwordx16 s[4:19], s[0:1], 0")
        a("s_load_dwordx16 s[20:35], s[0:1], 64")
        a("v_lshrrev_b32 v2, 6, v0")
        a("v_and_b32 v1, 63, v0")
        a(f"v_readfirstlane_b32 s{sW}, v2")
        a(f"s_bfe_u32 s{sT0}, s2, 0x20001")
        a(f"s_lshl_b32 s{sT0}, s{sT0}, 2")
        a(f"s_bfe_u32 s{sT1}, s2, 0x20003")
        a(f"s_add_u32 s{sC}, s{sT0}, s{sT1}")
        a(f"s_and_b32 s{sT0}, s2, 1")
        a(f"s_lshl_b32 s{sT0}, s{sT0}, 3")
        a(f"s_lshr_b32 s{sT2}, s2, 5")
        a(f"s_add_u32 s{sG}, s{sT0}, s{sT2}")
        a(f"s_mov_b32 s{sLOG2E}, 0x3fb8aa3b")
        a(f"s_mov_b32 s{sLOG2E+1}, 0x3fb8aa3b")
        a(f"s_cmp_lt_u32 s{sW}, 4")
        a("s_cbranch_scc1 L_compute")

    def p2_role(self):
        a = self.a
        a(f"s_and_b32 s{sC2}, s2, 7")
        a(f"s_lshl_b32 s{sC2}, s{sC2}, 1")
        a(f"s_lshr_b32 s{sT0}, s2, 7")
        a(f"s_add_u32 s{sC2}, s{sC2}, s{sT0}")
        a(f"s_bfe_u32 s{sR2}, s2, 0x40003")
        a(f"s_sub_u32 s{sT0}, s{sR2}, 10")
        a(f"s_mul_i32 s{sT1}, s{sT0}, 3")
        a(f"s_and_b32 s{sT1}, s{sT1}, 7")
        a(f"s_cmp_lt_u32 s{sR2}, 10")
        a(f"s_cselect_b32 s{sD0}, s{sR2}, s{sT0}")
        a(f"s_cselect_b32 s{sROT2}, s{sR2}, s{sT1}")
        a(f"s_cselect_b32 s{sT0}, 5, 4")
        a(f"s_lshl_b32 s{sT1}, s{sT0}, 1")
        a(f"s_bitcmp1_b32 s2, {FLIPBIT}")
        a(f"s_cselect_b32 s{sT0}, s{sT0}, 0")
        a(f"s_add_u32 s{sROT2}, s{sROT2}, s{sT0}")
        a(f"s_cmp_ge_u32 s{sROT2}, s{sT1}")
        a(f"s_cselect_b32 s{sT1}, s{sT1}, 0")
        a(f"s_sub_u32 s{sROT2}, s{sROT2}, s{sT1}")

    def softmax2(self, D, P, E, T, hook=None):
        a = self.a
        L = f"s[{sLOG2E}:{sLOG2E+1}]"
        def both(fn):
            for e in range(2): fn(e)
        def mx(e):
            d, t = D[e], T[e]
            a(f"v_max3_f32 v{t}, v{d}, v{d+1}, v{d+2}")
            a(f"v_max3_f32 v{t+1}, -v{d}, -v{d+1}, -v{d+2}")
            for i in (3, 5, 7):
                a(f"v_max3_f32 v{t}, v{t}, v{d+i}, v{d+i+1}")
                a(f"v_max3_f32 v{t+1}, v{t+1}, -v{d+i}, -v{d+i+1}")
            a(f"v_max_f32 v{t}, v{t}, v{d+9}")
            a(f"v_max_f32_e64 v{t+1}, v{t+1}, -v{d+9}")
        both(mx)
        both(lambda e: a(f"v_permlane32_swap_b32 v{T[e]}, v{T[e]+1}"))
        both(lambda e: a(f"v_max_f32 v{T[e]}, v{T[e]}, v{T[e]+1}"))
        both(lambda e: a(f"v_mov_b32 v{T[e]+1}, v{T[e]}"))
        both(lambda e: a(f"v_permlane32_swap_b32 v{T[e]}, v{T[e]+1}"))
        both(lambda e: a(f"v_pk_mul_f32 v[{T[e]+2}:{T[e]+3}], v[{T[e]}:{T[e]+1}], {L} neg_lo:[0,1] neg_hi:[0,1]"))
        for i in range(5):
            for e in range(2):
                d, t, x = D[e] + 2*i, T[e] + 2, E[e] + 2*i
                a(f"v_pk_fma_f32 v[{x}:{x+1}], v[{d}:{d+1}], {L}, v[{t}:{t+1}] op_sel:[0,0,0] op_sel_hi:[1,1,0]")
                a(f"v_pk_fma_f32 v[{x+10}:{x+11}], v[{d}:{d+1}], {L}, v[{t}:{t+1}] op_sel:[0,0,1] op_sel_hi:[1,1,1] neg_lo:[0,1,0] neg_hi:[0,1,0]")
        for i in range(20):
            for e in range(2):
                a(f"v_exp_f32 v{E[e]+i}, v{E[e]+i}")
        if hook: hook()
        for e in range(2):
            x, t = E[e], T[e]
            a(f"v_pk_add_f32 v[{t}:{t+1}], v[{x}:{x+1}], v[{x+2}:{x+3}]")
            a(f"v_pk_add_f32 v[{t+2}:{t+3}], v[{x+10}:{x+11}], v[{x+12}:{x+13}]")
        for i in (4, 6, 8):
            for e in range(2):
                x, t = E[e], T[e]
                a(f"v_pk_add_f32 v[{t}:{t+1}], v[{t}:{t+1}], v[{x+i}:{x+i+1}]")
                a(f"v_pk_add_f32 v[{t+2}:{t+3}], v[{t+2}:{t+3}], v[{x+10+i}:{x+11+i}]")
        for e in range(2):
            t = T[e]
            a(f"v_add_f32 v{t}, v{t}, v{t+1}")
            a(f"v_add_f32 v{t+1}, v{t+2}, v{t+3}")
        both(lambda e: a(f"v_permlane32_swap_b32 v{T[e]}, v{T[e]+1}"))
        both(lambda e: a(f"v_add_f32 v{T[e]}, v{T[e]}, v{T[e]+1}"))
        both(lambda e: a(f"v_rcp_f32 v{T[e]}, v{T[e]}"))
        both(lambda e: a(f"v_mov_b32 v{T[e]+1}, v{T[e]}"))
        both(lambda e: a(f"v_permlane32_swap_b32 v{T[e]}, v{T[e]+1}"))
        for i in range(5):
            for e in range(2):
                x, t = E[e] + 2*i, T[e]
                a(f"v_pk_mul_f32 v[{x}:{x+1}], v[{x}:{x+1}], v[{t}:{t+1}] op_sel:[0,0] op_sel_hi:[1,0]")
                a(f"v_pk_mul_f32 v[{x+10}:{x+11}], v[{x+10}:{x+11}], v[{t}:{t+1}] op_sel:[0,1] op_sel_hi:[1,1]")
        for i in range(10):
            for e in range(2):
                a(f"v_cvt_pk_bf16_f32 v{P[e]+i}, v{E[e]+2*i}, v{E[e]+2*i+1}")

    def compute(self):
        a = self.a
        ws = self.ws
        U = 16; ACC = 56; OPS = 120; SC = 200; TMP = 220
        vX0, vX1, vW0, vW1 = 4, 5, 6, 7
        vPA, vPD = 8, 9
        vJ, vGm, vN, vHH = 10, 11, 12, 13
        self.stamp(0)
        SQ = S_R4
        rq = f"s[{SQ}:{SQ+3}]"
        a(f"v_and_b32 v{vJ}, 15, v1")
        a(f"v_lshrrev_b32 v{vGm}, 4, v1")
        a(f"v_min_u32 v2, 14, v{vJ}")
        a(f"v_mul_u32_u24 v3, 52, v2")
        a(f"v_lshrrev_b32 v3, 8, v3")
        a(f"v_mul_u32_u24 v3, {1280 - 80}, v3")
        a(f"v_lshl_add_u32 v2, v2, 4, v3")
        a(f"v_mul_u32_u24 v3, 3840, v{vGm}")
        a(f"v_add_u32 v2, v2, v3")
        a(f"v_add_u32 v3, {4*3840 - 1024}, v2")
        a(f"s_mul_i32 s{sT0}, s{sC}, {40*3840}")
        a(f"s_mul_i32 s{sT1}, s{sG}, 80")
        a(f"s_add_u32 s{sT0}, s{sT0}, s{sT1}")
        a(f"s_mul_i32 s{sT1}, s{sW}, {8*3840}")
        a(f"s_add_u32 s{sT1}, s{sT0}, s{sT1}")
        a(f"s_add_u32 s{sT0}, s{sT0}, {32*3840}")
        a(f"s_cmp_lg_u32 s{sW}, 0")
        a(f"s_cselect_b32 s{sT0}, {OOB}, s{sT0}")
        a(f"s_lshl_b32 s{sT2}, s{sW}, 11")
        a(f"s_mov_b32 m0, s{sT2}")
        a("s_waitcnt lgkmcnt(0)")
        a.srd(SQ, P_WQKV, 2457600)
        a(f"buffer_load_dwordx4 v2, {rq}, s{sT1} offen lds")
        a(f"buffer_load_dwordx4 v3, {rq}, s{sT1} offen offset:1024 lds")
        a(f"s_add_u32 m0, s{sT2}, 8192")
        a(f"buffer_load_dwordx4 v2, {rq}, s{sT0} offen lds")
        a(f"buffer_load_dwordx4 v3, {rq}, s{sT0} offen offset:1024 lds")
        vS = 130
        a.srd(S_WS, P_WS, WS_BYTES)
        a("v_mov_b32 v2, 0")
        a(f"buffer_load_dword v15, v2, {ws}, 0 offen sc1")
        a(f"v_min_u32 v3, 39, v1")
        a(f"s_mul_i32 s{sT1}, s{sG}, 40")
        a(f"v_add_lshl_u32 v2, v3, s{sT1}, 1")
        a(f"s_cmp_eq_u32 s{sW}, 1")
        a(f"s_cselect_b32 s{sT0}, 0, {OOB}")
        a.srd(S_R1, P_LRE, 1280); a.srd(S_R2, P_LIM, 1280); a.srd(S_R3, P_LDT, 1280)
        a(f"buffer_load_ushort v{vS+1}, v2, s[{S_R1}:{S_R1+3}], s{sT0} offen")
        a(f"buffer_load_ushort v{vS+2}, v2, s[{S_R2}:{S_R2+3}], s{sT0} offen")
        a(f"buffer_load_ushort v{vS+3}, v2, s[{S_R3}:{S_R3+3}], s{sT0} offen")
        a(f"v_mul_u32_u24 v2, 40, v3")
        a(f"s_mul_i32 s{sT1}, s{sG}, 1600")
        a(f"s_cmp_eq_u32 s{sW}, 2")
        a(f"s_cselect_b32 s{sT0}, s{sT1}, {OOB}")
        a.srd(SQ, P_WPHI, 25600)
        for i in range(5):
            a(f"buffer_load_dwordx2 v[{vS+4+2*i}:{vS+5+2*i}], v2, {rq}, s{sT0} offen offset:{8*i}")
        a(f"s_getpc_b64 s[{sM}:{sM+1}]")
        a.label("L_pc")
        a(f"s_lshr_b32 s{sT0}, s2, 3")
        a(f"s_lshl_b32 s{sT0}, s{sT0}, 2")
        a(f"s_add_u32 s{sT0}, s{sT0}, s{sW}")
        a(f"s_lshl_b32 s{sT0}, s{sT0}, 8")
        a(f"v_and_b32 v2, 1, v1")
        a(f"v_lshl_add_u32 v2, v2, 7, s{sT0}")
        a(f"s_sub_u32 s{sM}, s{sM}, L_pc-{KNAME}")
        a(f"s_subb_u32 s{sM+1}, s{sM+1}, 0")
        a(f"v_min_u32 v2, L_end-{KNAME}, v2")
        a(f"global_load_dword v255, v2, s[{sM}:{sM+1}]")
        a(f"v_and_b32 v{vN}, 31, v1")
        a(f"v_lshrrev_b32 v{vHH}, 5, v1")
        t = 150
        a(f"v_and_b32 v{t}, 3, v1")
        a(f"v_lshl_add_u32 v{t}, v{vGm}, 2, v{t}")
        a(f"v_min_u32 v{t+1}, 14, v{t}")
        a(f"v_lshlrev_b32 v{t+1}, 3, v{t+1}")
        a(f"v_mov_b32 v{t+2}, 80")
        a(f"v_mov_b32 v{t+3}, 32")
        a(f"v_cmp_gt_u32 vcc, 10, v{t}")
        a(f"v_cndmask_b32 v{t+2}, v{t+2}, v{t+3}, vcc")
        a(f"v_mov_b32 v{t+3}, 72")
        a(f"v_cmp_eq_u32 vcc, 5, v{t}")
        a(f"v_cndmask_b32 v{t+2}, v{t+2}, v{t+3}, vcc")
        a(f"v_mov_b32 v{t+3}, 0")
        a(f"v_cmp_gt_u32 vcc, 5, v{t}")
        a(f"v_cndmask_b32 v{t+2}, v{t+2}, v{t+3}, vcc")
        a(f"v_add_u32 v{t+1}, v{t+1}, v{t+2}")
        a(f"v_bfe_u32 v{t+2}, v1, 2, 2")
        a(f"v_lshl_add_u32 v{t+1}, v{t+2}, 8, v{t+1}")
        vRL = t + 1
        a(f"v_add_u32 v{vRL}, s{sT2}, v{t+1}")
        a(f"s_add_u32 s{sT3}, s{sC}, s{sW}")
        a(f"s_and_b32 s{sT3}, s{sT3}, 1")
        a(f"v_mov_b32 v{t+2}, 512")
        a(f"v_mov_b32 v{t+3}, 448")
        a(f"v_cmp_lt_u32 vcc, 31, v1")
        a(f"v_cndmask_b32 v{t+2}, v{t+2}, v{t+3}, vcc")
        a(f"v_mul_lo_u32 v{t+2}, v{t+2}, s{sT3}")
        a(f"v_lshl_add_u32 v{t+2}, v{vN}, 4, v{t+2}")
        a(f"v_lshl_add_u32 v{t+2}, v{vHH}, 10, v{t+2}")
        a(f"v_mov_b32 v{t+3}, {OOB}")
        a(f"v_cmp_lt_u32 vcc, 59, v1")
        a(f"v_cndmask_b32 v{t+2}, v{t+2}, v{t+3}, vcc")
        vRS = t + 2
        a(f"s_mul_i32 s{sT2}, s{sG}, 153600")
        a(f"s_add_u32 s{sT2}, s{sT2}, {WS_WP}")
        a(f"s_mul_i32 s{sT4}, s{sC}, 5")
        a(f"s_add_u32 s{sT4}, s{sT4}, s{sW}")
        a(f"s_lshr_b32 s{sT4}, s{sT4}, 1")
        a(f"s_mul_i32 s{sT4}, s{sT4}, 3840")
        a(f"s_add_u32 s{sT4}, s{sT4}, s{sT2}")
        a(f"s_add_u32 s{sT5}, s{sT4}, 7680")
        a(f"s_cmp_lg_u32 s{sW}, 0")
        a(f"s_cselect_b32 s{sT5}, {OOB}, s{sT5}")
        R = 156
        a("s_waitcnt vmcnt(10)")
        for m in range(2):
            for e in range(2):
                r = R + 8*m + 4*e
                a(f"ds_read_b64_tr_b16 v[{r}:{r+1}], v{vRL} offset:{8192*m + 40*e}")
                a(f"ds_read_b64_tr_b16 v[{r+2}:{r+3}], v{vRL} offset:{8192*m + 40*e + 1024}")
        for m in range(2):
            for e in range(2):
                r = R + 8*m + 4*e
                a(f"s_waitcnt lgkmcnt({6 - 2*(2*m+e)})")
                a(f"buffer_store_dwordx4 v[{r}:{r+3}], v{vRS}, {ws}, s{sT4 if m == 0 else sT5} offen offset:{1920*e} sc1")
        if 'sprof' in self.opts: self.stamp(5)
        a(f"v_lshrrev_b32 v14, 1, v{vJ}")
        a(f"v_xor_b32 v14, v14, v{vGm}")
        a(f"v_lshlrev_b32 v14, 4, v14")
        a(f"v_lshl_add_u32 v14, v{vJ}, 7, v14")
        a(f"s_lshl_b32 s{sT0}, s{sW}, 12")
        a(f"v_add_u32 v{vX0}, s{sT0}, v14")
        a(f"v_add_u32 v{vW0}, 16384, v14")
        a(f"v_xor_b32 v{vX1}, 64, v{vX0}")
        a(f"v_xor_b32 v{vW1}, 64, v{vW0}")
        self.poll_addr(vPA, WS_FLAG_W, sG)
        self.flag_addr(sM2, WS_FLAG_W, sG, sC, 4, sW)
        self.p2_role()
        for i in range(40): a(f"v_mov_b32 v{U+i}, 0")
        a("s_waitcnt vmcnt(4)")
        self.tag_from(15)
        self.side_jobs(vS)
        for i in range(64): a(f"v_mov_b32 v{ACC+i}, 0")
        a("s_barrier")
        self.stamp(1)
        if 'clk' in self.opts: a(f"s_memtime s[{sPT+14}:{sPT+15}]")
        def b_reads(st, kx, kw):
            b = OPS + 28*st
            for tr in range(2):
                a(f"ds_read_b128 v[{b+4*tr}:{b+4*tr+3}], v{kx} offset:{RING + 2048*tr}")
            for tc in range(5):
                a(f"ds_read_b128 v[{b+8+4*tc}:{b+8+4*tc+3}], v{kw} offset:{RING + 2048*tc}")
        def b_mfma(st):
            b = OPS + 28*st
            for tc in range(5):
                for tr in range(2):
                    d = U + 8*tc + 4*tr
                    a(f"v_mfma_f32_16x16x32_bf16 v[{d}:{d+3}], v[{b+4*tr}:{b+4*tr+3}], v[{b+8+4*tc}:{b+8+4*tc+3}], v[{d}:{d+3}]")
        b_reads(0, vX0, vW0)
        a(f"s_mov_b32 s{sIT}, 0")
        def inter(ms, rs):
            per = -(-len(rs) // max(1, len(ms) - 1)) if rs else 0
            ri = 0
            for i, m in enumerate(ms):
                a(m)
                for _ in range(per):
                    if ri < len(rs): a(rs[ri]); ri += 1
            while ri < len(rs): a(rs[ri]); ri += 1
        def b_reads_l(st, kx, kw):
            b = OPS + 28*st
            return ([f"ds_read_b128 v[{b+4*tr}:{b+4*tr+3}], v{kx} offset:{RING + 2048*tr}" for tr in range(2)] +
                    [f"ds_read_b128 v[{b+8+4*tc}:{b+8+4*tc+3}], v{kw} offset:{RING + 2048*tc}" for tc in range(5)])
        def b_mfma_l(st):
            b = OPS + 28*st
            return [f"v_mfma_f32_16x16x32_bf16 v[{U+8*tc+4*tr}:{U+8*tc+4*tr+3}], v[{b+4*tr}:{b+4*tr+3}], v[{b+8+4*tc}:{b+8+4*tc+3}], v[{U+8*tc+4*tr}:{U+8*tc+4*tr+3}]"
                    for tc in range(5) for tr in range(2)]
        self.inter = inter
        a("s_waitcnt lgkmcnt(0)")
        a.label("LB_loop")
        inter(b_mfma_l(0)[:8], b_reads_l(1, vX1, vW1))
        a(f"v_add_u32 v{vX0}, 0x8000, v{vX0}")
        a(f"v_add_u32 v{vW0}, 0x8000, v{vW0}")
        a(b_mfma_l(0)[8])
        a(f"v_and_b32 v{vX0}, 0x1ffff, v{vX0}")
        a(f"v_and_b32 v{vW0}, 0x1ffff, v{vW0}")
        a(b_mfma_l(0)[9])
        a(f"v_xor_b32 v{vX1}, 64, v{vX0}")
        a(f"v_xor_b32 v{vW1}, 64, v{vW0}")
        a(f"s_cmp_lg_u32 s{sIT}, {WFLAG_IT}")
        a("s_cbranch_scc1 LB_nf")
        a("s_waitcnt vmcnt(0)")
        self.flag_store(sM2, 2)
        a.label("LB_nf")
        a(f"s_cmp_lg_u32 s{sW}, 0")
        a("s_cbranch_scc1 LB_np")
        a(f"s_cmp_lg_u32 s{sIT}, {WGATE-3}")
        a("s_cbranch_scc1 LB_n5")
        self.poll_issue(vPA, vPD)
        a.label("LB_n5")
        a(f"s_cmp_lg_u32 s{sIT}, {WGATE-1}")
        a("s_cbranch_scc1 LB_np")
        self.poll_wait(vPA, vPD)
        a.label("LB_np")
        a("s_waitcnt lgkmcnt(0)")
        for m in b_mfma_l(1)[:2]: a(m)
        a("s_barrier")
        inter(b_mfma_l(1)[2:], b_reads_l(0, vX0, vW0))
        a(f"s_add_u32 s{sIT}, s{sIT}, 1")
        a(f"s_cmp_lt_u32 s{sIT}, 10")
        a("s_waitcnt lgkmcnt(0)")
        a("s_cbranch_scc1 LB_loop")
        self.stamp(2)
        a(f"v_lshlrev_b32 v14, 5, v{vJ}")
        for tc in range(5):
            a(f"ds_read_b128 v[{SC+4*tc}:{SC+4*tc+3}], v14 offset:{L_TAB + 512*tc}")
        vXA = [4, 5, 6, 7]; vWA = 15
        a(f"v_bfe_u32 v14, v1, 1, 3")
        a(f"v_xor_b32 v14, v14, v{vHH}")
        a(f"v_lshlrev_b32 v14, 4, v14")
        a(f"v_lshl_add_u32 v14, v{vN}, 7, v14")
        a(f"s_lshl_b32 s{sT0}, s{sW}, 12")
        a(f"s_add_u32 s{sT0}, s{sT0}, 0x10000")
        a(f"v_add_u32 v{vXA[0]}, s{sT0}, v14")
        for k in range(1, 4):
            a(f"v_xor_b32 v{vXA[k]}, {32*k}, v{vXA[0]}")
        a(f"v_lshlrev_b32 v{vWA}, 4, v1")
        a(f"v_add_u32 v{vWA}, {0x10000 + 16384}, v{vWA}")
        vSEG = 14
        a(f"v_mul_u32_u24 v{vSEG}, 80, v{vJ}")
        a(f"v_lshl_add_u32 v{vSEG}, v{vGm}, 2, v{vSEG}")
        a(f"s_lshl_b32 s{sT0}, s{sW}, 4")
        a(f"s_add_u32 s{sT0}, s{sT0}, {L_SEG}")
        a(f"v_add_u32 v{vSEG}, s{sT0}, v{vSEG}")
        a("s_waitcnt lgkmcnt(0)")
        def a_reads(k):
            b = OPS + 20*k
            a(f"ds_read_b128 v[{b}:{b+3}], v{vXA[k]} offset:{RING}")
            for f in range(4):
                if 'halfread' in self.opts and f >= 1:
                    a(f"ds_read_b32 v{b+4+4*f}, v{vWA} offset:{RING + (4*k+f)*1024}")
                    continue
                a(f"ds_read_b128 v[{b+4+4*f}:{b+7+4*f}], v{vWA} offset:{RING + (4*k+f)*1024}")
        def a_mfma(k):
            b = OPS + 20*k
            if 'nomfma' in self.opts: return
            for f in range(4):
                d = ACC + 16*f
                a(f"v_mfma_f32_32x32x16_bf16 v[{d}:{d+15}], v[{b+4+4*f}:{b+7+4*f}], v[{b}:{b+3}], v[{d}:{d+15}]")
        A0, A1 = TMP, TMP + 5
        def ureg(tc, tt): return U + 8*tc + tt
        prev = [ureg(tc, 0) for tc in range(5)]
        for tt in range(1, 8):
            cur = A0 if tt % 2 else A1
            for tc in range(5):
                a(f"v_fma_f32 v{cur+tc}, v{SC+4*tc}, v{prev[tc]}, v{ureg(tc, tt)}")
            for tc in range(5):
                a(f"v_fmac_f32_dpp v{cur+tc}, v{prev[tc]}, v{SC+4*tc+1} {DPP}")
            prev = [cur + tc for tc in range(5)]
        for tc in range(5):
            a(f"ds_write_b32 v{vSEG}, v{prev[tc]} offset:{1280*tc}")
        a("s_waitcnt lgkmcnt(0)")
        a_reads(0)
        a_reads(1)
        self.stamp(3)
        if 'clk' in self.opts: a(f"s_memtime s[{sPT+10}:{sPT+11}]")
        a(f"s_mov_b32 s{sIT}, 0")
        def a_reads_l(k):
            b = OPS + 20*k
            return ([f"ds_read_b128 v[{b}:{b+3}], v{vXA[k]} offset:{RING}"] +
                    [f"ds_read_b128 v[{b+4+4*f}:{b+7+4*f}], v{vWA} offset:{RING + (4*k+f)*1024}" for f in range(4)])
        def a_mfma_l(k):
            b = OPS + 20*k
            return [f"v_mfma_f32_32x32x16_bf16 v[{ACC+16*f}:{ACC+16*f+15}], v[{b+4+4*f}:{b+7+4*f}], v[{b}:{b+3}], v[{ACC+16*f}:{ACC+16*f+15}]" for f in range(4)]
        a.label("LA_loop")
        a("s_waitcnt lgkmcnt(5)")
        inter(a_mfma_l(0), a_reads_l(2))
        a("s_waitcnt lgkmcnt(5)")
        inter(a_mfma_l(1), a_reads_l(3))
        a("s_waitcnt lgkmcnt(5)")
        m2 = a_mfma_l(2)
        a(m2[0])
        a(f"v_add_u32 v{vXA[0]}, 0x8000, v{vXA[0]}")
        a(f"v_add_u32 v{vWA}, 0x8000, v{vWA}")
        a(f"v_and_b32 v{vXA[0]}, 0x1ffff, v{vXA[0]}")
        a(f"v_and_b32 v{vWA}, 0x1ffff, v{vWA}")
        a(m2[1])
        for k in range(1, 4):
            a(f"v_xor_b32 v{vXA[k]}, {32*k}, v{vXA[0]}")
        a("s_waitcnt lgkmcnt(0)")
        a("s_barrier")
        r0 = a_reads_l(0)
        a(m2[2]); a(r0[0]); a(r0[1]); a(r0[2]); a(m2[3]); a(r0[3]); a(r0[4])
        inter(a_mfma_l(3), a_reads_l(1))
        a(f"s_add_u32 s{sIT}, s{sIT}, 1")
        a(f"s_cmp_lt_u32 s{sIT}, 10")
        a("s_cbranch_scc1 LA_loop")
        self.stamp(4)
        if 'clk' in self.opts: a(f"s_memtime s[{sPT+12}:{sPT+13}]")
        WF = 160
        PK = 224
        v1a, v3a, v4a = 4, 5, 6
        a(f"v_bfe_u32 v7, v1, 2, 2")
        a(f"v_and_b32 v8, 3, v1")
        a(f"v_lshlrev_b32 v8, 3, v8")
        a(f"v_bfe_u32 v9, v1, 4, 1")
        a(f"v_lshl_add_u32 v8, v9, 5, v8")
        a(f"v_add_u32 v8, {L_WPH}, v8")
        a(f"v_lshl_add_u32 v{v1a}, v{vHH}, 2, v7")
        a(f"v_lshl_add_u32 v{v1a}, v{v1a}, 6, v8")
        a(f"v_add_u32 v9, 16, v7")
        a(f"v_mov_b32 v2, 20")
        a(f"v_cmp_lt_u32 vcc, 31, v1")
        a(f"v_cndmask_b32 v{v3a}, v9, v2, vcc")
        a(f"v_cndmask_b32 v{v4a}, v2, v9, vcc")
        a(f"v_lshl_add_u32 v{v3a}, v{v3a}, 6, v8")
        a(f"v_lshl_add_u32 v{v4a}, v{v4a}, 6, v8")
        a("s_waitcnt lgkmcnt(0)")
        for e in range(2):
            w = WF + 16*e; o = 1344*e
            a(f"ds_read_b64_tr_b16 v[{w+8}:{w+9}], v{v4a} offset:{o}")
            a(f"ds_read_b64_tr_b16 v[{w+10}:{w+11}], v{v1a} offset:{o}")
            a(f"ds_read_b64_tr_b16 v[{w+12}:{w+13}], v{v1a} offset:{o+512}")
            a(f"ds_read_b64_tr_b16 v[{w}:{w+1}], v{v1a} offset:{o}")
            a(f"ds_read_b64_tr_b16 v[{w+2}:{w+3}], v{v1a} offset:{o+512}")
            a(f"ds_read_b64_tr_b16 v[{w+4}:{w+5}], v{v3a} offset:{o}")
            for z in (6, 7, 14, 15): a(f"v_mov_b32 v{w+z}, 0")
        vIP, vIV = 7, 8
        a(f"v_mul_u32_u24 v{vIP}, {IMGP}, v{vN}")
        a(f"s_mul_i32 s{sT0}, s{sW}, {32*IMGP}")
        a(f"s_add_u32 s{sT0}, s{sT0}, {L_IMG}")
        a(f"v_add_u32 v{vIP}, s{sT0}, v{vIP}")
        a(f"v_lshl_add_u32 v{vIV}, v{vHH}, 3, v{vIP}")
        a(f"v_mul_u32_u24 v2, 40, v{vHH}")
        a(f"v_add_u32 v{vIP}, v{vIP}, v2")
        order = [4, 5, 6, 7, 8, 9, 10, 11, 0, 1, 2, 3, 12, 13, 14, 15]
        for i in order[:8]:
            for e in range(2):
                s = ACC + 32*e + 2*i
                a(f"v_cvt_pk_bf16_f32 v{PK+16*e+i}, v{s}, v{s+1}")
        DK = [120, 136]; DQ = [ACC, ACC + 16]
        a("s_waitcnt lgkmcnt(0)")
        for e in range(2):
            w = WF + 16*e; p = PK + 16*e
            a(f"v_mfma_f32_32x32x16_bf16 v[{DK[e]}:{DK[e]+15}], v[{w+8}:{w+11}], v[{p+4}:{p+7}], 0")
        for e in range(2):
            w = WF + 16*e; p = PK + 16*e
            a(f"v_mfma_f32_32x32x16_bf16 v[{DK[e]}:{DK[e]+15}], v[{w+12}:{w+15}], v[{p+8}:{p+11}], v[{DK[e]}:{DK[e]+15}]")
        for i in order[8:]:
            for e in range(2):
                s = ACC + 32*e + 2*i
                a(f"v_cvt_pk_bf16_f32 v{PK+16*e+i}, v{s}, v{s+1}")
        a(f"v_mov_b32 v2, 0x3f80")
        a(f"v_mov_b32 v3, 0")
        for e in range(2):
            p = PK + 16*e
            a(f"v_cndmask_b32 v{p+14}, v{p+14}, v2, vcc")
            a(f"v_cndmask_b32 v{p+15}, v{p+15}, v3, vcc")
        for e in range(2):
            w = WF + 16*e; p = PK + 16*e
            a(f"v_mfma_f32_32x32x16_bf16 v[{DQ[e]}:{DQ[e]+15}], v[{w}:{w+3}], v[{p}:{p+3}], 0")
        for e in range(2):
            w = WF + 16*e; p = PK + 16*e
            a(f"v_mfma_f32_32x32x16_bf16 v[{DQ[e]}:{DQ[e]+15}], v[{w+4}:{w+7}], v[{p+4}:{p+7}], v[{DQ[e]}:{DQ[e]+15}]")
        for e in range(2):
            p = PK + 16*e
            for m in range(3):
                a(f"ds_write_b64 v{vIV}, v[{p+10+2*m}:{p+11+2*m}] offset:{160 + 48*e + 16*m}")
        E = [88, 152]; T = [108, 112]
        PKK = [PK, PK + 16]
        self.softmax2(DK, PKK, E, T)
        for e in range(2):
            for m in range(5):
                a(f"ds_write_b64 v{vIP}, v[{PKK[e]+2*m}:{PKK[e]+2*m+1}] offset:{80*e + 8*m}")
        a(f"v_and_b32 v2, 1, v{vGm}")
        a(f"v_lshlrev_b32 v2, 4, v2")
        a(f"v_bfe_u32 v3, v1, 2, 2")
        a(f"v_lshl_add_u32 v2, v3, 2, v2")
        a(f"v_lshl_add_u32 v2, v{vHH}, 1, v2")
        a(f"v_mul_u32_u24 v2, {IMGP}, v2")
        a(f"v_and_b32 v3, 3, v1")
        a(f"v_lshl_add_u32 v2, v3, 3, v2")
        a(f"s_lshr_b32 s{sT0}, s{sW}, 1")
        a(f"s_and_b32 s{sT1}, s{sW}, 1")
        a(f"s_mul_i32 s{sT2}, s{sT0}, 80")
        a(f"s_add_u32 s{sT2}, s{sT2}, {L_IMG}")
        vKA, vKB = 6, 7
        a(f"v_add_u32 v{vKA}, s{sT2}, v2")
        a(f"s_mul_i32 s{sT2}, s{sT0}, 48")
        a(f"s_lshl_b32 s{sT3}, s{sT1}, 5")
        a(f"s_add_u32 s{sT2}, s{sT2}, s{sT3}")
        a(f"s_add_u32 s{sT2}, s{sT2}, {L_IMG + 160}")
        a(f"v_add_u32 v4, s{sT2}, v2")
        vKS, vKS2 = 8, 9
        a(f"s_lshl_b32 s{sT2}, s{sG}, 4")
        a(f"s_add_u32 s{sT2}, s{sT2}, s{sC}")
        a(f"s_mul_i32 s{sT2}, s{sT2}, 7168")
        a(f"s_mul_i32 s{sT3}, s{sT0}, 3360")
        a(f"s_add_u32 s{sT2}, s{sT2}, s{sT3}")
        a(f"s_add_u32 s{sT2}, s{sT2}, {WS_KVP}")
        a(f"s_lshl_b32 s{sT3}, s{sT1}, 4")
        a(f"v_add_u32 v2, s{sT3}, v{vJ}")
        a(f"v_mul_u32_u24 v3, 21, v{vGm}")
        a(f"v_add_u32 v3, v3, v2")
        a(f"v_lshl_add_u32 v5, v3, 4, s{sT2}")
        a(f"v_mov_b32 v3, {OOB}")
        a(f"v_cmp_lt_u32 vcc, 20, v2")
        a(f"v_cndmask_b32 v5, v5, v3, vcc")
        a(f"v_cmp_lt_u32 vcc, 31, v1")
        a(f"v_cndmask_b32 v{vKS2}, v5, v3, vcc")
        vKB = 4; vKS = 5
        a("s_waitcnt lgkmcnt(0)")
        a("s_barrier")
        FA = 120
        FB = 168
        DKV = 184
        for k in range(4):
            for rd in range(2):
                a(f"ds_read_b64_tr_b16 v[{FB+4*k+2*rd}:{FB+4*k+2*rd+1}], v{vKB} offset:{k*32*IMGP + rd*IMGP}")
            for ft in range(3):
                for rd in range(2):
                    r = FA + 12*k + 4*ft + 2*rd
                    a(f"ds_read_b64_tr_b16 v[{r}:{r+1}], v{vKA} offset:{k*32*IMGP + rd*IMGP + 32*ft}")
        for k in range(4):
            a(f"s_waitcnt lgkmcnt({min(15, 8*(3-k))})")
            for ft in range(3):
                r = FA + 12*k + 4*ft; d = DKV + 4*ft
                c = "0" if k == 0 else f"v[{d}:{d+3}]"
                a(f"v_mfma_f32_16x16x32_bf16 v[{d}:{d+3}], v[{r}:{r+3}], v[{FB+4*k}:{FB+4*k+3}], {c}")
        a(f"v_mov_b32 v2, 0xfff")
        for i in range(12):
            a(f"v_bfi_b32 v{DKV+i}, v2, s{sTAG}, v{DKV+i}")
        for ft in range(3):
            d = DKV + 4*ft
            a(f"buffer_store_dwordx4 v[{d}:{d+3}], v{vKS2 if ft == 2 else vKS}, {ws}, 0 offen offset:{1344*ft} sc1")
        a("s_barrier")
        PQ = [224, 236]
        E = [88, 120]; T = [108, 112]
        self.softmax2(DQ, PQ, E, T)
        for e in range(2):
            a(f"v_mov_b32 v{PQ[e]+10}, 0")
            a(f"v_mov_b32 v{PQ[e]+11}, 0")
        if 'clk' not in self.opts: self.stamp(5)
        SO, SXB = S_R1, S_R2
        ro = f"s[{SO}:{SO+3}]"; rxb = f"s[{SXB}:{SXB+3}]"
        a.srd(SO, P_OUT, 2048*1280*4)
        a.srd(SXB, P_BX, 2621440)
        vF, vO, vA0 = 4, 5, 6
        a(f"s_lshl_b32 s{sIT}, s{sC2}, 2")
        a(f"s_add_u32 s{sIT}, s{sIT}, s{sW}")
        a(f"s_lshl_b32 s{sT2}, s{sIT}, 5")
        a(f"v_lshl_add_u32 v2, v{vHH}, 2, s{sT2}")
        for i in range(64): a(f"v_mov_b32 v{ACC+i}, 0")
        a(f"s_cmp_ge_u32 s{sR2}, 10")
        a("s_cbranch_scc1 L_early_a")
        a(f"s_lshl_b32 s{sT3}, s{sD0}, 6")
        a(f"v_add_lshl_u32 v3, v{vN}, s{sT3}, 1")
        a(f"v_mul_u32_u24 v8, 1280, v2")
        a(f"v_add_u32 v8, v8, v3")
        a(f"v_mov_b32 v9, v3")
        a(f"v_mul_u32_u24 v{vO}, 5120, v2")
        a(f"v_lshl_add_u32 v{vO}, v3, 1, v{vO}")
        a(f"v_add_u32 v{vO}, 2560, v{vO}")
        a(f"s_mul_i32 s{sT4}, s{sIT}, 81920")
        a(f"s_add_u32 s{sT4}, s{sT4}, {WS_H}")
        a(f"v_lshl_add_u32 v{vF}, v1, 4, s{sT4}")
        a(f"v_bfe_u32 v{vA0}, v1, 1, 3")
        a(f"v_lshlrev_b32 v{vA0}, 4, v{vA0}")
        a(f"v_lshl_add_u32 v{vA0}, v{vN}, 7, v{vA0}")
        a(f"v_lshl_add_u32 v{vA0}, v{vHH}, 13, v{vA0}")
        a("s_branch L_early_e")
        a.label("L_early_a")
        a(f"s_lshl_b32 s{sT3}, s{sD0}, 7")
        a(f"v_add_lshl_u32 v3, v{vN}, s{sT3}, 2")
        a(f"v_mul_u32_u24 v{vO}, 5120, v2")
        a(f"v_add_u32 v{vO}, v{vO}, v3")
        a(f"s_mul_i32 s{sT4}, s{sIT}, 40960")
        a(f"s_add_u32 s{sT4}, s{sT4}, {WS_O}")
        a(f"v_lshl_add_u32 v{vF}, v1, 4, s{sT4}")
        a(f"v_bfe_u32 v3, v1, 2, 2")
        a(f"v_mul_u32_u24 v{vA0}, 320, v3")
        a(f"v_lshl_add_u32 v{vA0}, v{vHH}, 11, v{vA0}")
        a(f"v_bfe_u32 v3, v1, 4, 1")
        a(f"v_lshl_add_u32 v{vA0}, v3, 5, v{vA0}")
        a(f"v_and_b32 v3, 3, v1")
        a(f"v_lshl_add_u32 v{vA0}, v3, 3, v{vA0}")
        a(f"v_mov_b32 v8, 0")
        a(f"v_mov_b32 v9, 0")
        a.label("L_early_e")
        a("s_barrier")
        SV = 120
        for tc in range(5):
            a(f"ds_read_b32 v{SV+tc}, v{vSEG} offset:{1280*tc}")
        vHW, vHR, vHS = 2, 3, 15
        a(f"s_mul_i32 s{sT0}, s{sW}, 5120")
        a(f"s_add_u32 s{sT0}, s{sT0}, {L_HT}")
        a(f"v_lshlrev_b32 v{vHW}, 6, v{vJ}")
        a(f"v_lshl_add_u32 v{vHW}, v{vGm}, 4, v{vHW}")
        a(f"v_add_u32 v{vHW}, s{sT0}, v{vHW}")
        a(f"v_bfe_u32 v{vHR}, v1, 2, 2")
        a(f"v_lshl_add_u32 v{vHR}, v{vHH}, 3, v{vHR}")
        a(f"v_lshlrev_b32 v{vHR}, 6, v{vHR}")
        a(f"v_bfe_u32 v{vHS}, v1, 4, 1")
        a(f"v_lshl_add_u32 v{vHR}, v{vHS}, 5, v{vHR}")
        a(f"v_and_b32 v{vHS}, 3, v1")
        a(f"v_lshl_add_u32 v{vHR}, v{vHS}, 3, v{vHR}")
        a(f"v_add_u32 v{vHR}, s{sT0}, v{vHR}")
        a(f"s_lshl_b32 s{sT1}, s{sC}, 2")
        a(f"s_add_u32 s{sT1}, s{sT1}, s{sW}")
        a(f"s_mul_i32 s{sT2}, s{sT1}, 81920")
        a(f"s_mul_i32 s{sT3}, s{sG}, 5120")
        a(f"s_add_u32 s{sT2}, s{sT2}, s{sT3}")
        a(f"s_add_u32 s{sT2}, s{sT2}, {WS_H}")
        a(f"v_lshl_add_u32 v{vHS}, v1, 4, s{sT2}")
        a("s_waitcnt lgkmcnt(0)")
        prev = [SV + tc for tc in range(5)]
        for tt in range(8):
            for tc in range(5):
                u = ureg(tc, tt)
                a(f"v_fma_f32 v{u}, v{SC+4*tc}, v{prev[tc]}, v{u}")
            for tc in range(5):
                u = ureg(tc, tt)
                a(f"v_fmac_f32_dpp v{u}, v{prev[tc]}, v{SC+4*tc+1} {DPP}")
            prev = [ureg(tc, tt) for tc in range(5)]
        HP = 128; OTm = [148, 156]
        for tc in range(5):
            o = OTm[tc & 1]
            for tt in range(8):
                a(f"v_mul_f32 v{o+tt}, v{SC+4*tc+2}, v{ureg(tc, tt)}")
            for tt in range(8):
                a(f"v_fmac_f32_dpp v{o+tt}, v{ureg(tc, tt)}, v{SC+4*tc+3} {DPP}")
            for i in range(4):
                a(f"v_cvt_pk_bf16_f32 v{HP+4*tc+i}, v{o+2*i}, v{o+2*i+1}")
            a(f"ds_write_b128 v{vHW}, v[{HP+4*tc}:{HP+4*tc+3}] offset:{1024*tc}")
        a("s_waitcnt lgkmcnt(0)")
        HF = 164
        for tc in range(5):
            for rd in range(2):
                a(f"ds_read_b64_tr_b16 v[{HF+4*tc+2*rd}:{HF+4*tc+2*rd+1}], v{vHR} offset:{1024*tc + 256*rd}")
        def hstores():
            a(f"s_mov_b32 s{sT0}, 4096")
            for tc in range(5):
                if 'hlate' not in self.opts: a(f"s_waitcnt lgkmcnt({2*(4-tc)})")
                if tc < 4:
                    a(f"buffer_store_dwordx4 v[{HF+4*tc}:{HF+4*tc+3}], v{vHS}, {ws}, 0 offen offset:{1024*tc} sc1")
                else:
                    a(f"buffer_store_dwordx4 v[{HF+4*tc}:{HF+4*tc+3}], v{vHS}, {ws}, s{sT0} offen sc1")
        if 'hlate' not in self.opts: hstores()
        if 'clk' not in self.opts: self.stamp(6)
        self.flag_addr(sT5, WS_FLAG_H, sC, sW, 16, sG)
        a(f"v_mul_u32_u24 v2, 112, v{vN}")
        a(f"v_mul_u32_u24 v3, 48, v{vHH}")
        a(f"v_add_u32 v7, v2, v3")
        a(f"s_mul_i32 s{sT2}, s{sT1}, 40960")
        a(f"s_lshr_b32 s{sT3}, s{sG}, 1")
        a(f"s_mul_i32 s{sT3}, s{sT3}, 5120")
        a(f"s_add_u32 s{sT2}, s{sT2}, s{sT3}")
        a(f"s_add_u32 s{sT2}, s{sT2}, {WS_O}")
        a(f"v_lshl_add_u32 v14, v1, 4, s{sT2}")
        a(f"s_and_b32 s{sT3}, s{sG}, 1")
        a(f"s_lshl_b32 s{sT4}, s{sT3}, 11")
        a(f"s_lshl_b32 s{sT3}, s{sT3}, 3")
        a(f"s_add_u32 s{sT3}, s{sT3}, 4096")
        if 'hlate' not in self.opts:
            a("s_waitcnt vmcnt(0)")
            self.flag_store(sT5, 2)
        a(f"s_add_u32 s{sT5}, s{sT5}, {WS_FLAG_O - WS_FLAG_H}")
        a(f"s_lshl_b32 s{sT1}, s{sW}, 6")
        a(f"s_add_u32 s{sT2}, s{sT1}, {WS_FLAG_O - WS_FLAG_H}")
        a(f"s_cmp_ge_u32 s{sR2}, 10")
        a(f"s_cselect_b32 s{sT1}, s{sT2}, s{sT1}")
        vPA2 = 10
        self.poll_addr(vPA2, WS_FLAG_H, sC2, 15, sT1)
        a("s_barrier")
        KF = 120
        for e in range(2):
            for k in range(3):
                r = KF + 12*e + 4*k
                a(f"ds_read_b128 v[{r}:{r+3}], v7 offset:{L_KVI + 3584*e + 16*k}")
        DO = [16, 32]
        a("s_waitcnt lgkmcnt(0)")
        for k in range(3):
            for e in range(2):
                r = KF + 12*e + 4*k; d = DO[e]
                c = "0" if k == 0 else f"v[{d}:{d+15}]"
                a(f"v_mfma_f32_32x32x16_bf16 v[{d}:{d+15}], v[{r}:{r+3}], v[{PQ[e]+4*k}:{PQ[e]+4*k+3}], {c}")
        OP = 144
        for e in range(2):
            a(f"v_add_f32 v{DO[e]+10}, 0x358637bd, v{DO[e]+10}")
        for e in range(2):
            a(f"v_rcp_f32 v{DO[e]+10}, v{DO[e]+10}")
        for i in range(5):
            for e in range(2):
                d = DO[e]
                a(f"v_pk_mul_f32 v[{d+2*i}:{d+2*i+1}], v[{d+2*i}:{d+2*i+1}], v[{d+10}:{d+11}] op_sel:[0,0] op_sel_hi:[1,0]")
        for e in range(2):
            for i in range(5):
                a(f"v_cvt_pk_bf16_f32 v{OP+5*e+i}, v{DO[e]+2*i}, v{DO[e]+2*i+1}")
        a(f"buffer_store_dwordx4 v[{OP}:{OP+3}], v14, {ws}, s{sT4} offen sc1")
        a(f"buffer_store_dwordx4 v[{OP+4}:{OP+7}], v14, {ws}, s{sT4} offen offset:1024 sc1")
        a(f"buffer_store_dwordx2 v[{OP+8}:{OP+9}], v14, {ws}, s{sT3} offen sc1")
        if 'hlate' in self.opts:
            hstores()
            a("s_waitcnt vmcnt(5)")
            self.flag_store(sT5, 2)
            a(f"s_sub_u32 s{sT5}, s{sT5}, {WS_FLAG_O - WS_FLAG_H}")
            a("s_waitcnt vmcnt(1)")
            self.flag_store(sT5, 2)
        else:
            a("s_waitcnt vmcnt(0)")
            self.flag_store(sT5, 2)
        if 'clk' not in self.opts: self.stamp(7)
        if 'dbgout' in self.opts:
            a("s_waitcnt lgkmcnt(0)")
            a(f"s_mov_b32 s101, s{sPT}")
            a(f"s_mov_b32 s61, s{sPT+2}")
            a(f"s_mov_b32 s100, s{sPT+4}")
            a(f"s_mov_b32 s72, s{sPT+8}")
            a(f"s_mov_b32 s59, s{sPT+10}")
        else:
            self.stamp_flush(160, 0)
        a("s_barrier")
        a(f"s_cmp_eq_u32 s{sR2}, 15")
        a("s_cbranch_scc1 L_end")
        HR = 120
        vAD = [7, 8, 9, 11]
        self.poll_issue(vPA2, 3)
        self.poll_wait(vPA2, 3)
        self.stamp(0)
        a(f"s_cmp_ge_u32 s{sR2}, 10")
        a("s_cbranch_scc1 LP2_A")
        WB = 184
        a.srd(S_R3, P_DSK, 1280)
        if 'noskip' in self.opts: a(f"s_mov_b32 s{SXB+2}, 0")
        a(f"buffer_load_ushort v14, v9, s[{S_R3}:{S_R3+3}], 0 offen")
        a(f"buffer_load_ushort v15, v9, s[{S_R3}:{S_R3+3}], 0 offen offset:64")
        for r in range(16):
            a(f"s_movk_i32 s{sT4}, {(8*(r >> 2) + (r & 3))*1280}") if (8*(r >> 2) + (r & 3))*1280 < 32768 else a(f"s_mov_b32 s{sT4}, {(8*(r >> 2) + (r & 3))*1280}")
            for t in range(2):
                a(f"buffer_load_short_d16_hi v{ACC+16*t+r}, v8, {rxb}, s{sT4} offen offset:{64*t}")
        a(f"s_lshl_b32 s{sKS}, s{sROT2}, 13")
        def ld(slot, kk):
            r = HR + 4*slot
            so = sKS if kk < 4 else sKSW
            return f"buffer_load_dwordx4 v[{r}:{r+3}], v{vF}, {ws}, s{so} offen offset:{1024*(kk & 3)} sc1"
        def adv(step, lim):
            a(f"s_add_u32 s{sKS}, s{sKS}, {step}")
            a(f"s_cmp_eq_u32 s{sKS}, {lim}")
            a(f"s_cselect_b32 s{sKS}, 0, s{sKS}")
        def lds_adv(step):
            a(f"v_add_u32 v{vAD[0]}, s{sLW}, v{vA0}")
            a(f"s_add_u32 s{sLW}, s{sLW}, {step}")
            a(f"s_cmp_ge_u32 s{sLW}, {LDS_TOTAL}")
            a(f"s_cselect_b32 s{sLW}, 0, s{sLW}")
        for st in range(2):
            a(f"s_add_u32 s{sKSW}, s{sKS}, 4096")
            for kk in range(8): a(ld(8*st + kk, kk))
            adv(8192, 81920)
        a(f"s_mov_b32 s{sIT}, 0")
        a(f"s_mov_b32 s{sLW}, {RING}")
        def rdB(rho):
            b = WB + 8*(rho & 3)
            return [f"v_xor_b32 v{vAD[1 + (rho & 1)]}, {16*(rho & 7)}, v{vAD[0]}"] + \
                   [f"ds_read_b128 v[{b+4*t}:{b+4*t+3}], v{vAD[1 + (rho & 1)]} offset:{4096*t}" for t in range(2)]
        a("s_barrier")
        lds_adv(16384)
        for rho in range(3):
            for x in rdB(rho): a(x)
        a("s_waitcnt vmcnt(16)")
        a(f"v_lshlrev_b32 v14, 16, v14")
        a(f"v_lshlrev_b32 v15, 16, v15")
        for t in range(2):
            for r in range(0, 16, 2):
                x = ACC + 16*t + r
                a(f"v_mul_f32 v{x}, v{x}, v{14+t}")
                a(f"v_mul_f32 v{x+1}, v{x+1}, v{14+t}")
                a(f"v_cvt_pk_bf16_f32 v{x+1}, v{x}, v{x+1}")
                a(f"v_lshlrev_b32 v{x}, 16, v{x+1}")
                a(f"v_and_b32 v{x+1}, 0xffff0000, v{x+1}")
        a.label("LP2B_loop")
        a(f"s_cmp_ge_u32 s{sIT}, 4")
        a(f"s_cselect_b32 s{sKS}, {OOB}, s{sKS}")
        for sidx in range(16):
            st, kk = sidx >> 3, sidx & 7
            rho = sidx + 3
            if kk == 0: a(f"s_add_u32 s{sKSW}, s{sKS}, 4096")
            if rho == 16:
                a(f"s_cmp_ge_u32 s{sIT}, 4")
                a("s_cbranch_scc1 LP2B_nb")
                a("s_barrier")
                a.label("LP2B_nb")
            if rho in (8, 16): lds_adv(16384)
            rr = rdB(rho)
            a(rr[0])
            a(f"s_waitcnt vmcnt(15) lgkmcnt(4)")
            b = WB + 8*(sidx & 3); h = HR + 4*sidx
            for t in range(2):
                d = ACC + 16*t
                a(f"v_mfma_f32_32x32x16_bf16 v[{d}:{d+15}], v[{h}:{h+3}], v[{b+4*t}:{b+4*t+3}], v[{d}:{d+15}]")
                a(rr[1+t])
            a(ld(sidx, kk))
            if kk == 7: adv(8192, 81920)
        self.itstamp()
        a(f"s_add_u32 s{sIT}, s{sIT}, 1")
        a(f"s_cmp_lt_u32 s{sIT}, 5")
        a("s_cbranch_scc1 LP2B_loop")
        self.stamp(1)
        for r in range(16):
            a(f"s_mov_b32 s{sT4}, {(8*(r >> 2) + (r & 3))*5120}")
            for t in range(2):
                a(f"buffer_store_dword v{ACC+16*t+r}, v{vO}, {ro}, s{sT4} offen offset:{128*t} {self.ost}")
        a("s_branch LP2_end")
        a.label("LP2_A")
        HA = 120
        WBA = [16, 32, None]
        def wreg(buf, t):
            if buf < 2: return WBA[buf] + 4*t
            return [48, 52, 248, 252][t]
        a(f"s_mul_i32 s{sKS}, s{sROT2}, 5120")
        def ldA(u):
            kk = u % 5
            if kk == 0: a(f"s_add_u32 s{sKSW}, s{sKS}, 4096")
            r = HA + 4*(u % 32)
            so = sKS if kk < 4 else sKSW
            a(f"buffer_load_dwordx4 v[{r}:{r+3}], v{vF}, {ws}, s{so} offen offset:{1024*(kk & 3)} sc1")
            if kk == 4: adv(5120, 40960)
        def rdA_addr(u):
            base = (RING + 4096*u) % LDS_TOTAL
            a(f"v_add_u32 v{vAD[0]}, {base}, v{vA0}")
            for t in range(1, 4):
                a(f"v_xor_b32 v{vAD[t]}, {64*t}, v{vAD[0]}")
        def rdA(u):
            return [f"ds_read_b64_tr_b16 v[{wreg(u % 3, t)+2*rd}:{wreg(u % 3, t)+2*rd+1}], v{vAD[t]} offset:{1024*rd}" for t in range(4) for rd in range(2)]
        for u in range(32): ldA(u)
        for u in range(2):
            rdA_addr(u)
            for x in rdA(u): a(x)
        for u in range(40):
            if u + 2 in (20, 30): a("s_barrier")
            rr = []
            if u + 2 < 40:
                rdA_addr(u + 2)
                rr = rdA(u + 2)
            nout = (31 if u < 8 else 39 - u)
            a(f"s_waitcnt vmcnt({nout}) lgkmcnt({8 if u < 39 else 0})")
            h = HA + 4*(u % 32)
            for t in range(4):
                d = ACC + 16*t; b = wreg(u % 3, t)
                a(f"v_mfma_f32_32x32x16_bf16 v[{d}:{d+15}], v[{h}:{h+3}], v[{b}:{b+3}], v[{d}:{d+15}]")
                if rr: a(rr[2*t]); a(rr[2*t+1])
            if u < 8: ldA(32 + u)
            if self.prof and u % 10 == 9: self.stamp(3 + u // 10)
        a(f"s_xor_b32 s{sT0}, s2, 80")
        a(f"s_or_b32 s{sT0}, s{sT0}, s{sW}")
        a(f"s_cmp_lg_u32 s{sT0}, 0")
        a(f"s_cselect_b32 s{sT1}, {OOB}, 0")
        a(f"s_mul_i32 s{sTAG}, s{sTAG}, {pow(KMUL, -1, 1 << 32):#x}")
        self.flag_store(sT1, 2)
        self.stamp(1)
        for r in range(16):
            a(f"s_mov_b32 s{sT4}, {(8*(r >> 2) + (r & 3))*5120}")
            for t in range(4):
                a(f"buffer_store_dword v{ACC+16*t+r}, v{vO}, {ro}, s{sT4} offen offset:{128*t} {self.ost}")
        a.label("LP2_end")
        if self.prof:
            a("s_waitcnt vmcnt(0)")
        self.stamp(2)
        if 'dbgout' in self.opts:
            a("s_waitcnt lgkmcnt(0)")
            a(f"s_xor_b32 s{sT0}, s2, 80")
            a(f"s_or_b32 s{sT0}, s{sT0}, s{sW}")
            a(f"s_cmp_lg_u32 s{sT0}, 0")
            a("s_cbranch_scc1 L_end")
            a.srd(S_R3, P_DBG, 256)
            for i, r in enumerate([61, 100, 72, 59, sPT+14, sPT, sPT+2, sPT+4]):
                a(f"s_sub_u32 s{sT1}, s{r}, s101")
                a(f"v_mov_b32 v{160+i}, s{sT1}")
            a("v_mov_b32 v2, 0")
            a("s_mov_b64 exec, 1")
            a(f"buffer_store_dwordx4 v[160:163], v2, s[{S_R3}:{S_R3+3}], 0 offen")
            a(f"buffer_store_dwordx4 v[164:167], v2, s[{S_R3}:{S_R3+3}], 0 offen offset:16")
            a("s_endpgm")
        self.stamp_flush(160, 1)
        a("s_endpgm")

    def loader(self):
        a = self.a
        ws = self.ws
        SX, SB, SXA, STR = S_R1, S_R2, S_R3, S_R4
        rx = f"s[{SX}:{SX+3}]"; rb = f"s[{SB}:{SB+3}]"; rxa = f"s[{SXA}:{SXA+3}]"; rt = f"s[{STR}:{STR+3}]"
        self.stamp(0)
        a(f"s_sub_u32 s{sL}, s{sW}, 4")
        if 'bprof' in self.opts: a("v_mov_b32 v255, 0")
        self.bstamp(32)
        out = []
        def issue(txt, lab):
            a(txt); out.append(lab)
        def wait_for(lab):
            idx = max(i for i, l in enumerate(out) if l == lab)
            n = len(out) - 1 - idx
            assert n <= 63
            a(f"s_waitcnt vmcnt({n})")
            del out[:idx+1]
        vXB = [4, 5, 6, 7]; vXA = [8, 9, 10, 11]; vBM = [12, 13, 14]; vWP = [28, 29, 30, 31]; vT = 15; vTW = 27
        sTLO, sTHI = sM, sM + 1
        a(f"s_lshl_b32 s{sT1}, s{sC}, 7")
        a(f"s_mul_i32 s{sT3}, s{sG}, 40")
        a(f"s_and_b32 s{sT4}, s{sG}, 7")
        a(f"s_and_b32 s{sT5}, s{sC}, 3")
        a(f"s_lshl_b32 s{sT6}, s{sT5}, 1")
        a(f"s_add_u32 s{sT6}, s{sT6}, s{sT4}")
        a(f"s_and_b32 s{sM}, s{sT6}, 7")
        a(f"s_lshl_b32 s{sM}, s{sM}, 7")
        a(f"s_add_u32 s{sT6}, s{sT6}, s{sT5}")
        a(f"s_cmp_ge_u32 s{sT6}, 10")
        a(f"s_cselect_b32 s{sT5}, 10, 0")
        a(f"s_sub_u32 s{sT6}, s{sT6}, s{sT5}")
        a(f"s_lshl_b32 s{sM+1}, s{sT6}, 7")
        a(f"s_mov_b32 s{sM2}, s{sM+1}")
        a(f"v_lshrrev_b32 v2, 3, v1")
        a(f"v_and_b32 v3, 7, v1")
        a(f"v_lshrrev_b32 v16, 1, v2")
        a(f"v_xor_b32 v32, v3, v16")
        a(f"v_xor_b32 v33, 4, v32")
        a(f"v_lshlrev_b32 v32, 4, v32")
        a(f"v_lshlrev_b32 v33, 4, v33")
        a(f"s_lshl_b32 s{sT0}, s{sL}, 5")
        a(f"s_add_u32 s{sT0}, s{sT0}, s{sT1}")
        a(f"s_mul_i32 s{sT0}, s{sT0}, 1280")
        a(f"v_mul_u32_u24 v34, 1280, v2")
        a(f"v_lshrrev_b32 v35, 2, v2")
        a(f"v_lshlrev_b32 v35, 3, v35")
        a(f"v_and_b32 v36, 3, v2")
        a(f"v_add_u32 v35, v35, v36")
        a(f"v_mul_u32_u24 v35, 1280, v35")
        for i in range(4):
            a(f"v_add3_u32 v{vXB[i]}, v35, v{32 + (i & 1)}, s{sT0}")
            if i: a(f"v_add_u32 v{vXB[i]}, {(16*(i & 1) + 4*(i >> 1))*1280 - i*1024}, v{vXB[i]}")
        a(f"s_and_b32 s{sT1}, s{sL}, 1")
        a(f"s_lshl_b32 s{sT1}, s{sT1}, 6")
        a(f"v_xor_b32 v36, s{sT1}, v32")
        a(f"s_lshr_b32 s{sT2}, s{sL}, 1")
        a(f"s_lshl_b32 s{sT2}, s{sT2}, 3")
        a(f"s_add_u32 s{sT2}, s{sT2}, s{sT3}")
        a(f"s_mul_i32 s{sT2}, s{sT2}, 1280")
        a(f"v_add3_u32 v{vBM[0]}, v34, v36, s{sT2}")
        a(f"v_add_u32 v{vBM[1]}, {16*1280}, v{vBM[0]}")
        a(f"s_cmp_ge_u32 s{sL}, 2")
        a(f"s_cselect_b32 s{sT3}, {OOB}, {32*1280}")
        a(f"v_add_u32 v{vBM[2]}, s{sT3}, v{vBM[0]}")
        a(f"s_lshl_b32 s{sLX}, s{sL}, 12")
        a(f"s_lshl_b32 s{sLW}, s{sL}, 10")
        a("s_waitcnt lgkmcnt(0)")
        a.srd(SX, P_BX, 2621440)
        a(f"s_cmp_eq_u32 s{sT1}, 64")
        a(f"s_cselect_b32 s{SB}, s{P_BIM}, s{P_BRE}")
        a(f"s_cselect_b32 s{SB+1}, s{P_BIM+1}, s{P_BRE+1}")
        a(f"s_and_b32 s{SB+1}, s{SB+1}, 0xffff")
        a(f"s_mov_b32 s{SB+2}, 819200")
        a(f"s_mov_b32 s{SB+3}, 0x00020000")
        def adv(reg, lim=1280):
            a(f"s_add_u32 s{reg}, s{reg}, 128")
            a(f"s_cmp_ge_u32 s{reg}, {lim}")
            a(f"s_cselect_b32 s{reg}, 0, s{reg}")
        def stageB(S):
            sl = RING + (S % 4) * 32768
            a(f"s_add_u32 m0, s{sLX}, {sl}")
            if S < NLOCK:
                a(f"s_movk_i32 s{sKS}, {128*S}")
            else:
                a(f"s_add_u32 s{sKS}, s{sM}, {128*NLOCK}")
                adv(sM, 128*(10 - NLOCK))
            for i in range(4):
                issue(f"buffer_load_dwordx4 v{vXB[i]}, {rx}, s{sKS} offen offset:{1024*i} {'nt' if S < NTS else ''} lds", f'st{S}')
            for m in range(3):
                a(f"s_add_u32 m0, s{sLW}, {sl + 16384 + 4096*m}")
                issue(f"buffer_load_dwordx4 v{vBM[m]}, {rb}, s{sKS} offen {'nt' if S < NTS else ''} lds", f'st{S}')
        def stageAx(S):
            sl = RING + (S % 4) * 32768
            a(f"s_add_u32 m0, s{sLX}, {sl}")
            for i in range(4):
                issue(f"buffer_load_dwordx4 v{vXA[i]}, {rxa}, s{sM+1} offen offset:{1024*i} lds", f'st{S}')
            adv(sM + 1)
        def stageAw(S):
            sl = RING + (S % 4) * 32768
            a(f"s_add_u32 m0, s{sLX}, {sl + 16384}")
            a(f"s_mul_i32 s{sKS}, s{sM2}, 120")
            for i in range(4):
                issue(f"buffer_load_dwordx4 v{vWP[i]}, {ws}, s{sKS} offen offset:{1024*i} sc1 lds", f'st{S}')
            adv(sM2)
        stageB(0); stageB(1)
        self.stamp(1)
        a.srd(S_WS, P_WS, WS_BYTES)
        vS = 26
        a("v_mov_b32 v2, 0")
        issue(f"buffer_load_dword v{vS}, v2, {ws}, 0 offen sc1", 'ep')
        a.srd(SXA, P_AX, 2621440)
        for i in range(4):
            a(f"v_add3_u32 v{vXA[i]}, v34, v{32 + (i & 1)}, s{sT0}")
            if i: a(f"v_add_u32 v{vXA[i]}, {i*8*1280 - i*1024}, v{vXA[i]}")
        a(f"s_mul_i32 s{sT2}, s{sG}, 153600")
        a(f"s_add_u32 s{sT2}, s{sT2}, {WS_WP}")
        a(f"s_mul_i32 s{sT3}, s{sL}, 3840")
        a(f"s_add_u32 s{sT3}, s{sT3}, s{sT2}")
        a(f"v_lshl_add_u32 v{vWP[0]}, v1, 4, s{sT3}")
        a(f"v_and_b32 v36, 31, v1")
        a(f"v_min_u32 v37, 27, v36")
        a(f"v_lshlrev_b32 v37, 4, v37")
        a(f"v_lshrrev_b32 v35, 5, v1")
        a(f"v_mul_u32_u24 v34, 448, v35")
        a(f"v_add3_u32 v{vWP[1]}, v37, v34, s{sT3}")
        a(f"v_subrev_u32 v{vWP[2]}, 128, v{vWP[0]}")
        a(f"v_subrev_u32 v{vWP[3]}, 128, v{vWP[1]}")
        vQ = 38
        a(f"v_and_b32 v{vQ}, 15, v1")
        a(f"v_add_u32 v{vQ}, 64, v{vQ}")
        a(f"s_cmp_eq_u32 s{sL}, 0")
        a(f"s_cselect_b64 vcc, -1, 0")
        a(f"v_cndmask_b32 v{vQ}, v{vQ}, v1, vcc")
        self.p2_role()
        SG, TB, vSA = 40, 56, 39
        for S in range(17):
            wait_for(f'st{S}')
            a("s_barrier")
            self.bstamp(S)
            if S == 0:
                self.stamp(2)
                stageB(2); stageB(3)
            elif S <= 6:
                stageB(S + 3)
            else:
                stageAx(S + 3)
                if S == WGATE:
                    for q in range(10, S + 4): stageAw(q)
                elif S > WGATE:
                    stageAw(S + 3)
            if S == 2:
                self.tag_from(vS)
            if S == 11:
                a(f"v_mul_u32_u24 v{vSA}, 80, v{vQ}")
                for m in range(4):
                    a(f"ds_read_b128 v[{SG+4*m}:{SG+4*m+3}], v{vSA} offset:{L_SEG + 16*m}")
                a(f"v_lshlrev_b32 v2, 5, v{vQ}")
                a(f"ds_read_b128 v[{TB}:{TB+3}], v2 offset:{L_TAB + 16}")
                a(f"s_lshl_b32 s{sT0}, s{sG}, 4")
                a(f"s_add_u32 s{sT0}, s{sT0}, s{sC}")
                a(f"s_mul_i32 s{sT0}, s{sT0}, 384")
                a(f"s_add_u32 s{sT0}, s{sT0}, {WS_AGG}")
                a(f"v_lshl_add_u32 v3, v{vQ}, 2, s{sT0}")
                a(f"s_cmp_ge_u32 s{sL}, 2")
                a(f"s_cselect_b32 s{sT5}, {OOB}, 0")
                a("s_waitcnt lgkmcnt(0)")
                prev = SG
                for sg in range(1, 8):
                    cur = 60 + (sg & 1)
                    a(f"v_fma_f32 v{cur}, v{TB}, v{prev}, v{SG+sg}")
                    a(f"v_fmac_f32_dpp v{cur}, v{prev}, v{TB+1} {DPP}")
                    prev = cur
            if S == 12:
                for sg in range(8, 16):
                    cur = 60 + (sg & 1)
                    a(f"v_fma_f32 v{cur}, v{TB}, v{prev}, v{SG+sg}")
                    a(f"v_fmac_f32_dpp v{cur}, v{prev}, v{TB+1} {DPP}")
                    prev = cur
                issue(f"buffer_store_dword v{prev}, v3, {ws}, s{sT5} offen sc1", 'agg')
            if S == 13: self.reduce_addrs(0)
            if S == 14: self.reduce_addrs(1)
            if S == 15: self.p2_loader_setup()
            if S == 16:
                assert 'agg' not in out
                self.flag_addr(sT5, WS_FLAG_AG, sG, sC, 2, sL)
                a(f"s_cmp_ge_u32 s{sL}, 2")
                a(f"s_cselect_b32 s{sT5}, {OOB}, s{sT5}")
                self.flag_store(sT5, 2); out.append('flag')
        a(f"s_cmp_ge_u32 s{sL}, 2")
        a("s_cbranch_scc1 LL_hi")
        out_save = list(out)
        vPA, vPD = 2, 3
        wait_for('st17'); a("s_barrier"); self.bstamp(17)
        wait_for('st18'); a("s_barrier"); self.bstamp(18)
        self.poll_addr(vPA, WS_FLAG_AG, sG, 31)
        a(f"s_lshl_b32 s{sT0}, s{sC}, 1")
        a(f"s_lshl_b32 s{sM2}, 1, s{sT0}")
        a(f"s_sub_u32 s{sM2}, s{sM2}, 1")
        wait_for('st19'); a("s_barrier"); self.bstamp(19)
        self.poll_issue(vPA, vPD)
        a("s_barrier")
        self.bstamp(20)
        self.stamp(4, True)
        self.poll_wait(vPA, vPD, sM2)
        AG = 64
        a(f"s_mul_i32 s{sT0}, s{sG}, {16*384}")
        a(f"s_add_u32 s{sT0}, s{sT0}, {WS_AGG}")
        a(f"v_lshl_add_u32 v3, v{vQ}, 2, s{sT0}")
        for m in range(15):
            a(f"s_sub_u32 s{sT1}, s{sC}, {15 - m}")
            a(f"s_mul_i32 s{sT2}, s{sT1}, 384")
            a(f"s_cmp_lt_i32 s{sT1}, 0")
            a(f"s_cselect_b32 s{sT2}, {OOB}, s{sT2}")
            a(f"buffer_load_dword v{AG+m}, v3, {ws}, s{sT2} offen sc1")
        a("s_barrier")
        self.bstamp(21)
        a("s_barrier")
        self.bstamp(22)
        prev = AG
        for m in range(1, 15):
            cur = 60 + (m & 1) if m < 14 else 80
            a(f"s_waitcnt vmcnt({14 - m})")
            a(f"v_fma_f32 v{cur}, v{TB+2}, v{prev}, v{AG+m}")
            a(f"v_fmac_f32_dpp v{cur}, v{prev}, v{TB+3} {DPP}")
            prev = cur
        SS = 80
        for sg in range(15):
            a(f"v_fma_f32 v{SS+sg+1}, v{TB}, v{SS+sg}, v{SG+sg}")
            a(f"v_fmac_f32_dpp v{SS+sg+1}, v{SS+sg}, v{TB+1} {DPP}")
        for m in range(4):
            a(f"ds_write_b128 v{vSA}, v[{SS+4*m}:{SS+4*m+3}] offset:{L_SEG + 16*m}")
        a("s_waitcnt lgkmcnt(0)")
        self.stamp(5, True)
        if 'gprof' in self.opts: self.stamp(5)
        a("s_branch LL_reduce")
        a.label("LL_hi")
        out[:] = out_save
        sK2 = sROT
        def piece(lo, hi, role=None):
            la = a.newlabel("Lpc_a"); le = a.newlabel("Lpc_e")
            if role is None:
                a(f"s_cmp_ge_u32 s{sR2}, 10")
                a(f"s_cbranch_scc1 {la}")
            for j in (range(lo // 4, hi // 4) if role != 'A' else []):
                base = (RING + 16384*j) % LDS_TOTAL
                for vv in range(2):
                    a(f"s_add_u32 m0, s{sL2X}, {base + 4096*vv}")
                    for i in range(4):
                        a(f"buffer_load_dwordx4 v{100+4*vv+i}, s[{S_R4}:{S_R4+3}], s{sK2} offen offset:{1024*i} lds")
                adv(sK2)
            if role is None:
                a(f"s_branch {le}")
                a.label(la)
            for u in (range(lo, hi) if role != 'B' else []):
                base = (RING + 4096*u) % LDS_TOTAL
                a(f"s_add_u32 m0, s{sL2X}, {base}")
                st = u % 5
                for vv in range(2):
                    a(f"buffer_load_dwordx4 v{100+5*vv+st}, s[{S_R4}:{S_R4+3}], s{sK2} offen offset:{1024*vv} lds")
                if st == 4:
                    a(f"s_add_u32 s{sK2}, s{sK2}, {80*1280}")
                    a(f"s_cmp_ge_u32 s{sK2}, {640*1280}")
                    a(f"s_cselect_b32 s{sK2}, 0, s{sK2}")
            if role is None: a.label(le)
            for u in range(lo, hi):
                out.extend([f'u{u}'] * 2)
        pre = 'nopre' not in self.opts
        wait_for('st17'); a("s_barrier")
        if pre: piece(0, 8)
        wait_for('st18'); a("s_barrier")
        if pre: piece(8, 16)
        wait_for('st19'); a("s_barrier")
        if pre: piece(16, 20)
        a("s_barrier")
        if 'pf2' in self.opts:
            la = a.newlabel("Lpf_a"); le = a.newlabel("Lpf_e")
            a(f"s_cmp_ge_u32 s{sR2}, 10")
            a(f"s_cbranch_scc1 {la}")
            a(f"s_lshl_b32 s{sT0}, s{sD0}, 6")
            a(f"v_add_u32 v2, s{sT0}, v1")
            a(f"v_mul_u32_u24 v2, 1280, v2")
            a(f"s_mov_b32 s{sT1}, s{sK2}")
            for i in range(5):
                a(f"buffer_load_dword v254, v2, s[{S_R4}:{S_R4+3}], s{sT1} offen")
                adv(sT1)
            a(f"s_branch {le}")
            a.label(la)
            a(f"s_min_u32 s{sT0}, s{sD0}, 4")
            a(f"s_lshl_b32 s{sT0}, s{sT0}, 8")
            a(f"s_sub_u32 s{sT1}, s{sL}, 2")
            a(f"s_lshl_b32 s{sT1}, s{sT1}, 7")
            a(f"s_add_u32 s{sT0}, s{sT0}, s{sT1}")
            a(f"v_mul_u32_u24 v2, 1280, v1")
            a(f"v_add_u32 v2, s{sK2}, v2")
            for i in range(5):
                a(f"v_subrev_u32 v3, {640*1280}, v2")
                a(f"v_min_u32 v3, v3, v2")
                a(f"buffer_load_dword v254, v3, s[{S_R4}:{S_R4+3}], s{sT0} offen")
                a(f"v_add_u32 v2, {64*1280}, v2")
            a.label(le)
        a("s_barrier")
        a("s_barrier")
        if 'gprof' in self.opts: self.stamp(5)
        a.label("LL_reduce")
        LA = [112 + 4*i for i in range(16)]
        LB = [176 + 4*i for i in range(16)]
        vLA, vLB, vDA, vDA2, vDB, vDB2 = 16, 17, 18, 19, 20, 21
        sCR = sM + 1
        vPR = 23
        a(f"s_mov_b32 s{sT7}, 0")
        a(f"s_and_b32 s{sCR}, s{sC}, 3")
        a(f"s_mul_i32 s{sCR}, s{sCR}, {4*7168}")
        a("s_barrier")
        if 'bprof' in self.opts: a(f"s_mov_b32 s{sT6}, 0"); self.bstamp(26)
        a.label("LL_probe")
        a(f"buffer_load_dword v72, v{vPR}, {ws}, 0 offen sc1")
        a(f"s_add_u32 s{sT7}, s{sT7}, 1")
        a(f"s_cmp_ge_u32 s{sT7}, 0x40000")
        a("s_cbranch_scc1 LL_sum")
        a("s_waitcnt vmcnt(0)")
        a(f"v_xor_b32 v72, s{sTAG}, v72")
        a(f"v_and_b32 v72, 0xfff, v72")
        a(f"v_cmp_ne_u32 vcc, 0, v72")
        a(f"s_cmp_lg_u64 vcc, 0")
        a("s_cbranch_scc1 LL_probe")
        self.stamp(6, True)
        self.bstamp(23)
        if 'bprof' in self.opts: a(f"s_add_u32 s{sT6}, s{sT6}, 1")
        a(f"s_mov_b32 s{sT0}, s{sCR}")
        a("v_mov_b32 v72, 0")
        a("v_mov_b32 v73, 0")
        AHEAD = GAHEAD
        def gl(cc):
            a(f"buffer_load_dwordx4 v[{LA[cc]}:{LA[cc]+3}], v{vLA}, {ws}, s{sT0} offen sc1")
            a(f"buffer_load_dwordx4 v[{LB[cc]}:{LB[cc]+3}], v{vLB}, {ws}, s{sT0} offen sc1")
            if cc < 15:
                a(f"s_add_u32 s{sT0}, s{sT0}, 7168")
                if cc % 4 == 3:
                    a(f"s_cmp_eq_u32 s{sT0}, {16*7168}")
                    a(f"s_cselect_b32 s{sT0}, 0, s{sT0}")
        for cc in range(AHEAD): gl(cc)
        for cc in range(16):
            if cc + AHEAD < 16: gl(cc + AHEAD)
            a(f"s_waitcnt vmcnt({2*min(AHEAD, 15-cc)})")
            for i in (range(4) if 'nochk' not in self.opts else []):
                a(f"v_xor_b32 v{64+i}, s{sTAG}, v{LA[cc]+i}")
                a(f"v_xor_b32 v{68+i}, s{sTAG}, v{LB[cc]+i}")
            for i in (range(4) if 'nochk' not in self.opts else []):
                a(f"v_or3_b32 v{72 + (i >> 1)}, v{72 + (i >> 1)}, v{64+2*i}, v{65+2*i}")
            if cc:
                for Ls in (LA, LB):
                    for h in range(2):
                        d = Ls[0] + 2*h; s_ = Ls[cc] + 2*h
                        a(f"v_pk_add_f32 v[{d}:{d+1}], v[{d}:{d+1}], v[{s_}:{s_+1}]")
        a(f"v_and_b32 v72, 0xfff, v72")
        a(f"v_and_or_b32 v72, v73, v24, v72")
        a(f"v_cmp_ne_u32 vcc, 0, v72")
        a(f"s_cmp_lg_u64 vcc, 0")
        a("s_cbranch_scc1 LL_probe")
        a.label("LL_sum")
        if 'bprof' in self.opts:
            a(f"v_writelane_b32 v255, s{sT6}, 40")
            a(f"v_writelane_b32 v255, s{sT7}, 41")
        for Ls in (LA, LB):
            a(f"v_cvt_pk_bf16_f32 v{Ls[1]}, v{Ls[0]}, v{Ls[0]+1}")
            a(f"v_cvt_pk_bf16_f32 v{Ls[1]+1}, v{Ls[0]+2}, v{Ls[0]+3}")
        a(f"ds_write_b64 v{vDA}, v[{LA[1]}:{LA[1]+1}]")
        a(f"ds_write_b64 v{vDA2}, v[{LA[1]}:{LA[1]+1}]")
        a(f"ds_write_b64 v{vDB}, v[{LB[1]}:{LB[1]+1}]")
        a(f"ds_write_b64 v{vDB2}, v[{LB[1]}:{LB[1]+1}]")
        a("s_waitcnt lgkmcnt(0)")
        self.stamp(7, True)
        self.bstamp(24)
        a("s_barrier")
        self.bstamp(25)
        self.bflush()
        if 'dbgout' not in self.opts: self.stamp_flush(112, 0)
        a(f"s_cmp_lt_u32 s{sL}, 2")
        a("s_cbranch_scc1 L_end")
        if not pre:
            piece(0, 20)
            a("s_waitcnt vmcnt(0)")
        a("s_barrier")
        a(f"s_cmp_eq_u32 s{sR2}, 15")
        a("s_cbranch_scc1 L_end")
        out[:] = []
        if 'nop34' in self.opts: a(f"s_mov_b32 s{S_R4+2}, 0")
        la = a.newlabel("Ly_a")
        a(f"s_cmp_ge_u32 s{sR2}, 10")
        a(f"s_cbranch_scc1 {la}")
        a("s_barrier")
        piece(20, 40, 'B')
        a("s_barrier")
        wait_for('u23'); a("s_barrier")
        wait_for('u31'); a("s_barrier")
        wait_for('u39'); a("s_barrier")
        a("s_endpgm")
        a.label(la)
        out[:] = []
        piece(20, 40, 'A')
        wait_for('u29'); a("s_barrier")
        wait_for('u39'); a("s_barrier")
        a("s_endpgm")

    def reduce_addrs(self, part):
        a = self.a
        vLA, vLB, vDA, vDA2, vDB, vDB2 = 16, 17, 18, 19, 20, 21
        vt = 22
        if part == 0:
            a(f"v_subrev_u32 v{vt}, 256, v0")
            a(f"s_mul_i32 s{sT2}, s{sG}, {16*7168}")
            a(f"s_add_u32 s{sT2}, s{sT2}, {WS_KVP}")
            a(f"v_lshl_add_u32 v{vLA}, v{vt}, 4, s{sT2}")
            a(f"v_add_u32 v{vLB}, 4096, v{vLA}")
            a(f"v_cmp_lt_u32 vcc, 163, v{vt}")
            a(f"v_mov_b32 v2, {OOB}")
            a(f"v_cndmask_b32 v{vLB}, v{vLB}, v2, vcc")
            a(f"v_mov_b32 v24, 0xfff")
            a(f"v_mov_b32 v2, 0")
            a(f"v_cndmask_b32 v24, v24, v2, vcc")
            a(f"s_and_b32 s{sT3}, s{sC}, 3")
            a(f"s_lshl_b32 s{sT3}, s{sT3}, 2")
            a(f"v_add_u32 v23, s{sT3}, v1")
            a(f"v_and_b32 v23, 15, v23")
            a(f"v_mul_u32_u24 v23, 7168, v23")
            a(f"s_lshr_b32 s{sT3}, s{sL}, 1")
            a(f"s_mul_i32 s{sT3}, s{sT3}, 3360")
            a(f"s_add_u32 s{sT2}, s{sT2}, s{sT3}")
            a(f"s_and_b32 s{sT3}, s{sL}, 1")
            a(f"s_lshl_b32 s{sT3}, s{sT3}, 8")
            a(f"s_add_u32 s{sT2}, s{sT2}, s{sT3}")
            a(f"v_add_u32 v23, s{sT2}, v23")
            a(f"v_add_u32 v23, {168*16}, v23")
        def lds_dst(qoff, vd, vd2, t0):
            q, e_, fq, dd, x, y = t0, t0+1, t0+2, t0+3, t0+4, t0+5
            a(f"v_add_u32 v{q}, {qoff}, v{vt}")
            a(f"v_cmp_lt_u32 vcc, 209, v{q}")
            a(f"v_mov_b32 v{x}, 0")
            a(f"v_mov_b32 v{y}, 210")
            a(f"v_cndmask_b32 v{e_}, v{x}, v{y}, vcc")
            a(f"v_sub_u32 v{q}, v{q}, v{e_}")
            a(f"v_mov_b32 v{y}, {32*112}")
            a(f"v_cndmask_b32 v{e_}, v{x}, v{y}, vcc")
            a(f"v_mul_u32_u24 v{fq}, 3121, v{q}")
            a(f"v_lshrrev_b32 v{fq}, 16, v{fq}")
            a(f"v_mul_u32_u24 v{x}, 21, v{fq}")
            a(f"v_sub_u32 v{dd}, v{q}, v{x}")
            a(f"v_lshl_add_u32 v{e_}, v{fq}, 3, v{e_}")
            a(f"v_add_u32 v{x}, 8, v{e_}")
            a(f"v_cmp_lt_u32 vcc, 4, v{fq}")
            a(f"v_cndmask_b32 v{e_}, v{e_}, v{x}, vcc")
            a(f"v_subrev_u32 v{x}, 10, v{dd}")
            a(f"v_cmp_lt_u32 vcc, 9, v{dd}")
            a(f"v_cndmask_b32 v{x}, v{dd}, v{x}, vcc")
            a(f"v_mov_b32 v{y}, 0")
            a(f"v_mov_b32 v{q}, 4")
            a(f"v_cndmask_b32 v{y}, v{y}, v{q}, vcc")
            a(f"v_lshrrev_b32 v{q}, 2, v{x}")
            a(f"v_lshl_add_u32 v{y}, v{q}, 3, v{y}")
            a(f"v_and_b32 v{x}, 3, v{x}")
            a(f"v_add_u32 v{y}, v{y}, v{x}")
            a(f"v_mul_u32_u24 v{y}, 112, v{y}")
            a(f"v_add_u32 v{vd}, v{y}, v{e_}")
            a(f"v_subrev_u32 v{x}, {4*112}, v{vd}")
            a(f"v_cmp_eq_u32 vcc, 20, v{dd}")
            a(f"v_cndmask_b32 v{vd2}, v{vd}, v{x}, vcc")
        assert L_KVI == 0
        if part == 0:
            lds_dst(0, vDA, vDA2, 64)
            return
        lds_dst(256, vDB, vDB2, 64)
        a(f"v_mov_b32 v2, {L_DUM}")
        a(f"v_cmp_lt_u32 vcc, 163, v{vt}")
        a(f"v_cndmask_b32 v{vDB}, v{vDB}, v2, vcc")
        a(f"v_cndmask_b32 v{vDB2}, v{vDB2}, v2, vcc")
        a(f"v_mov_b32 v64, 0")
        a(f"v_mov_b32 v65, 0")
        a(f"v_mul_u32_u24 v66, 112, v1")
        a(f"ds_write_b64 v66, v[64:65] offset:{L_KVI+40}")
        a(f"ds_write_b64 v66, v[64:65] offset:{L_KVI+88}")
        a("s_waitcnt lgkmcnt(0)")

    def p2_loader_setup(self):
        a = self.a
        SW_ = S_R4
        la = a.newlabel("Lp2ls_a"); le = a.newlabel("Lp2ls_e")
        a(f"s_cmp_ge_u32 s{sR2}, 10")
        a(f"s_cbranch_scc1 {la}")
        a(f"s_cmp_eq_u32 s{sL}, 3")
        a(f"s_cselect_b32 s{SW_}, s{P_CIM}, s{P_CRE}")
        a(f"s_cselect_b32 s{SW_+1}, s{P_CIM+1}, s{P_CRE+1}")
        a(f"v_lshrrev_b32 v110, 3, v1")
        a(f"v_mul_u32_u24 v110, 1280, v110")
        a(f"s_mul_i32 s{sT0}, s{sD0}, {64*1280}")
        for vv in range(2):
            for i in range(4):
                a(f"v_add3_u32 v{100+4*vv+i}, v110, v{32 + (i & 1)}, s{sT0}")
                if i or vv: a(f"v_add_u32 v{100+4*vv+i}, {(32*vv + 8*i)*1280 - i*1024}, v{100+4*vv+i}")
        a(f"v_mov_b32 v108, v100")
        a(f"v_mov_b32 v109, v100")
        a(f"s_lshl_b32 s{sROT}, s{sROT2}, 7")
        a(f"s_sub_u32 s{sL2X}, s{sL}, 2")
        a(f"s_lshl_b32 s{sL2X}, s{sL2X}, 13")
        a(f"s_branch {le}")
        a.label(la)
        a(f"s_mov_b32 s{SW_}, s{P_WO}")
        a(f"s_mov_b32 s{SW_+1}, s{P_WO+1}")
        a(f"v_lshrrev_b32 v110, 4, v1")
        a(f"v_bfe_u32 v111, v1, 2, 2")
        a(f"v_xor_b32 v111, v111, v110")
        a(f"v_lshlrev_b32 v111, 6, v111")
        a(f"v_and_b32 v2, 3, v1")
        a(f"v_lshl_add_u32 v111, v2, 4, v111")
        a(f"s_min_u32 s{sT0}, s{sD0}, 4")
        a(f"s_lshl_b32 s{sT0}, s{sT0}, 8")
        a(f"v_add_u32 v111, s{sT0}, v111")
        a(f"s_sub_u32 s{sT0}, s{sL}, 2")
        a(f"s_mul_i32 s{sT0}, s{sT0}, 10")
        a(f"v_add_u32 v3, s{sT0}, v110")
        for vv in range(2):
            for st in range(4):
                base = 8*(st & 1) + 4*vv
                dst = 100 + 5*vv + st
                if base == 8:
                    a(f"v_add_u32 v2, 10, v3")
                    a(f"v_cmp_lt_u32 vcc, 1, v110")
                    a(f"v_cndmask_b32 v2, v3, v2, vcc")
                    a(f"v_add_u32 v2, {40*(st >> 1) + base}, v2")
                else:
                    a(f"v_add_u32 v2, {40*(st >> 1) + base + (10 if base > 8 else 0)}, v3")
                a(f"v_mul_u32_u24 v2, 1280, v2")
                a(f"v_add_u32 v{dst}, v2, v111")
                if vv: a(f"v_subrev_u32 v{dst}, 1024, v{dst}")
            dst = 100 + 5*vv + 4
            a(f"v_add_u32 v2, {40*vv + 26}, v3")
            a(f"v_mul_u32_u24 v2, 1280, v2")
            a(f"v_add_u32 v{dst}, v2, v111")
            if vv: a(f"v_subrev_u32 v{dst}, 1024, v{dst}")
        a(f"s_mul_i32 s{sROT}, s{sROT2}, {80*1280}")
        a(f"s_sub_u32 s{sL2X}, s{sL}, 2")
        a(f"s_lshl_b32 s{sL2X}, s{sL2X}, 11")
        a.label(le)
        a(f"s_and_b32 s{SW_+1}, s{SW_+1}, 0xffff")
        a(f"s_mov_b32 s{SW_+2}, 819200")
        a(f"s_mov_b32 s{SW_+3}, 0x00020000")

    def side_jobs(self, vS):
        a = self.a
        lend = a.newlabel("Lside_end"); l3 = a.newlabel("Lside3")
        a(f"s_cmp_eq_u32 s{sW}, 2")
        a(f"s_cbranch_scc1 {l3}")
        a(f"s_cmp_lg_u32 s{sW}, 1")
        a(f"s_cbranch_scc1 {lend}")
        lre, lim, ldt = 64, 65, 66
        a(f"v_lshlrev_b32 v{lre}, 16, v{vS+1}")
        a(f"v_lshlrev_b32 v{lim}, 16, v{vS+2}")
        a(f"v_lshlrev_b32 v{ldt}, 16, v{vS+3}")
        a(f"v_mul_f32 v{ldt}, s{sLOG2E}, v{ldt}")
        a(f"v_exp_f32 v{ldt}, v{ldt}")
        a(f"v_cvt_pk_bf16_f32 v{ldt}, v{ldt}, v{ldt}")
        a(f"v_lshlrev_b32 v{ldt}, 16, v{ldt}")
        a(f"v_mul_f32 v67, v{ldt}, v{lre}")
        a(f"v_mul_f32 v68, v{ldt}, v{lim}")
        a(f"v_mul_f32 v67, s{sLOG2E}, v67")
        a(f"v_exp_f32 v67, v67")
        a(f"v_mul_f32 v68, 0.15915494, v68")
        a(f"v_rndne_f32 v69, v68")
        a(f"v_sub_f32 v68, v68, v69")
        a(f"v_cos_f32 v69, v68")
        a(f"v_sin_f32 v70, v68")
        RE, IM = 72, 80
        a(f"v_mul_f32 v{RE}, v67, v69")
        a(f"v_mul_f32 v{IM+1}, v67, v70")
        a(f"v_mov_b32 v{IM}, v{RE}")
        a(f"v_sub_f32 v{RE+1}, 0, v{IM+1}")
        a(f"v_add_f32 v67, -1.0, v{RE}")
        a(f"v_mul_f32 v68, v{lre}, v{lre}")
        a(f"v_fmac_f32 v68, v{lim}, v{lim}")
        a(f"v_rcp_f32 v68, v68")
        a(f"v_mul_f32 v69, v67, v{lre}")
        a(f"v_fmac_f32 v69, v{IM+1}, v{lim}")
        a(f"v_mul_f32 v70, v{IM+1}, v{lre}")
        a(f"v_fma_f32 v70, -v67, v{lim}, v70")
        a(f"v_add_f32 v68, v68, v68")
        a(f"v_mul_f32 v{RE+2}, v69, v68")
        a(f"v_sub_f32 v{IM+2}, 0, v{RE+2}")
        a(f"v_mul_f32_e64 v{RE+3}, -v70, v68")
        a(f"v_mov_b32 v{IM+3}, v{RE+3}")
        x, y = RE, IM + 1
        for it in range(7):
            if it == 2: nx, ny = RE + 4, IM + 5
            elif it == 6: nx, ny = RE + 6, IM + 7
            else: nx, ny = (67, 68) if (x, y) != (67, 68) else (69, 70)
            a(f"v_mul_f32 v71, v{y}, v{y}")
            a(f"v_mul_f32 v{ny}, v{x}, v{y}")
            a(f"v_fma_f32 v{nx}, v{x}, v{x}, -v71")
            a(f"v_add_f32 v{ny}, v{ny}, v{ny}")
            x, y = nx, ny
        for o in (4, 6):
            a(f"v_mov_b32 v{IM+o}, v{RE+o}")
            a(f"v_sub_f32 v{RE+o+1}, 0, v{IM+o+1}")
        a(f"v_min_u32 v67, 39, v1")
        a(f"v_lshrrev_b32 v68, 3, v67")
        a(f"v_and_b32 v67, 7, v67")
        a(f"v_lshl_add_u32 v67, v68, 4, v67")
        a(f"v_lshlrev_b32 v67, 5, v67")
        a(f"ds_write_b128 v67, v[{RE}:{RE+3}] offset:{L_TAB}")
        a(f"ds_write_b128 v67, v[{RE+4}:{RE+7}] offset:{L_TAB+16}")
        a(f"ds_write_b128 v67, v[{IM}:{IM+3}] offset:{L_TAB+256}")
        a(f"ds_write_b128 v67, v[{IM+4}:{IM+7}] offset:{L_TAB+256+16}")
        a(f"s_branch {lend}")
        a.label(l3)
        for i in range(4): a(f"v_mov_b32 v{64+i}, 0")
        a(f"v_lshlrev_b32 v68, 4, v1")
        a(f"ds_write_b128 v68, v[64:67] offset:{L_WPH}")
        a(f"ds_write_b128 v68, v[64:67] offset:{L_WPH+1024}")
        a(f"v_min_u32 v68, {39*16}, v68")
        a(f"ds_write_b128 v68, v[64:67] offset:{L_WPH+2048}")
        a(f"v_min_u32 v64, 39, v1")
        a(f"v_add_u32 v65, 1, v64")
        a(f"v_cmp_lt_u32 vcc, 19, v64")
        a(f"v_cndmask_b32 v64, v64, v65, vcc")
        a(f"v_lshlrev_b32 v64, 6, v64")
        a(f"v_add_u32 v64, {L_WPH}, v64")
        for i, (o0, o1) in enumerate([(0, 1), (4, 5), (8, 2), (3, 6), (7, 10)]):
            a(f"ds_write2_b32 v64, v{vS+4+2*i}, v{vS+5+2*i} offset0:{o0} offset1:{o1}")
        a.label(lend)
        a("s_waitcnt lgkmcnt(0)")

    def build(self):
        a = self.a
        a.kernel_begin(KNAME, 256, 512, LDS_TOTAL)
        a.launch = [f"; @launch grid=(256,1,1) block=(512,1,1) lds={LDS_TOTAL}"] if 'single' in self.opts else a.launch
        self.prologue()
        self.loader()
        a.label("L_compute")
        self.compute()
        a.label("L_end")
        a("s_endpgm")
        a.kernel_end(KNAME, 256)
        return a

if __name__ == "__main__":
    for o in sys.argv[2:]:
        if '=' in o:
            kk, vv = o.split('='); globals()[kk] = int(vv)
    k = K(prof='prof' in sys.argv, opts=sys.argv[2:])
    a = k.build()
    hdr = "".join(open("concat_heads__linear_kernel_hedgehog__ssm_conv_s5__prompt.s.ref").read().splitlines(True)[:17]) if 'final' in sys.argv else ""
    open(sys.argv[1], "w").write(a.text(hdr))
```

```python
import sys
from asm2 import Asm

KNAME = "concat_heads__linear_kernel_hedgehog__ssm_conv_s5__prompt_kernel"
WS_FLAG_W, WS_FLAG_AG, WS_FLAG_KV, WS_FLAG_H, WS_FLAG_O = 0x1000, 0x2000, 0x3000, 0x4000, 0x5000
WS_PROF = 0x10000
WS_WP, WS_AGG, WS_KVP, WS_H, WS_O = 0x100000, 0x400000, 0x500000, 0x800000, 0xE00000
WS_BYTES = 0x1100000
OOB = 0x40000000
LDS_TOTAL = 163840
RING = 32768
L_STG = 0
L_TAB = 16384
L_WPH = L_TAB + 2560
L_SEG = L_WPH + 2688
L_KVI = 0
L_DUM = L_SEG + 6400
assert L_DUM + 64 <= RING
L_IMG = RING + 81920
L_HT = RING + 81920 + 33920
L_HT = 8192
IMGP = 264
P_AX, P_WQKV, P_WPHI, P_WO, P_BX, P_LRE, P_LIM, P_BRE, P_BIM, P_CRE, P_CIM, P_LDT, P_DSK, P_OUT, P_DBG, P_WS = [4 + 2*i for i in range(16)]
S_WS, S_R1, S_R2, S_R3, S_R4 = 36, 40, 44, 48, 52
sC, sG, sW, sROT, sTAG, sL = 56, 57, 58, 59, 60, 61
sT0, sT1, sT2, sT3, sT4, sT5, sT6, sT7 = 62, 63, 64, 65, 66, 67, 68, 69
sKS, sKSW, sLX, sLW, sIT, sC2 = 70, 71, 72, 73, 74, 75
sLOG2E = 76
sM = 78
sM2, sR2, sD0, sROT2 = 80, 81, 82, 83
sPT = 84
sL2X = 100
KMUL = 0x9e3779b1
KVPITCH = 3584
WFLAG_IT = 0
NLOCK = 1
P3X2 = 1
HTOUCH = 0
SKEW = 2
SKIPE = 0
RLIT = -1
RLLATE = 0
KVZ = 4
SPEC = 2
GAHEAD = 6
NFILL = 6
FLIPBIT = 0
WGATE = 7
NTS = 4
NTQ = 1
NTA = 0
DPP = "row_ror:8 row_mask:0xf bank_mask:0xf"

class K:
    def __init__(self, prof=False, opts=()):
        self.a = Asm()
        self.prof = prof
        self.opts = opts
        self.ost = 'nt'
        self.ws = f"s[{S_WS}:{S_WS+3}]"

    def tag_from(self, v):
        a = self.a
        a(f"v_readfirstlane_b32 s{sTAG}, v{v}")
        a(f"s_add_u32 s{sTAG}, s{sTAG}, 1")
        a(f"s_mul_i32 s{sTAG}, s{sTAG}, {KMUL:#x}")

    def stamp(self, idx, late=False):
        if late and 'sprof' in self.opts: return
        if self.prof:
            self.a(f"s_memrealtime s[{sPT+2*idx}:{sPT+2*idx+1}]")

    def stamp_flush(self, vtmp, half=0):
        if not self.prof: return
        a = self.a
        a("s_waitcnt lgkmcnt(0)")
        a(f"s_lshl_b32 s{sT0}, s2, 3")
        a(f"s_add_u32 s{sT0}, s{sT0}, s{sW}")
        a(f"s_lshl_b32 s{sT0}, s{sT0}, 5")
        a(f"s_add_u32 s{sT0}, s{sT0}, {WS_PROF + 0x10000*half}")
        for i in range(8):
            a(f"v_mov_b32 v{vtmp+i}, s{sPT+2*i}")
        a(f"v_mov_b32 v{vtmp+8}, s{sT0}")
        a("s_mov_b64 exec, 1")
        a(f"buffer_store_dwordx4 v[{vtmp}:{vtmp+3}], v{vtmp+8}, {self.ws}, 0 offen")
        a(f"buffer_store_dwordx4 v[{vtmp+4}:{vtmp+7}], v{vtmp+8}, {self.ws}, 0 offen offset:16")
        a("s_mov_b64 exec, -1")
        a("s_waitcnt vmcnt(0)")

    def bstamp(self, idx):
        if 'bprof' not in self.opts: return
        a = self.a
        a(f"s_memrealtime s[{sPT}:{sPT+1}]")
        a("s_waitcnt lgkmcnt(0)")
        a(f"v_writelane_b32 v255, s{sPT}, {idx}")

    def bflush(self):
        if 'bprof' not in self.opts: return
        a = self.a
        a(f"s_lshl_b32 s{sT0}, s2, 3")
        a(f"s_add_u32 s{sT0}, s{sT0}, s{sW}")
        a(f"s_lshl_b32 s{sT0}, s{sT0}, 8")
        a(f"s_add_u32 s{sT0}, s{sT0}, {WS_PROF + 0x40000}")
        a(f"v_lshl_add_u32 v254, v1, 2, s{sT0}")
        a(f"buffer_store_dword v255, v254, {self.ws}, 0 offen")
        a("s_waitcnt vmcnt(0)")

    def itstamp(self):
        if not self.prof: return
        a = self.a
        a(f"s_memrealtime s[{sM}:{sM+1}]")
        a(f"s_lshl_b32 m0, s{sIT}, 1")
        a("s_waitcnt lgkmcnt(0)")
        a(f"s_movreld_b32 s{sPT+6}, s{sM}")

    def tagpat(self, s0, s1):
        a = self.a
        a(f"s_lshl_b32 s{s0}, s{sTAG}, 15")
        a(f"s_and_b32 s{s1}, s{sTAG}, 1")
        a(f"s_or_b32 s{s0}, s{s0}, s{s1}")
        a(f"s_lshl_b32 s{s1}, s{sTAG}, 13")
        a(f"s_bfe_u32 s{sT7}, s{sTAG}, 0x10002")
        a(f"s_or_b32 s{s1}, s{s1}, s{sT7}")

    def flag_store(self, soff, vt):
        a = self.a
        a(f"v_mov_b32 v{vt}, 0")
        a(f"v_mov_b32 v{vt+1}, s{sTAG}")
        a("s_mov_b64 exec, 1")
        a(f"buffer_store_dword v{vt+1}, v{vt}, {self.ws}, s{soff} offen sc1")
        a("s_mov_b64 exec, -1")

    def flag_addr(self, sd, base, srow, scol, colmul, sidx):
        a = self.a
        a(f"s_mul_i32 s{sd}, s{scol}, {colmul}")
        a(f"s_add_u32 s{sd}, s{sd}, s{sidx}")
        a(f"s_lshl_b32 s{sd}, s{sd}, 2")
        a(f"s_lshl_b32 s{sT7}, s{srow}, 8")
        a(f"s_add_u32 s{sd}, s{sd}, s{sT7}")
        a(f"s_add_u32 s{sd}, s{sd}, {base}")

    def poll_issue(self, vaddr, vdst):
        self.a(f"buffer_load_dword v{vdst}, v{vaddr}, {self.ws}, 0 offen sc1")

    def poll_wait(self, vaddr, vdst, smask=None):
        a = self.a
        l0 = a.newlabel("Lpoll"); l1 = a.newlabel("Lpollok")
        a(f"s_mov_b32 s{sT7}, 0")
        a.label(l0)
        a("s_waitcnt vmcnt(0)")
        a(f"v_cmp_eq_u32 vcc, s{sTAG}, v{vdst}")
        if smask is None:
            a(f"s_cmp_eq_u64 vcc, -1")
        else:
            a(f"s_and_b32 s{sT6}, vcc_lo, s{smask}")
            a(f"s_cmp_eq_u32 s{sT6}, s{smask}")
        a(f"s_cbranch_scc1 {l1}")
        a("s_sleep 1")
        self.poll_issue(vaddr, vdst)
        a(f"s_add_u32 s{sT7}, s{sT7}, 1")
        a(f"s_cmp_lt_u32 s{sT7}, 0x40000")
        a(f"s_cbranch_scc1 {l0}")
        a("s_waitcnt vmcnt(0)")
        a.label(l1)

    def poll_addr(self, v, base, srow, lanemask=63, sextra=None):
        a = self.a
        a(f"s_lshl_b32 s{sT0}, s{srow}, 8")
        a(f"s_add_u32 s{sT0}, s{sT0}, {base}")
        if sextra is not None:
            a(f"s_add_u32 s{sT0}, s{sT0}, s{sextra}")
        a(f"v_and_b32 v{v}, {lanemask}, v1")
        a(f"v_lshl_add_u32 v{v}, v{v}, 2, s{sT0}")

    def prologue(self):
        a = self.a
        a("s_cmp_ge_u32 s2, 256")
        a("s_cbranch_scc1 L_end")
        a("s_load_dwordx16 s[4:19], s[0:1], 0")
        a("s_load_dwordx16 s[20:35], s[0:1], 64")
        a("v_lshrrev_b32 v2, 6, v0")
        a("v_and_b32 v1, 63, v0")
        a(f"v_readfirstlane_b32 s{sW}, v2")
        a(f"s_bfe_u32 s{sT0}, s2, 0x20001")
        a(f"s_lshl_b32 s{sT0}, s{sT0}, 2")
        a(f"s_bfe_u32 s{sT1}, s2, 0x20003")
        a(f"s_add_u32 s{sC}, s{sT0}, s{sT1}")
        a(f"s_and_b32 s{sT0}, s2, 1")
        a(f"s_lshl_b32 s{sT0}, s{sT0}, 3")
        a(f"s_lshr_b32 s{sT2}, s2, 5")
        a(f"s_add_u32 s{sG}, s{sT0}, s{sT2}")
        a(f"s_mov_b32 s{sLOG2E}, 0x3fb8aa3b")
        a(f"s_mov_b32 s{sLOG2E+1}, 0x3fb8aa3b")
        a(f"s_cmp_lt_u32 s{sW}, 4")
        a("s_cbranch_scc1 L_compute")

    def p2_role(self):
        a = self.a
        a(f"s_and_b32 s{sC2}, s2, 7")
        a(f"s_lshl_b32 s{sC2}, s{sC2}, 1")
        a(f"s_lshr_b32 s{sT0}, s2, 7")
        a(f"s_add_u32 s{sC2}, s{sC2}, s{sT0}")
        a(f"s_bfe_u32 s{sR2}, s2, 0x40003")
        a(f"s_sub_u32 s{sT0}, s{sR2}, 10")
        a(f"s_mul_i32 s{sT1}, s{sT0}, 3")
        a(f"s_and_b32 s{sT1}, s{sT1}, 7")
        a(f"s_cmp_lt_u32 s{sR2}, 10")
        a(f"s_cselect_b32 s{sD0}, s{sR2}, s{sT0}")
        a(f"s_cselect_b32 s{sROT2}, s{sR2}, s{sT1}")
        a(f"s_cselect_b32 s{sT0}, 5, 4")
        a(f"s_lshl_b32 s{sT1}, s{sT0}, 1")
        a(f"s_bitcmp1_b32 s2, {FLIPBIT}")
        a(f"s_cselect_b32 s{sT0}, s{sT0}, 0")
        a(f"s_add_u32 s{sROT2}, s{sROT2}, s{sT0}")
        a(f"s_cmp_ge_u32 s{sROT2}, s{sT1}")
        a(f"s_cselect_b32 s{sT1}, s{sT1}, 0")
        a(f"s_sub_u32 s{sROT2}, s{sROT2}, s{sT1}")

    def softmax2(self, D, P, E, T, hook=None):
        a = self.a
        L = f"s[{sLOG2E}:{sLOG2E+1}]"
        def both(fn):
            for e in range(2): fn(e)
        def mx(e):
            d, t = D[e], T[e]
            a(f"v_max3_f32 v{t}, v{d}, v{d+1}, v{d+2}")
            a(f"v_max3_f32 v{t+1}, -v{d}, -v{d+1}, -v{d+2}")
            for i in (3, 5, 7):
                a(f"v_max3_f32 v{t}, v{t}, v{d+i}, v{d+i+1}")
                a(f"v_max3_f32 v{t+1}, v{t+1}, -v{d+i}, -v{d+i+1}")
            a(f"v_max_f32 v{t}, v{t}, v{d+9}")
            a(f"v_max_f32_e64 v{t+1}, v{t+1}, -v{d+9}")
        both(mx)
        both(lambda e: a(f"v_permlane32_swap_b32 v{T[e]}, v{T[e]+1}"))
        both(lambda e: a(f"v_max_f32 v{T[e]}, v{T[e]}, v{T[e]+1}"))
        both(lambda e: a(f"v_mov_b32 v{T[e]+1}, v{T[e]}"))
        both(lambda e: a(f"v_permlane32_swap_b32 v{T[e]}, v{T[e]+1}"))
        both(lambda e: a(f"v_pk_mul_f32 v[{T[e]+2}:{T[e]+3}], v[{T[e]}:{T[e]+1}], {L} neg_lo:[0,1] neg_hi:[0,1]"))
        for i in range(5):
            for e in range(2):
                d, t, x = D[e] + 2*i, T[e] + 2, E[e] + 2*i
                a(f"v_pk_fma_f32 v[{x}:{x+1}], v[{d}:{d+1}], {L}, v[{t}:{t+1}] op_sel:[0,0,0] op_sel_hi:[1,1,0]")
                a(f"v_pk_fma_f32 v[{x+10}:{x+11}], v[{d}:{d+1}], {L}, v[{t}:{t+1}] op_sel:[0,0,1] op_sel_hi:[1,1,1] neg_lo:[0,1,0] neg_hi:[0,1,0]")
        for i in range(20):
            for e in range(2):
                a(f"v_exp_f32 v{E[e]+i}, v{E[e]+i}")
        if hook: hook()
        for e in range(2):
            x, t = E[e], T[e]
            a(f"v_pk_add_f32 v[{t}:{t+1}], v[{x}:{x+1}], v[{x+2}:{x+3}]")
            a(f"v_pk_add_f32 v[{t+2}:{t+3}], v[{x+10}:{x+11}], v[{x+12}:{x+13}]")
        for i in (4, 6, 8):
            for e in range(2):
                x, t = E[e], T[e]
                a(f"v_pk_add_f32 v[{t}:{t+1}], v[{t}:{t+1}], v[{x+i}:{x+i+1}]")
                a(f"v_pk_add_f32 v[{t+2}:{t+3}], v[{t+2}:{t+3}], v[{x+10+i}:{x+11+i}]")
        for e in range(2):
            t = T[e]
            a(f"v_add_f32 v{t}, v{t}, v{t+1}")
            a(f"v_add_f32 v{t+1}, v{t+2}, v{t+3}")
        both(lambda e: a(f"v_permlane32_swap_b32 v{T[e]}, v{T[e]+1}"))
        both(lambda e: a(f"v_add_f32 v{T[e]}, v{T[e]}, v{T[e]+1}"))
        both(lambda e: a(f"v_rcp_f32 v{T[e]}, v{T[e]}"))
        both(lambda e: a(f"v_mov_b32 v{T[e]+1}, v{T[e]}"))
        both(lambda e: a(f"v_permlane32_swap_b32 v{T[e]}, v{T[e]+1}"))
        for i in range(5):
            for e in range(2):
                x, t = E[e] + 2*i, T[e]
                a(f"v_pk_mul_f32 v[{x}:{x+1}], v[{x}:{x+1}], v[{t}:{t+1}] op_sel:[0,0] op_sel_hi:[1,0]")
                a(f"v_pk_mul_f32 v[{x+10}:{x+11}], v[{x+10}:{x+11}], v[{t}:{t+1}] op_sel:[0,1] op_sel_hi:[1,1]")
        for i in range(10):
            for e in range(2):
                a(f"v_cvt_pk_bf16_f32 v{P[e]+i}, v{E[e]+2*i}, v{E[e]+2*i+1}")

    def compute(self):
        a = self.a
        ws = self.ws
        U = 16; ACC = 56; OPS = 120; SC = 200; TMP = 220
        vX0, vX1, vW0, vW1 = 4, 5, 6, 7
        vPA, vPD = 8, 9
        vJ, vGm, vN, vHH = 10, 11, 12, 13
        self.stamp(0)
        SQ = S_R4
        rq = f"s[{SQ}:{SQ+3}]"
        a(f"v_and_b32 v{vJ}, 15, v1")
        a(f"v_lshrrev_b32 v{vGm}, 4, v1")
        a(f"v_min_u32 v2, 14, v{vJ}")
        a(f"v_mul_u32_u24 v3, 52, v2")
        a(f"v_lshrrev_b32 v3, 8, v3")
        a(f"v_mul_u32_u24 v3, {1280 - 80}, v3")
        a(f"v_lshl_add_u32 v2, v2, 4, v3")
        a(f"v_mul_u32_u24 v3, 3840, v{vGm}")
        a(f"v_add_u32 v2, v2, v3")
        a(f"v_add_u32 v3, {4*3840 - 1024}, v2")
        a(f"s_mul_i32 s{sT0}, s{sC}, {40*3840}")
        a(f"s_mul_i32 s{sT1}, s{sG}, 80")
        a(f"s_add_u32 s{sT0}, s{sT0}, s{sT1}")
        a(f"s_mul_i32 s{sT1}, s{sW}, {8*3840}")
        a(f"s_add_u32 s{sT1}, s{sT0}, s{sT1}")
        a(f"s_add_u32 s{sT0}, s{sT0}, {32*3840}")
        a(f"s_cmp_lg_u32 s{sW}, 0")
        a(f"s_cselect_b32 s{sT0}, {OOB}, s{sT0}")
        a(f"s_lshl_b32 s{sT2}, s{sW}, 11")
        a(f"s_mov_b32 m0, s{sT2}")
        a("s_waitcnt lgkmcnt(0)")
        a.srd(SQ, P_WQKV, 2457600)
        if not RLLATE:
            a(f"buffer_load_dwordx4 v2, {rq}, s{sT1} offen {NTQ*'nt'} lds")
            a(f"buffer_load_dwordx4 v3, {rq}, s{sT1} offen offset:1024 {NTQ*'nt'} lds")
            a(f"s_add_u32 m0, s{sT2}, 8192")
            a(f"buffer_load_dwordx4 v2, {rq}, s{sT0} offen {NTQ*'nt'} lds")
            a(f"buffer_load_dwordx4 v3, {rq}, s{sT0} offen offset:1024 {NTQ*'nt'} lds")
        else:
            a(f"v_mov_b32 v198, v2")
            a(f"v_mov_b32 v199, v3")
            a(f"s_mov_b32 s{sKS}, s{sT0}")
            a(f"s_mov_b32 s{sKSW}, s{sT1}")
        vS = 130
        a.srd(S_WS, P_WS, WS_BYTES)
        a("v_mov_b32 v2, 0")
        a(f"buffer_load_dword v15, v2, {ws}, 0 offen sc1")
        a(f"v_min_u32 v3, 39, v1")
        a(f"s_mul_i32 s{sT1}, s{sG}, 40")
        a(f"v_add_lshl_u32 v2, v3, s{sT1}, 1")
        a(f"s_cmp_eq_u32 s{sW}, 1")
        a(f"s_cselect_b32 s{sT0}, 0, {OOB}")
        a.srd(S_R1, P_LRE, 1280); a.srd(S_R2, P_LIM, 1280); a.srd(S_R3, P_LDT, 1280)
        a(f"buffer_load_ushort v{vS+1}, v2, s[{S_R1}:{S_R1+3}], s{sT0} offen")
        a(f"buffer_load_ushort v{vS+2}, v2, s[{S_R2}:{S_R2+3}], s{sT0} offen")
        a(f"buffer_load_ushort v{vS+3}, v2, s[{S_R3}:{S_R3+3}], s{sT0} offen")
        a(f"v_mul_u32_u24 v2, 40, v3")
        a(f"s_mul_i32 s{sT1}, s{sG}, 1600")
        a(f"s_cmp_eq_u32 s{sW}, 2")
        a(f"s_cselect_b32 s{sT0}, s{sT1}, {OOB}")
        a.srd(SQ, P_WPHI, 25600)
        for i in range(5):
            a(f"buffer_load_dwordx2 v[{vS+4+2*i}:{vS+5+2*i}], v2, {rq}, s{sT0} offen offset:{8*i}")
        a(f"s_getpc_b64 s[{sM}:{sM+1}]")
        a.label("L_pc")
        a(f"s_lshr_b32 s{sT0}, s2, 3")
        a(f"s_lshl_b32 s{sT0}, s{sT0}, 2")
        a(f"s_add_u32 s{sT0}, s{sT0}, s{sW}")
        a(f"s_lshl_b32 s{sT0}, s{sT0}, 8")
        a(f"v_and_b32 v2, 1, v1")
        a(f"v_lshl_add_u32 v2, v2, 7, s{sT0}")
        a(f"s_sub_u32 s{sM}, s{sM}, L_pc-{KNAME}")
        a(f"s_subb_u32 s{sM+1}, s{sM+1}, 0")
        a(f"v_min_u32 v2, L_end-{KNAME}, v2")
        a(f"global_load_dword v255, v2, s[{sM}:{sM+1}]")
        if RLLATE:
            a.srd(S_R1, P_WQKV, 2457600)
            r1_ = f"s[{S_R1}:{S_R1+3}]"
            a(f"buffer_load_dwordx4 v198, {r1_}, s{sKSW} offen {NTQ*'nt'} lds")
            a(f"buffer_load_dwordx4 v199, {r1_}, s{sKSW} offen offset:1024 {NTQ*'nt'} lds")
            a(f"s_add_u32 m0, s{sT2}, 8192")
            a(f"buffer_load_dwordx4 v198, {r1_}, s{sKS} offen {NTQ*'nt'} lds")
            a(f"buffer_load_dwordx4 v199, {r1_}, s{sKS} offen offset:1024 {NTQ*'nt'} lds")
        a(f"v_and_b32 v{vN}, 31, v1")
        a(f"v_lshrrev_b32 v{vHH}, 5, v1")
        t = 192
        a(f"v_and_b32 v{t}, 3, v1")
        a(f"v_lshl_add_u32 v{t}, v{vGm}, 2, v{t}")
        a(f"v_min_u32 v{t+1}, 14, v{t}")
        a(f"v_lshlrev_b32 v{t+1}, 3, v{t+1}")
        a(f"v_mov_b32 v{t+2}, 80")
        a(f"v_mov_b32 v{t+3}, 32")
        a(f"v_cmp_gt_u32 vcc, 10, v{t}")
        a(f"v_cndmask_b32 v{t+2}, v{t+2}, v{t+3}, vcc")
        a(f"v_mov_b32 v{t+3}, 72")
        a(f"v_cmp_eq_u32 vcc, 5, v{t}")
        a(f"v_cndmask_b32 v{t+2}, v{t+2}, v{t+3}, vcc")
        a(f"v_mov_b32 v{t+3}, 0")
        a(f"v_cmp_gt_u32 vcc, 5, v{t}")
        a(f"v_cndmask_b32 v{t+2}, v{t+2}, v{t+3}, vcc")
        a(f"v_add_u32 v{t+1}, v{t+1}, v{t+2}")
        a(f"v_bfe_u32 v{t+2}, v1, 2, 2")
        a(f"v_lshl_add_u32 v{t+1}, v{t+2}, 8, v{t+1}")
        vRL = t + 1
        a(f"v_add_u32 v{vRL}, s{sT2}, v{t+1}")
        a(f"s_add_u32 s{sT3}, s{sC}, s{sW}")
        a(f"s_and_b32 s{sT3}, s{sT3}, 1")
        a(f"v_mov_b32 v{t+2}, 512")
        a(f"v_mov_b32 v{t+3}, 448")
        a(f"v_cmp_lt_u32 vcc, 31, v1")
        a(f"v_cndmask_b32 v{t+2}, v{t+2}, v{t+3}, vcc")
        a(f"v_mul_lo_u32 v{t+2}, v{t+2}, s{sT3}")
        a(f"v_lshl_add_u32 v{t+2}, v{vN}, 4, v{t+2}")
        a(f"v_lshl_add_u32 v{t+2}, v{vHH}, 10, v{t+2}")
        a(f"v_mov_b32 v{t+3}, {OOB}")
        a(f"v_cmp_lt_u32 vcc, 59, v1")
        a(f"v_cndmask_b32 v{t+2}, v{t+2}, v{t+3}, vcc")
        vRS = t + 2
        a(f"s_mul_i32 s{sT2}, s{sG}, 153600")
        a(f"s_add_u32 s{sT2}, s{sT2}, {WS_WP}")
        a(f"s_mul_i32 s{sT4}, s{sC}, 5")
        a(f"s_add_u32 s{sT4}, s{sT4}, s{sW}")
        a(f"s_lshr_b32 s{sT4}, s{sT4}, 1")
        a(f"s_mul_i32 s{sT4}, s{sT4}, 3840")
        a(f"s_add_u32 s{sT4}, s{sT4}, s{sT2}")
        a(f"s_add_u32 s{sT5}, s{sT4}, 7680")
        a(f"s_cmp_lg_u32 s{sW}, 0")
        a(f"s_cselect_b32 s{sT5}, {OOB}, s{sT5}")
        R = 176
        def relayout():
            for m in range(2):
                for e in range(2):
                    r = R + 8*m + 4*e
                    a(f"ds_read_b64_tr_b16 v[{r}:{r+1}], v{vRL} offset:{8192*m + 40*e}")
                    a(f"ds_read_b64_tr_b16 v[{r+2}:{r+3}], v{vRL} offset:{8192*m + 40*e + 1024}")
            for m in range(2):
                for e in range(2):
                    r = R + 8*m + 4*e
                    a(f"s_waitcnt lgkmcnt({6 - 2*(2*m+e)})")
                    a(f"buffer_store_dwordx4 v[{r}:{r+3}], v{vRS}, {ws}, s{sRL1 if m == 0 else sRL2} offen offset:{1920*e} sc1")
        sRL1, sRL2 = sLX, sLW
        a(f"s_mov_b32 s{sRL1}, s{sT4}")
        a(f"s_mov_b32 s{sRL2}, s{sT5}")
        if RLIT < 0:
            a("s_waitcnt vmcnt(10)")
            relayout()
        if 'sprof' in self.opts: self.stamp(5)
        a(f"v_lshrrev_b32 v14, 1, v{vJ}")
        a(f"v_xor_b32 v14, v14, v{vGm}")
        a(f"v_lshlrev_b32 v14, 4, v14")
        a(f"v_lshl_add_u32 v14, v{vJ}, 7, v14")
        a(f"s_lshl_b32 s{sT0}, s{sW}, 12")
        a(f"v_add_u32 v{vX0}, s{sT0}, v14")
        a(f"v_add_u32 v{vW0}, 16384, v14")
        a(f"v_xor_b32 v{vX1}, 64, v{vX0}")
        a(f"v_xor_b32 v{vW1}, 64, v{vW0}")
        self.poll_addr(vPA, WS_FLAG_W, sG)
        self.flag_addr(sM2, WS_FLAG_W, sG, sC, 4, sW)
        self.p2_role()
        for i in range(40): a(f"v_mov_b32 v{U+i}, 0")
        a(f"s_waitcnt vmcnt({4 if RLIT < 0 else (4 if RLLATE else 0)})")
        self.tag_from(15)
        vXA = [4, 5, 6, 7]; vWA = 15; vSEG = 14; vXA0 = 254; vTB = 255
        a(f"v_bfe_u32 v14, v1, 1, 3")
        a(f"v_xor_b32 v14, v14, v{vHH}")
        a(f"v_lshlrev_b32 v14, 4, v14")
        a(f"v_lshl_add_u32 v14, v{vN}, 7, v14")
        a(f"s_lshl_b32 s{sT0}, s{sW}, 12")
        a(f"s_add_u32 s{sT0}, s{sT0}, 0x10000")
        a(f"v_add_u32 v{vXA0}, s{sT0}, v14")
        a(f"v_lshlrev_b32 v{vWA}, 4, v1")
        a(f"v_add_u32 v{vWA}, {0x10000 + 16384}, v{vWA}")
        a(f"v_mul_u32_u24 v{vSEG}, 80, v{vJ}")
        a(f"v_lshl_add_u32 v{vSEG}, v{vGm}, 2, v{vSEG}")
        a(f"s_lshl_b32 s{sT0}, s{sW}, 4")
        a(f"s_add_u32 s{sT0}, s{sT0}, {L_SEG}")
        a(f"v_add_u32 v{vSEG}, s{sT0}, v{vSEG}")
        a(f"v_lshlrev_b32 v{vTB}, 5, v{vJ}")
        self.side_jobs(vS)
        for i in range(64): a(f"v_mov_b32 v{ACC+i}, 0")
        a("s_barrier")
        self.stamp(1)
        if 'clk' in self.opts: a(f"s_memtime s[{sPT+14}:{sPT+15}]")
        def b_reads(st, kx, kw):
            b = OPS + 28*st
            for tr in range(2):
                a(f"ds_read_b128 v[{b+4*tr}:{b+4*tr+3}], v{kx} offset:{RING + 2048*tr}")
            for tc in range(5):
                a(f"ds_read_b128 v[{b+8+4*tc}:{b+8+4*tc+3}], v{kw} offset:{RING + 2048*tc}")
        def b_mfma(st):
            b = OPS + 28*st
            for tc in range(5):
                for tr in range(2):
                    d = U + 8*tc + 4*tr
                    a(f"v_mfma_f32_16x16x32_bf16 v[{d}:{d+3}], v[{b+4*tr}:{b+4*tr+3}], v[{b+8+4*tc}:{b+8+4*tc+3}], v[{d}:{d+3}]")
        b_reads(0, vX0, vW0)
        a(f"s_mov_b32 s{sIT}, 0")
        def inter(ms, rs):
            per = -(-len(rs) // max(1, len(ms) - 1)) if rs else 0
            ri = 0
            for i, m in enumerate(ms):
                a(m)
                for _ in range(per):
                    if ri < len(rs): a(rs[ri]); ri += 1
            while ri < len(rs): a(rs[ri]); ri += 1
        def b_reads_l(st, kx, kw):
            b = OPS + 28*st
            return ([f"ds_read_b128 v[{b+4*tr}:{b+4*tr+3}], v{kx} offset:{RING + 2048*tr}" for tr in range(2)] +
                    [f"ds_read_b128 v[{b+8+4*tc}:{b+8+4*tc+3}], v{kw} offset:{RING + 2048*tc}" for tc in range(5)])
        def b_mfma_l(st):
            b = OPS + 28*st
            return [f"v_mfma_f32_16x16x32_bf16 v[{U+8*tc+4*tr}:{U+8*tc+4*tr+3}], v[{b+4*tr}:{b+4*tr+3}], v[{b+8+4*tc}:{b+8+4*tc+3}], v[{U+8*tc+4*tr}:{U+8*tc+4*tr+3}]"
                    for tc in range(5) for tr in range(2)]
        self.inter = inter
        a("s_waitcnt lgkmcnt(0)")
        a.label("LB_loop")
        inter(b_mfma_l(0)[:8], b_reads_l(1, vX1, vW1))
        a(f"v_add_u32 v{vX0}, 0x8000, v{vX0}")
        a(f"v_add_u32 v{vW0}, 0x8000, v{vW0}")
        a(b_mfma_l(0)[8])
        a(f"v_and_b32 v{vX0}, 0x1ffff, v{vX0}")
        a(f"v_and_b32 v{vW0}, 0x1ffff, v{vW0}")
        a(b_mfma_l(0)[9])
        a(f"v_xor_b32 v{vX1}, 64, v{vX0}")
        a(f"v_xor_b32 v{vW1}, 64, v{vW0}")
        if RLIT >= 0:
            a(f"s_cmp_lg_u32 s{sIT}, {RLIT}")
            a("s_cbranch_scc1 LB_nr")
            a("s_waitcnt vmcnt(0)")
            relayout()
            a.label("LB_nr")
        a(f"s_cmp_lg_u32 s{sIT}, {WFLAG_IT if RLIT < 0 else RLIT + 2}")
        a("s_cbranch_scc1 LB_nf")
        a("s_waitcnt vmcnt(0)")
        self.flag_store(sM2, 2)
        a.label("LB_nf")
        a(f"s_cmp_lg_u32 s{sW}, 0")
        a("s_cbranch_scc1 LB_np")
        a(f"s_cmp_lg_u32 s{sIT}, {WGATE-3}")
        a("s_cbranch_scc1 LB_n5")
        self.poll_issue(vPA, vPD)
        a.label("LB_n5")
        a(f"s_cmp_lg_u32 s{sIT}, {WGATE-1}")
        a("s_cbranch_scc1 LB_np")
        self.poll_wait(vPA, vPD)
        a.label("LB_np")
        a("s_waitcnt lgkmcnt(0)")
        for m in b_mfma_l(1)[:2]: a(m)
        a("s_barrier")
        inter(b_mfma_l(1)[2:], b_reads_l(0, vX0, vW0))
        a(f"s_add_u32 s{sIT}, s{sIT}, 1")
        a(f"s_cmp_lt_u32 s{sIT}, 10")
        a("s_waitcnt lgkmcnt(0)")
        a("s_cbranch_scc1 LB_loop")
        self.stamp(2)
        ds = []
        def dsi(txt, lab):
            a(txt); ds.append(lab)
        def dsw(lab):
            idxs = [i for i, l in enumerate(ds) if l == lab]
            if not idxs: return
            n = len(ds) - 1 - idxs[-1]
            a(f"s_waitcnt lgkmcnt({min(n, 15)})")
            del ds[:len(ds) - min(n, 15)]
        def a_reads_l(k):
            b = OPS + 20*k
            return ([f"ds_read_b128 v[{b}:{b+3}], v{vXA[k]} offset:{RING}"] +
                    [f"ds_read_b128 v[{b+4+4*f}:{b+7+4*f}], v{vWA} offset:{RING + (4*k+f)*1024}" for f in range(4)])
        def a_mfma_l(k):
            b = OPS + 20*k
            return [f"v_mfma_f32_32x32x16_bf16 v[{ACC+16*f}:{ACC+16*f+15}], v[{b+4+4*f}:{b+7+4*f}], v[{b}:{b+3}], v[{ACC+16*f}:{ACC+16*f+15}]" for f in range(4)]
        def ureg(tc, tt): return U + 8*tc + tt
        def emit_fill(q, n):
            k = 0
            while q and k < n:
                it = q.pop(0)
                if it[0] == 'i': a(it[1]); k += 1
                elif it[0] == 'ds': dsi(it[1], it[2]); k += 1
                elif it[0] == 'w': dsw(it[1])
        def a_stage(pre, post, npre, npost, last=False):
            def grp(ms, rs, lab, q, n):
                rs = list(rs)
                for i, m in enumerate(ms):
                    a(m)
                    for _ in range(2):
                        if rs: dsi(rs.pop(0), lab)
                    emit_fill(q, n)
            dsw('r0'); grp(a_mfma_l(0), a_reads_l(2), 'r2', pre, npre)
            dsw('r1'); grp(a_mfma_l(1), a_reads_l(3), 'r3', pre, npre)
            dsw('r2')
            m2 = a_mfma_l(2)
            a(m2[0])
            if not last:
                a(f"v_add_u32 v{vXA[0]}, 0x8000, v{vXA[0]}")
                a(f"v_add_u32 v{vWA}, 0x8000, v{vWA}")
                a(f"v_and_b32 v{vXA[0]}, 0x1ffff, v{vXA[0]}")
                a(f"v_and_b32 v{vWA}, 0x1ffff, v{vWA}")
            emit_fill(pre, npre)
            a(m2[1])
            if not last:
                for k in range(1, 4):
                    a(f"v_xor_b32 v{vXA[k]}, {32*k}, v{vXA[0]}")
            if pre is not post:
                emit_fill(pre, 1000)
                a("s_waitcnt lgkmcnt(0)"); del ds[:]
            else:
                dsw('r3')
            a("s_barrier")
            grp(m2[2:], a_reads_l(0) if not last else [], 'r0', post, npost)
            if not last: dsi(a_reads_l(0)[4], 'r0')
            grp(a_mfma_l(3), a_reads_l(1) if not last else [], 'r1', post, npost)
        a(f"v_mov_b32 v{vXA[0]}, v{vXA0}")
        for tc in range(5):
            dsi(f"ds_read_b128 v[{SC+4*tc}:{SC+4*tc+3}], v{vTB} offset:{L_TAB + 512*tc}", 'sc')
        for k in range(1, 4):
            a(f"v_xor_b32 v{vXA[k]}, {32*k}, v{vXA[0]}")
        for x in a_reads_l(0): dsi(x, 'r0')
        for x in a_reads_l(1): dsi(x, 'r1')
        self.stamp(3)
        if 'clk' in self.opts: a(f"s_memtime s[{sPT+10}:{sPT+11}]")
        f1 = [('w', 'sc')]
        A0, A1 = TMP, TMP + 5
        prev = [ureg(tc, 0) for tc in range(5)]
        for tt in range(1, 8):
            cur = A0 if tt % 2 else A1
            for tc in range(5):
                f1.append(('i', f"v_fma_f32 v{cur+tc}, v{SC+4*tc}, v{prev[tc]}, v{ureg(tc, tt)}"))
            for tc in range(5):
                f1.append(('i', f"v_fmac_f32_dpp v{cur+tc}, v{prev[tc]}, v{SC+4*tc+1} {DPP}"))
            prev = [cur + tc for tc in range(5)]
        for tc in range(5):
            f1.append(('ds', f"ds_write_b32 v{vSEG}, v{prev[tc]} offset:{1280*tc}", 'seg'))
        a_stage(f1, [], 8, 0)
        vHW, vHR, vHS = 2, 3, 15
        a(f"s_mov_b32 s{sIT}, 1")
        assert ds == ['r0']*5 + ['r1']*5
        a.label("LA_loop")
        a_stage([], [], 0, 0)
        a(f"s_add_u32 s{sIT}, s{sIT}, 1")
        a(f"s_cmp_lt_u32 s{sIT}, 10")
        a("s_cbranch_scc1 LA_loop")
        assert ds == ['r0']*5 + ['r1']*5
        fa = [('i', f"v_lshlrev_b32 v{vHW}, 6, v{vJ}"),
              ('i', f"v_lshl_add_u32 v{vHW}, v{vGm}, 4, v{vHW}"),
              ('i', f"v_add_u32 v{vHW}, s{sT0}, v{vHW}"),
              ('i', f"v_bfe_u32 v{vHR}, v1, 2, 2"),
              ('i', f"v_lshl_add_u32 v{vHR}, v{vHH}, 3, v{vHR}"),
              ('i', f"v_lshlrev_b32 v{vHR}, 6, v{vHR}"),
              ('i', f"v_bfe_u32 v{vHS}, v1, 4, 1"),
              ('i', f"v_lshl_add_u32 v{vHR}, v{vHS}, 5, v{vHR}"),
              ('i', f"v_and_b32 v{vHS}, 3, v1"),
              ('i', f"v_lshl_add_u32 v{vHR}, v{vHS}, 3, v{vHR}"),
              ('i', f"v_add_u32 v{vHR}, s{sT0}, v{vHR}"),
              ('i', f"v_lshl_add_u32 v{vHS}, v1, 4, s{sT2}"),
              ('i', f"s_mov_b32 s{sT0}, 4096")]
        SV = 120; OTm = [126, 134]; HPm = [142, 146]; HFm = [160, 164, 168, 172, 176]
        f2 = []
        for tc in range(5):
            f2.append(('ds', f"ds_read_b32 v{SV+tc}, v{vSEG} offset:{1280*tc}", 'sv'))
        f2.append(('w', 'sv'))
        prev = [SV + tc for tc in range(5)]
        for tt in range(8):
            for tc in range(5):
                u = ureg(tc, tt)
                f2.append(('i', f"v_fma_f32 v{u}, v{SC+4*tc}, v{prev[tc]}, v{u}"))
            for tc in range(5):
                u = ureg(tc, tt)
                f2.append(('i', f"v_fmac_f32_dpp v{u}, v{prev[tc]}, v{SC+4*tc+1} {DPP}"))
            prev = [ureg(tc, tt) for tc in range(5)]
        def hstore(tc):
            hf = HFm[tc]
            so = "0" if tc < 4 else f"s{sT0}"
            return [('w', f'ht{tc}'), ('i', f"buffer_store_dwordx4 v[{hf}:{hf+3}], v{vHS}, {ws}, {so} offen offset:{1024*(tc & 3)} sc1")]
        for tc in range(5):
            o = OTm[tc & 1]; hp = HPm[tc & 1]; hf = HFm[tc]
            for tt in range(8):
                f2.append(('i', f"v_mul_f32 v{o+tt}, v{SC+4*tc+2}, v{ureg(tc, tt)}"))
            for tt in range(8):
                f2.append(('i', f"v_fmac_f32_dpp v{o+tt}, v{ureg(tc, tt)}, v{SC+4*tc+3} {DPP}"))
            if tc: f2 += hstore(tc - 1)
            for i in range(4):
                f2.append(('i', f"v_cvt_pk_bf16_f32 v{hp+i}, v{o+2*i}, v{o+2*i+1}"))
            f2.append(('ds', f"ds_write_b128 v{vHW}, v[{hp}:{hp+3}] offset:{1024*(tc & 1)}", 'hw'))
            for rd in range(2):
                f2.append(('ds', f"ds_read_b64_tr_b16 v[{hf+2*rd}:{hf+2*rd+1}], v{vHR} offset:{1024*(tc & 1) + 256*rd}", f'ht{tc}'))
        f2 += hstore(4)
        del ds[:]
        def btail():
            a(f"s_lshl_b32 s{sT0}, s{sW}, 11")
            a(f"s_add_u32 s{sT0}, s{sT0}, {L_HT}")
            a(f"s_lshl_b32 s{sT1}, s{sC}, 2")
            a(f"s_add_u32 s{sT1}, s{sT1}, s{sW}")
            a(f"s_mul_i32 s{sT2}, s{sT1}, 81920")
            a(f"s_mul_i32 s{sT3}, s{sG}, 5120")
            a(f"s_add_u32 s{sT2}, s{sT2}, s{sT3}")
            a(f"s_add_u32 s{sT2}, s{sT2}, {WS_H}")
            emit_fill(f2, 5)
            emit_fill(fa, 1000)
            emit_fill(f2, 1000)
            self.flag_addr(sM2, WS_FLAG_H, sC, sW, 16, sG)
        self.stamp(4)
        if 'clk' in self.opts: a(f"s_memtime s[{sPT+12}:{sPT+13}]")
        WF = 160
        PK = 224
        v1a, v3a, v4a = 4, 5, 6
        a(f"v_bfe_u32 v7, v1, 2, 2")
        a(f"v_and_b32 v8, 3, v1")
        a(f"v_lshlrev_b32 v8, 3, v8")
        a(f"v_bfe_u32 v9, v1, 4, 1")
        a(f"v_lshl_add_u32 v8, v9, 5, v8")
        a(f"v_add_u32 v8, {L_WPH}, v8")
        a(f"v_lshl_add_u32 v{v1a}, v{vHH}, 2, v7")
        a(f"v_lshl_add_u32 v{v1a}, v{v1a}, 6, v8")
        a(f"v_add_u32 v9, 16, v7")
        a(f"v_mov_b32 v2, 20")
        a(f"v_cmp_lt_u32 vcc, 31, v1")
        a(f"v_cndmask_b32 v{v3a}, v9, v2, vcc")
        a(f"v_cndmask_b32 v{v4a}, v2, v9, vcc")
        a(f"v_lshl_add_u32 v{v3a}, v{v3a}, 6, v8")
        a(f"v_lshl_add_u32 v{v4a}, v{v4a}, 6, v8")
        a("s_waitcnt lgkmcnt(0)")
        for e in range(2):
            w = WF + 16*e; o = 1344*e
            a(f"ds_read_b64_tr_b16 v[{w+8}:{w+9}], v{v4a} offset:{o}")
            a(f"ds_read_b64_tr_b16 v[{w+10}:{w+11}], v{v1a} offset:{o}")
            a(f"ds_read_b64_tr_b16 v[{w+12}:{w+13}], v{v1a} offset:{o+512}")
            a(f"ds_read_b64_tr_b16 v[{w}:{w+1}], v{v1a} offset:{o}")
            a(f"ds_read_b64_tr_b16 v[{w+2}:{w+3}], v{v1a} offset:{o+512}")
            a(f"ds_read_b64_tr_b16 v[{w+4}:{w+5}], v{v3a} offset:{o}")
            for z in (6, 7, 14, 15): a(f"v_mov_b32 v{w+z}, 0")
        vIP, vIV = 7, 8
        a(f"v_mul_u32_u24 v{vIP}, {IMGP}, v{vN}")
        a(f"s_mul_i32 s{sT0}, s{sW}, {32*IMGP}")
        a(f"s_add_u32 s{sT0}, s{sT0}, {L_IMG}")
        a(f"v_add_u32 v{vIP}, s{sT0}, v{vIP}")
        a(f"v_lshl_add_u32 v{vIV}, v{vHH}, 3, v{vIP}")
        a(f"v_mul_u32_u24 v2, 40, v{vHH}")
        a(f"v_add_u32 v{vIP}, v{vIP}, v2")
        order = [4, 5, 6, 7, 8, 9, 10, 11, 0, 1, 2, 3, 12, 13, 14, 15]
        for i in order[:8]:
            for e in range(2):
                s = ACC + 32*e + 2*i
                a(f"v_cvt_pk_bf16_f32 v{PK+16*e+i}, v{s}, v{s+1}")
        DK = [120, 136]; DQ = [ACC, ACC + 16]
        a("s_waitcnt lgkmcnt(0)")
        for e in range(2):
            w = WF + 16*e; p = PK + 16*e
            a(f"v_mfma_f32_32x32x16_bf16 v[{DK[e]}:{DK[e]+15}], v[{w+8}:{w+11}], v[{p+4}:{p+7}], 0")
        for e in range(2):
            w = WF + 16*e; p = PK + 16*e
            a(f"v_mfma_f32_32x32x16_bf16 v[{DK[e]}:{DK[e]+15}], v[{w+12}:{w+15}], v[{p+8}:{p+11}], v[{DK[e]}:{DK[e]+15}]")
        for i in order[8:]:
            for e in range(2):
                s = ACC + 32*e + 2*i
                a(f"v_cvt_pk_bf16_f32 v{PK+16*e+i}, v{s}, v{s+1}")
        a(f"v_mov_b32 v2, 0x3f80")
        a(f"v_mov_b32 v3, 0")
        for e in range(2):
            p = PK + 16*e
            a(f"v_cndmask_b32 v{p+14}, v{p+14}, v2, vcc")
            a(f"v_cndmask_b32 v{p+15}, v{p+15}, v3, vcc")
        for e in range(2):
            w = WF + 16*e; p = PK + 16*e
            a(f"v_mfma_f32_32x32x16_bf16 v[{DQ[e]}:{DQ[e]+15}], v[{w}:{w+3}], v[{p}:{p+3}], 0")
        for e in range(2):
            w = WF + 16*e; p = PK + 16*e
            a(f"v_mfma_f32_32x32x16_bf16 v[{DQ[e]}:{DQ[e]+15}], v[{w+4}:{w+7}], v[{p+4}:{p+7}], v[{DQ[e]}:{DQ[e]+15}]")
        for e in range(2):
            p = PK + 16*e
            for m in range(3):
                a(f"ds_write_b64 v{vIV}, v[{p+10+2*m}:{p+11+2*m}] offset:{160 + 48*e + 16*m}")
        E = [88, 152]; T = [108, 112]
        PKK = [PK, PK + 16]
        self.softmax2(DK, PKK, E, T)
        for e in range(2):
            for m in range(5):
                a(f"ds_write_b64 v{vIP}, v[{PKK[e]+2*m}:{PKK[e]+2*m+1}] offset:{80*e + 8*m}")
        a(f"v_and_b32 v2, 1, v{vGm}")
        a(f"v_lshlrev_b32 v2, 4, v2")
        a(f"v_bfe_u32 v3, v1, 2, 2")
        a(f"v_lshl_add_u32 v2, v3, 2, v2")
        a(f"v_lshl_add_u32 v2, v{vHH}, 1, v2")
        a(f"v_mul_u32_u24 v2, {IMGP}, v2")
        a(f"v_and_b32 v3, 3, v1")
        a(f"v_lshl_add_u32 v2, v3, 3, v2")
        a(f"s_lshr_b32 s{sT0}, s{sW}, 1")
        a(f"s_and_b32 s{sT1}, s{sW}, 1")
        a(f"s_mul_i32 s{sT2}, s{sT0}, 80")
        a(f"s_add_u32 s{sT2}, s{sT2}, {L_IMG}")
        vKA, vKB = 6, 7
        a(f"v_add_u32 v{vKA}, s{sT2}, v2")
        a(f"s_mul_i32 s{sT2}, s{sT0}, 48")
        a(f"s_lshl_b32 s{sT3}, s{sT1}, 5")
        a(f"s_add_u32 s{sT2}, s{sT2}, s{sT3}")
        a(f"s_add_u32 s{sT2}, s{sT2}, {L_IMG + 160}")
        a(f"v_add_u32 v4, s{sT2}, v2")
        vKS, vKS2 = 8, 9
        a(f"s_lshl_b32 s{sT2}, s{sG}, 4")
        a(f"s_add_u32 s{sT2}, s{sT2}, s{sC}")
        a(f"s_mul_i32 s{sT2}, s{sT2}, {KVPITCH}")
        a(f"s_mul_i32 s{sT3}, s{sT0}, 1680")
        a(f"s_add_u32 s{sT2}, s{sT2}, s{sT3}")
        a(f"s_add_u32 s{sT2}, s{sT2}, {WS_KVP}")
        a(f"s_lshl_b32 s{sT3}, s{sT1}, 4")
        a(f"v_add_u32 v2, s{sT3}, v{vJ}")
        a(f"v_mul_u32_u24 v3, 21, v{vGm}")
        a(f"v_add_u32 v3, v3, v2")
        a(f"v_lshl_add_u32 v5, v3, 3, s{sT2}")
        a(f"v_mov_b32 v3, {OOB}")
        a(f"v_cmp_lt_u32 vcc, 20, v2")
        a(f"v_cndmask_b32 v5, v5, v3, vcc")
        a(f"v_cmp_lt_u32 vcc, 31, v1")
        a(f"v_cndmask_b32 v{vKS2}, v5, v3, vcc")
        vKB = 4; vKS = 5
        a("s_waitcnt lgkmcnt(0)")
        a("s_barrier")
        FA = 120
        FB = 88
        DKV = 180
        for k in range(4):
            for rd in range(2):
                a(f"ds_read_b64_tr_b16 v[{FB+4*k+2*rd}:{FB+4*k+2*rd+1}], v{vKB} offset:{k*32*IMGP + rd*IMGP}")
            for ft in range(3):
                for rd in range(2):
                    r = FA + 12*k + 4*ft + 2*rd
                    a(f"ds_read_b64_tr_b16 v[{r}:{r+1}], v{vKA} offset:{k*32*IMGP + rd*IMGP + 32*ft}")
        for k in range(4):
            a(f"s_waitcnt lgkmcnt({min(15, 8*(3-k))})")
            for ft in range(3):
                r = FA + 12*k + 4*ft; d = DKV + 4*ft
                c = "0" if k == 0 else f"v[{d}:{d+3}]"
                a(f"v_mfma_f32_16x16x32_bf16 v[{d}:{d+3}], v[{r}:{r+3}], v[{FB+4*k}:{FB+4*k+3}], {c}")
        a(f"v_mov_b32 v2, 0x10001")
        self.tagpat(sT0, sT1)
        for i in range(6):
            a(f"v_cvt_pk_bf16_f32 v{DKV+12+i}, v{DKV+2*i}, v{DKV+2*i+1}")
        for i in range(6):
            a(f"v_bfi_b32 v{DKV+12+i}, v2, s{sT0 + (i & 1)}, v{DKV+12+i}")
        for ft in range(3):
            d = DKV + 12 + 2*ft
            a(f"buffer_store_dwordx2 v[{d}:{d+1}], v{vKS2 if ft == 2 else vKS}, {ws}, 0 offen offset:{672*ft} sc1")
        a("s_barrier")
        PQ = [224, 236]
        E = [88, 120]; T = [108, 112]
        self.softmax2(DQ, PQ, E, T)
        for e in range(2):
            a(f"v_mov_b32 v{PQ[e]+10}, 0")
            a(f"v_mov_b32 v{PQ[e]+11}, 0")
        if 'clk' not in self.opts: self.stamp(5)
        SO, SXB = S_R1, S_R2
        ro = f"s[{SO}:{SO+3}]"; rxb = f"s[{SXB}:{SXB+3}]"
        a.srd(SO, P_OUT, 2048*1280*4)
        a.srd(SXB, P_BX, 2621440)
        vF, vO, vA0 = 4, 5, 6
        a(f"s_lshl_b32 s{sIT}, s{sC2}, 2")
        a(f"s_add_u32 s{sIT}, s{sIT}, s{sW}")
        a(f"s_lshl_b32 s{sT2}, s{sIT}, 5")
        a(f"v_lshl_add_u32 v2, v{vHH}, 2, s{sT2}")
        for i in range(64): a(f"v_mov_b32 v{ACC+i}, 0")
        a(f"s_cmp_ge_u32 s{sR2}, 10")
        a("s_cbranch_scc1 L_early_a")
        a(f"s_lshl_b32 s{sT3}, s{sD0}, 6")
        a(f"v_add_lshl_u32 v3, v{vN}, s{sT3}, 1")
        a(f"v_mul_u32_u24 v8, 1280, v2")
        a(f"v_add_u32 v8, v8, v3")
        a(f"v_mov_b32 v9, v3")
        a(f"v_mul_u32_u24 v{vO}, 5120, v2")
        a(f"v_lshl_add_u32 v{vO}, v3, 1, v{vO}")
        a(f"v_add_u32 v{vO}, 2560, v{vO}")
        a(f"s_mul_i32 s{sT4}, s{sIT}, 81920")
        a(f"s_add_u32 s{sT4}, s{sT4}, {WS_H}")
        a(f"v_lshl_add_u32 v{vF}, v1, 4, s{sT4}")
        a(f"v_bfe_u32 v{vA0}, v1, 1, 3")
        a(f"v_lshlrev_b32 v{vA0}, 4, v{vA0}")
        a(f"v_lshl_add_u32 v{vA0}, v{vN}, 7, v{vA0}")
        a(f"v_lshl_add_u32 v{vA0}, v{vHH}, 13, v{vA0}")
        a("s_branch L_early_e")
        a.label("L_early_a")
        a(f"s_lshl_b32 s{sT3}, s{sD0}, 7")
        a(f"v_add_lshl_u32 v3, v{vN}, s{sT3}, 2")
        a(f"v_mul_u32_u24 v{vO}, 5120, v2")
        a(f"v_add_u32 v{vO}, v{vO}, v3")
        a(f"s_mul_i32 s{sT4}, s{sIT}, 40960")
        a(f"s_add_u32 s{sT4}, s{sT4}, {WS_O}")
        a(f"v_lshl_add_u32 v{vF}, v1, 4, s{sT4}")
        a(f"v_bfe_u32 v3, v1, 2, 2")
        a(f"v_mul_u32_u24 v{vA0}, 320, v3")
        a(f"v_lshl_add_u32 v{vA0}, v{vHH}, 11, v{vA0}")
        a(f"v_bfe_u32 v3, v1, 4, 1")
        a(f"v_lshl_add_u32 v{vA0}, v3, 5, v{vA0}")
        a(f"v_and_b32 v3, 3, v1")
        a(f"v_lshl_add_u32 v{vA0}, v3, 3, v{vA0}")
        a(f"v_mov_b32 v8, 0")
        a(f"v_mov_b32 v9, 0")
        a.label("L_early_e")
        def skiploads():
            a.srd(S_R3, P_DSK, 1280)
            a(f"buffer_load_ushort v14, v9, s[{S_R3}:{S_R3+3}], 0 offen")
            a(f"buffer_load_ushort v15, v9, s[{S_R3}:{S_R3+3}], 0 offen offset:64")
            for r in range(16):
                a(f"s_mov_b32 s{sT6}, {(8*(r >> 2) + (r & 3))*1280}")
                for t in range(2):
                    a(f"buffer_load_short_d16_hi v{216+16*t+r}, v8, {rxb}, s{sT6} offen offset:{64*t}")
        btail()
        if 'clk' not in self.opts: self.stamp(6)
        a(f"s_lshl_b32 s{sT1}, s{sC}, 2")
        a(f"s_add_u32 s{sT1}, s{sT1}, s{sW}")
        a(f"s_add_u32 s{sT5}, s{sM2}, {WS_FLAG_O - WS_FLAG_H}")
        a(f"v_mul_u32_u24 v2, 112, v{vN}")
        a(f"v_mul_u32_u24 v3, 48, v{vHH}")
        a(f"v_add_u32 v7, v2, v3")
        a(f"s_mul_i32 s{sT2}, s{sT1}, 40960")
        a(f"s_lshr_b32 s{sT3}, s{sG}, 1")
        a(f"s_mul_i32 s{sT3}, s{sT3}, 5120")
        a(f"s_add_u32 s{sT2}, s{sT2}, s{sT3}")
        a(f"s_add_u32 s{sT2}, s{sT2}, {WS_O}")
        a(f"v_lshl_add_u32 v14, v1, 4, s{sT2}")
        a(f"s_and_b32 s{sT3}, s{sG}, 1")
        a(f"s_lshl_b32 s{sT4}, s{sT3}, 11")
        a(f"s_lshl_b32 s{sT3}, s{sT3}, 3")
        a(f"s_add_u32 s{sT3}, s{sT3}, 4096")
        a(f"s_lshl_b32 s{sT1}, s{sW}, 6")
        a(f"s_add_u32 s{sT2}, s{sT1}, {WS_FLAG_O - WS_FLAG_H}")
        a(f"s_cmp_ge_u32 s{sR2}, 10")
        a(f"s_cselect_b32 s{sT1}, s{sT2}, s{sT1}")
        vPA2 = 10
        self.poll_addr(vPA2, WS_FLAG_H, sC2, 15, sT1)
        a("s_waitcnt vmcnt(0)")
        self.flag_store(sM2, 2)
        a("s_barrier")
        self.poll_issue(vPA2, 13)
        KF = 120
        for e in range(2):
            for k in range(3):
                r = KF + 12*e + 4*k
                a(f"ds_read_b128 v[{r}:{r+3}], v7 offset:{L_KVI + 3584*e + 16*k}")
        DO = [16, 32]
        a("s_waitcnt lgkmcnt(0)")
        for k in range(3):
            for e in range(2):
                r = KF + 12*e + 4*k; d = DO[e]
                c = "0" if k == 0 else f"v[{d}:{d+15}]"
                a(f"v_mfma_f32_32x32x16_bf16 v[{d}:{d+15}], v[{r}:{r+3}], v[{PQ[e]+4*k}:{PQ[e]+4*k+3}], {c}")
        OP = 144
        for e in range(2):
            a(f"v_add_f32 v{DO[e]+10}, 0x358637bd, v{DO[e]+10}")
        for e in range(2):
            a(f"v_rcp_f32 v{DO[e]+10}, v{DO[e]+10}")
        for i in range(5):
            for e in range(2):
                d = DO[e]
                a(f"v_pk_mul_f32 v[{d+2*i}:{d+2*i+1}], v[{d+2*i}:{d+2*i+1}], v[{d+10}:{d+11}] op_sel:[0,0] op_sel_hi:[1,0]")
        for e in range(2):
            for i in range(5):
                a(f"v_cvt_pk_bf16_f32 v{OP+5*e+i}, v{DO[e]+2*i}, v{DO[e]+2*i+1}")
        a(f"buffer_store_dwordx4 v[{OP}:{OP+3}], v14, {ws}, s{sT4} offen sc1")
        a(f"buffer_store_dwordx4 v[{OP+4}:{OP+7}], v14, {ws}, s{sT4} offen offset:1024 sc1")
        a(f"buffer_store_dwordx2 v[{OP+8}:{OP+9}], v14, {ws}, s{sT3} offen sc1")
        a("s_waitcnt vmcnt(0)")
        self.flag_store(sT5, 2)
        if 'clk' not in self.opts: self.stamp(7)
        self.stamp_flush(160, 0)
        a("s_barrier")
        HR = 120
        vAD = [7, 8, 9, 11]
        WB = 184
        a(f"s_cmp_eq_u32 s{sR2}, 15")
        a("s_cbranch_scc1 L_end")
        a(f"s_cmp_ge_u32 s{sR2}, 10")
        a("s_cbranch_scc1 LP2_A")
        SK = 216
        for i in range(32): a(f"v_mov_b32 v{SK+i}, 0")
        self.poll_wait(vPA2, 13)
        skiploads()
        self.stamp(0)
        a(f"s_lshl_b32 s{sKS}, s{sROT2}, 13")
        def ld(slot, kk):
            r = HR + 4*slot
            so = sKS if kk < 4 else sKSW
            return f"buffer_load_dwordx4 v[{r}:{r+3}], v{vF}, {ws}, s{so} offen offset:{1024*(kk & 3)} sc1"
        def adv(step, lim):
            a(f"s_add_u32 s{sKS}, s{sKS}, {step}")
            a(f"s_cmp_eq_u32 s{sKS}, {lim}")
            a(f"s_cselect_b32 s{sKS}, 0, s{sKS}")
        def lds_adv(step):
            a(f"v_add_u32 v{vAD[0]}, s{sLW}, v{vA0}")
            a(f"s_add_u32 s{sLW}, s{sLW}, {step}")
            a(f"s_cmp_ge_u32 s{sLW}, {LDS_TOTAL}")
            a(f"s_cselect_b32 s{sLW}, 0, s{sLW}")
        for st in range(2):
            a(f"s_add_u32 s{sKSW}, s{sKS}, 4096")
            for kk in range(8): a(ld(8*st + kk, kk))
            adv(8192, 81920)
        a(f"s_mov_b32 s{sIT}, 0")
        a(f"s_mov_b32 s{sLW}, {RING}")
        def rdB(rho):
            b = WB + 8*(rho & 3)
            return [f"v_xor_b32 v{vAD[1 + (rho & 1)]}, {16*(rho & 7)}, v{vAD[0]}"] + \
                   [f"ds_read_b128 v[{b+4*t}:{b+4*t+3}], v{vAD[1 + (rho & 1)]} offset:{4096*t}" for t in range(2)]
        lds_adv(16384)
        for rho in range(3):
            for x in rdB(rho): a(x)
        a.label("LP2B_loop")
        a(f"s_cmp_ge_u32 s{sIT}, 4")
        a(f"s_cselect_b32 s{sKS}, {OOB}, s{sKS}")
        for sidx in range(16):
            st, kk = sidx >> 3, sidx & 7
            rho = sidx + 3
            if kk == 0: a(f"s_add_u32 s{sKSW}, s{sKS}, 4096")
            if rho == 16:
                a(f"s_cmp_ge_u32 s{sIT}, 4")
                a("s_cbranch_scc1 LP2B_nb")
                a("s_barrier")
                a.label("LP2B_nb")
            if rho in (8, 16): lds_adv(16384)
            rr = rdB(rho)
            a(rr[0])
            a(f"s_waitcnt vmcnt(15) lgkmcnt(4)")
            b = WB + 8*(sidx & 3); h = HR + 4*sidx
            for t in range(2):
                d = ACC + 16*t
                a(f"v_mfma_f32_32x32x16_bf16 v[{d}:{d+15}], v[{h}:{h+3}], v[{b+4*t}:{b+4*t+3}], v[{d}:{d+15}]")
                a(rr[1+t])
            a(ld(sidx, kk))
            if kk == 7: adv(8192, 81920)
        a(f"s_cmp_lg_u32 s{sIT}, 1")
        a("s_cbranch_scc1 LP2B_ns")
        a(f"v_lshlrev_b32 v14, 16, v14")
        a(f"v_lshlrev_b32 v15, 16, v15")
        for t in range(2):
            for r in range(0, 16, 2):
                x = SK + 16*t + r
                a(f"v_mul_f32 v{x}, v{x}, v{14+t}")
                a(f"v_mul_f32 v{x+1}, v{x+1}, v{14+t}")
                a(f"v_cvt_pk_bf16_f32 v{x+1}, v{x}, v{x+1}")
                a(f"v_lshlrev_b32 v{x}, 16, v{x+1}")
                a(f"v_and_b32 v{x+1}, 0xffff0000, v{x+1}")
        a.label("LP2B_ns")
        self.itstamp()
        a(f"s_add_u32 s{sIT}, s{sIT}, 1")
        a(f"s_cmp_lt_u32 s{sIT}, 5")
        a("s_cbranch_scc1 LP2B_loop")
        self.stamp(1)
        for r in range(16):
            a(f"s_mov_b32 s{sT4}, {(8*(r >> 2) + (r & 3))*5120}")
            for t in range(2):
                a(f"v_add_f32 v{ACC+16*t+r}, v{ACC+16*t+r}, v{SK+16*t+r}")
                a(f"buffer_store_dword v{ACC+16*t+r}, v{vO}, {ro}, s{sT4} offen offset:{128*t} {self.ost}")
        a("s_branch LP2_end")
        a.label("LP2_A")
        self.poll_issue(vPA2, 13)
        self.poll_wait(vPA2, 13)
        self.stamp(0)
        HA = 120
        WBA = [16, 32, None]
        def wreg(buf, t):
            if buf < 2: return WBA[buf] + 4*t
            return [48, 52, 248, 252][t]
        a(f"s_mul_i32 s{sKS}, s{sROT2}, 5120")
        def ldA(u):
            kk = u % 5
            if kk == 0: a(f"s_add_u32 s{sKSW}, s{sKS}, 4096")
            r = HA + 4*(u % 32)
            so = sKS if kk < 4 else sKSW
            a(f"buffer_load_dwordx4 v[{r}:{r+3}], v{vF}, {ws}, s{so} offen offset:{1024*(kk & 3)} sc1")
            if kk == 4: adv(5120, 40960)
        vLP = [7, 8, 9, 11]
        vT2 = [2, 3, 10, 12]
        for t in range(4):
            a(f"v_xor_b32 v{vLP[t]}, {64*t}, v{vA0}")
        def rdA(u, t):
            base = (RING + 4096*u) % LDS_TOTAL
            w = wreg(u % 3, t)
            return [f"v_add_u32 v{vT2[t]}, {base}, v{vLP[t]}"] + \
                   [f"ds_read_b64_tr_b16 v[{w+2*rd}:{w+2*rd+1}], v{vT2[t]} offset:{1024*rd}" for rd in range(2)]
        for u in range(32): ldA(u)
        ds = []
        def rd_issue(u, t):
            r = rdA(u, t)
            a(r[0]); a(r[1]); a(r[2]); ds.extend([(u, t)]*2)
        def rd_wait(u, t):
            idx = [i for i, l in enumerate(ds) if l == (u, t)]
            n = len(ds) - 1 - idx[-1] if idx else None
            if n is not None: del ds[:len(ds) - min(n, 15)]
            return n
        def ostore(t, r):
            a(f"s_mov_b32 s{sT4}, {(8*(r >> 2) + (r & 3))*5120}")
            a(f"buffer_store_dword v{ACC+16*t+r}, v{vO}, {ro}, s{sT4} offen offset:{128*t} {self.ost}")
        order = [(s_ - SKEW*t, t) for s_ in range(40 + 3*SKEW) for t in range(4) if 0 <= s_ - SKEW*t < 40]
        nxt = {}
        for t in range(4):
            for u in range(2): rd_issue(u, t)
        nld = 32; vm_done = -1; nst = 0
        pend = []
        lastpos = {t: max(i for i, x in enumerate(order) if x[1] == t) for t in range(4)}
        for i, (u, t) in enumerate(order):
            if t == 0 and u + 2 in (20, 30): a("s_barrier")
            n = rd_wait(u, t)
            w = []
            if u > vm_done:
                w.append(f"vmcnt({min(63, nld - 1 - u + nst)})"); vm_done = u
            if n is not None: w.append(f"lgkmcnt({min(n, 15)})")
            if w: a("s_waitcnt " + " ".join(w))
            h = HA + 4*(u % 32); d = ACC + 16*t; bb = wreg(u % 3, t)
            a(f"v_mfma_f32_32x32x16_bf16 v[{d}:{d+15}], v[{h}:{h+3}], v[{bb}:{bb+3}], v[{d}:{d+15}]")
            if u + 2 < 40: rd_issue(u + 2, t)
            if t == 3 and u < 8: ldA(32 + u); nld += 1
            for tt in range(4):
                if i == lastpos[tt] + 3: pend += [(tt, r) for r in range(16)]
            for _ in range(3):
                if pend: ostore(*pend.pop(0)); nst += 1
            if self.prof and t == 0 and u % 10 == 9: self.stamp(3 + u // 10)
        done_t = {tt for tt in range(4) if lastpos[tt] + 3 < len(order)}
        rest = pend + [(tt, r) for tt in range(4) if tt not in done_t for r in range(16)]
        a(f"s_xor_b32 s{sT0}, s2, 80")
        a(f"s_or_b32 s{sT0}, s{sT0}, s{sW}")
        a(f"s_cmp_lg_u32 s{sT0}, 0")
        a(f"s_cselect_b32 s{sT1}, {OOB}, 0")
        a(f"s_mul_i32 s{sTAG}, s{sTAG}, {pow(KMUL, -1, 1 << 32):#x}")
        self.flag_store(sT1, 2)
        self.stamp(1)
        for x in rest: ostore(*x)
        a.label("LP2_end")
        if self.prof:
            a("s_waitcnt vmcnt(0)")
        self.stamp(2)
        self.stamp_flush(160, 1)
        a("s_endpgm")

    def loader(self):
        a = self.a
        ws = self.ws
        SX, SB, SXA, STR = S_R1, S_R2, S_R3, S_R4
        rx = f"s[{SX}:{SX+3}]"; rb = f"s[{SB}:{SB+3}]"; rxa = f"s[{SXA}:{SXA+3}]"; rt = f"s[{STR}:{STR+3}]"
        self.stamp(0)
        a(f"s_sub_u32 s{sL}, s{sW}, 4")
        if 'bprof' in self.opts: a("v_mov_b32 v255, 0")
        self.bstamp(32)
        out = []
        def issue(txt, lab):
            a(txt); out.append(lab)
        def wait_for(lab):
            idx = max(i for i, l in enumerate(out) if l == lab)
            n = len(out) - 1 - idx
            assert n <= 63
            a(f"s_waitcnt vmcnt({n})")
            del out[:idx+1]
        vXB = [4, 5, 6, 7]; vXA = [8, 9, 10, 11]; vBM = [12, 13, 14]; vWP = [28, 29, 30, 31]; vT = 15; vTW = 27
        sTLO, sTHI = sM, sM + 1
        a(f"s_lshl_b32 s{sT1}, s{sC}, 7")
        a(f"s_mul_i32 s{sT3}, s{sG}, 40")
        a(f"s_and_b32 s{sT4}, s{sG}, 7")
        a(f"s_and_b32 s{sT5}, s{sC}, 3")
        a(f"s_lshl_b32 s{sT6}, s{sT5}, 1")
        a(f"s_add_u32 s{sT6}, s{sT6}, s{sT4}")
        a(f"s_and_b32 s{sM}, s{sT6}, 7")
        a(f"s_lshl_b32 s{sM}, s{sM}, 7")
        a(f"s_add_u32 s{sT6}, s{sT6}, s{sT5}")
        a(f"s_cmp_ge_u32 s{sT6}, 10")
        a(f"s_cselect_b32 s{sT5}, 10, 0")
        a(f"s_sub_u32 s{sT6}, s{sT6}, s{sT5}")
        a(f"s_lshl_b32 s{sM+1}, s{sT6}, 7")
        a(f"s_mov_b32 s{sM2}, s{sM+1}")
        a(f"v_lshrrev_b32 v2, 3, v1")
        a(f"v_and_b32 v3, 7, v1")
        a(f"v_lshrrev_b32 v16, 1, v2")
        a(f"v_xor_b32 v32, v3, v16")
        a(f"v_xor_b32 v33, 4, v32")
        a(f"v_lshlrev_b32 v32, 4, v32")
        a(f"v_lshlrev_b32 v33, 4, v33")
        a(f"s_lshl_b32 s{sT0}, s{sL}, 5")
        a(f"s_add_u32 s{sT0}, s{sT0}, s{sT1}")
        a(f"s_mul_i32 s{sT0}, s{sT0}, 1280")
        a(f"v_mul_u32_u24 v34, 1280, v2")
        a(f"v_lshrrev_b32 v35, 2, v2")
        a(f"v_lshlrev_b32 v35, 3, v35")
        a(f"v_and_b32 v36, 3, v2")
        a(f"v_add_u32 v35, v35, v36")
        a(f"v_mul_u32_u24 v35, 1280, v35")
        for i in range(4):
            a(f"v_add3_u32 v{vXB[i]}, v35, v{32 + (i & 1)}, s{sT0}")
            if i: a(f"v_add_u32 v{vXB[i]}, {(16*(i & 1) + 4*(i >> 1))*1280 - i*1024}, v{vXB[i]}")
        a(f"s_and_b32 s{sT1}, s{sL}, 1")
        a(f"s_lshl_b32 s{sT1}, s{sT1}, 6")
        a(f"v_xor_b32 v36, s{sT1}, v32")
        a(f"s_lshr_b32 s{sT2}, s{sL}, 1")
        a(f"s_lshl_b32 s{sT2}, s{sT2}, 3")
        a(f"s_add_u32 s{sT2}, s{sT2}, s{sT3}")
        a(f"s_mul_i32 s{sT2}, s{sT2}, 1280")
        a(f"v_add3_u32 v{vBM[0]}, v34, v36, s{sT2}")
        a(f"v_add_u32 v{vBM[1]}, {16*1280}, v{vBM[0]}")
        a(f"s_cmp_ge_u32 s{sL}, 2")
        a(f"s_cselect_b32 s{sT3}, {OOB}, {32*1280}")
        a(f"v_add_u32 v{vBM[2]}, s{sT3}, v{vBM[0]}")
        a(f"s_lshl_b32 s{sLX}, s{sL}, 12")
        a(f"s_lshl_b32 s{sLW}, s{sL}, 10")
        a("s_waitcnt lgkmcnt(0)")
        a.srd(SX, P_BX, 2621440)
        a(f"s_cmp_eq_u32 s{sT1}, 64")
        a(f"s_cselect_b32 s{SB}, s{P_BIM}, s{P_BRE}")
        a(f"s_cselect_b32 s{SB+1}, s{P_BIM+1}, s{P_BRE+1}")
        a(f"s_and_b32 s{SB+1}, s{SB+1}, 0xffff")
        a(f"s_mov_b32 s{SB+2}, 819200")
        a(f"s_mov_b32 s{SB+3}, 0x00020000")
        def adv(reg, lim=1280):
            a(f"s_add_u32 s{reg}, s{reg}, 128")
            a(f"s_cmp_ge_u32 s{reg}, {lim}")
            a(f"s_cselect_b32 s{reg}, 0, s{reg}")
        def stageB(S):
            sl = RING + (S % 4) * 32768
            a(f"s_add_u32 m0, s{sLX}, {sl}")
            if S < NLOCK:
                a(f"s_movk_i32 s{sKS}, {128*S}")
            else:
                a(f"s_add_u32 s{sKS}, s{sM}, {128*NLOCK}")
                adv(sM, 128*(10 - NLOCK))
            for i in range(4):
                issue(f"buffer_load_dwordx4 v{vXB[i]}, {rx}, s{sKS} offen offset:{1024*i} {'nt' if S < NTS else ''} lds", f'st{S}')
            for m in range(3):
                a(f"s_add_u32 m0, s{sLW}, {sl + 16384 + 4096*m}")
                issue(f"buffer_load_dwordx4 v{vBM[m]}, {rb}, s{sKS} offen {'nt' if S < NTS else ''} lds", f'st{S}')
        def stageAx(S):
            sl = RING + (S % 4) * 32768
            a(f"s_add_u32 m0, s{sLX}, {sl}")
            for i in range(4):
                issue(f"buffer_load_dwordx4 v{vXA[i]}, {rxa}, s{sM+1} offen offset:{1024*i} {'nt' if S < 10 + NTA else ''} lds", f'st{S}')
            adv(sM + 1)
        def stageAw(S):
            sl = RING + (S % 4) * 32768
            a(f"s_add_u32 m0, s{sLX}, {sl + 16384}")
            a(f"s_mul_i32 s{sKS}, s{sM2}, 120")
            for i in range(4):
                issue(f"buffer_load_dwordx4 v{vWP[i]}, {ws}, s{sKS} offen offset:{1024*i} sc1 lds", f'st{S}')
            adv(sM2)
        stageB(0); stageB(1)
        self.stamp(1)
        a.srd(S_WS, P_WS, WS_BYTES)
        vS = 26
        a("v_mov_b32 v2, 0")
        issue(f"buffer_load_dword v{vS}, v2, {ws}, 0 offen sc1", 'ep')
        a.srd(SXA, P_AX, 2621440)
        for i in range(4):
            a(f"v_add3_u32 v{vXA[i]}, v34, v{32 + (i & 1)}, s{sT0}")
            if i: a(f"v_add_u32 v{vXA[i]}, {i*8*1280 - i*1024}, v{vXA[i]}")
        a(f"s_mul_i32 s{sT2}, s{sG}, 153600")
        a(f"s_add_u32 s{sT2}, s{sT2}, {WS_WP}")
        a(f"s_mul_i32 s{sT3}, s{sL}, 3840")
        a(f"s_add_u32 s{sT3}, s{sT3}, s{sT2}")
        a(f"v_lshl_add_u32 v{vWP[0]}, v1, 4, s{sT3}")
        a(f"v_and_b32 v36, 31, v1")
        a(f"v_min_u32 v37, 27, v36")
        a(f"v_lshlrev_b32 v37, 4, v37")
        a(f"v_lshrrev_b32 v35, 5, v1")
        a(f"v_mul_u32_u24 v34, 448, v35")
        a(f"v_add3_u32 v{vWP[1]}, v37, v34, s{sT3}")
        a(f"v_subrev_u32 v{vWP[2]}, 128, v{vWP[0]}")
        a(f"v_subrev_u32 v{vWP[3]}, 128, v{vWP[1]}")
        vQ = 38
        a(f"v_and_b32 v{vQ}, 15, v1")
        a(f"v_add_u32 v{vQ}, 64, v{vQ}")
        a(f"s_cmp_eq_u32 s{sL}, 0")
        a(f"s_cselect_b64 vcc, -1, 0")
        a(f"v_cndmask_b32 v{vQ}, v{vQ}, v1, vcc")
        self.p2_role()
        self.reduce_addrs(0); self.reduce_addrs(1)
        self.p2_loader_setup()
        SG, TB, vSA = 40, 56, 39
        AG = 64
        def agg_loads(track):
            a(f"s_mul_i32 s{sT0}, s{sG}, {16*384}")
            a(f"s_add_u32 s{sT0}, s{sT0}, {WS_AGG}")
            a(f"v_lshl_add_u32 v3, v{vQ}, 2, s{sT0}")
            a(f"s_cmp_ge_u32 s{sL}, 2")
            a(f"s_cselect_b32 s{sT3}, 0, s{sC}")
            for m in range(15):
                a(f"s_sub_u32 s{sT1}, s{sT3}, {15 - m}")
                a(f"s_mul_i32 s{sT2}, s{sT1}, 384")
                a(f"s_cmp_lt_i32 s{sT1}, 0")
                a(f"s_cselect_b32 s{sT2}, {OOB}, s{sT2}")
                t = f"buffer_load_dword v{AG+m}, v3, {ws}, s{sT2} offen sc1"
                if track: issue(t, 'ag')
                else: a(t)
        for S in range(17):
            wait_for(f'st{S}')
            a("s_barrier")
            self.bstamp(S)
            if S == 0:
                self.stamp(2)
                stageB(2); stageB(3)
            elif S <= 6:
                stageB(S + 3)
            else:
                stageAx(S + 3)
                if S == WGATE:
                    for q in range(10, S + 4): stageAw(q)
                elif S > WGATE:
                    stageAw(S + 3)
            if S == 11:
                a(f"v_mul_u32_u24 v{vSA}, 80, v{vQ}")
                for m in range(4):
                    a(f"ds_read_b128 v[{SG+4*m}:{SG+4*m+3}], v{vSA} offset:{L_SEG + 16*m}")
                a(f"v_lshlrev_b32 v2, 5, v{vQ}")
                a(f"ds_read_b128 v[{TB}:{TB+3}], v2 offset:{L_TAB + 16}")
                a(f"s_lshl_b32 s{sT0}, s{sG}, 4")
                a(f"s_add_u32 s{sT0}, s{sT0}, s{sC}")
                a(f"s_mul_i32 s{sT0}, s{sT0}, 384")
                a(f"s_add_u32 s{sT0}, s{sT0}, {WS_AGG}")
                a(f"v_lshl_add_u32 v3, v{vQ}, 2, s{sT0}")
                a(f"s_cmp_ge_u32 s{sL}, 2")
                a(f"s_cselect_b32 s{sT5}, {OOB}, 0")
                a(f"v_mov_b32 v2, 0xfff")
                a("s_waitcnt lgkmcnt(0)")
                prev = SG
            if S in (11, 12, 13):
                for sg in range(1 + 5*(S - 11), 6 + 5*(S - 11)):
                    cur = 60 + (sg & 1)
                    a(f"v_fma_f32 v{cur}, v{TB}, v{prev}, v{SG+sg}")
                    a(f"v_fmac_f32_dpp v{cur}, v{prev}, v{TB+1} {DPP}")
                    prev = cur
            if S == 13:
                a(f"v_bfi_b32 v{prev}, v2, s{sTAG}, v{prev}")
                issue(f"buffer_store_dword v{prev}, v3, {ws}, s{sT5} offen sc1", 'agg')
            if S == 2:
                self.tag_from(vS)
            if S == KVZ:
                a(f"v_mov_b32 v60, 0")
                a(f"v_mov_b32 v61, 0")
                a(f"v_mul_u32_u24 v2, 112, v1")
                a(f"ds_write_b64 v2, v[60:61] offset:{L_KVI+40}")
                a(f"ds_write_b64 v2, v[60:61] offset:{L_KVI+88}")
                a("s_waitcnt lgkmcnt(0)")
        a(f"s_cmp_ge_u32 s{sL}, 2")
        a("s_cbranch_scc1 LL_hi")
        out_save = list(out)
        wait_for('st17'); a("s_barrier"); self.bstamp(17)
        wait_for('st18'); a("s_barrier"); self.bstamp(18)
        wait_for('st19'); a("s_barrier"); self.bstamp(19)
        a("s_barrier")
        self.bstamp(20)
        self.stamp(4, True)
        agg_loads(False)
        a("s_barrier")
        self.bstamp(21)
        a(f"s_mov_b32 s{sT7}, 0")
        a("s_waitcnt vmcnt(0)")
        a.label("LL_agchk")
        a("v_mov_b32 v62, 0")
        for m in range(15):
            a(f"s_cmp_ge_u32 s{sC}, {15 - m}")
            a(f"s_cselect_b32 s{sT0}, 0xfff, 0")
            a(f"v_xor_b32 v63, s{sTAG}, v{AG+m}")
            a(f"v_and_or_b32 v62, v63, s{sT0}, v62")
        a(f"v_cmp_ne_u32 vcc, 0, v62")
        a(f"s_cmp_lg_u64 vcc, 0")
        a("s_cbranch_scc1 LL_agretry")
        a.label("LL_agok")
        prev = AG
        for m in range(1, 15):
            cur = 60 + (m & 1) if m < 14 else 80
            a(f"v_fma_f32 v{cur}, v{TB+2}, v{prev}, v{AG+m}")
            a(f"v_fmac_f32_dpp v{cur}, v{prev}, v{TB+3} {DPP}")
            prev = cur
        SS = 80
        for sg in range(15):
            a(f"v_fma_f32 v{SS+sg+1}, v{TB}, v{SS+sg}, v{SG+sg}")
            a(f"v_fmac_f32_dpp v{SS+sg+1}, v{SS+sg}, v{TB+1} {DPP}")
        for m in range(4):
            a(f"ds_write_b128 v{vSA}, v[{SS+4*m}:{SS+4*m+3}] offset:{L_SEG + 16*m}")
        a("s_waitcnt lgkmcnt(0)")
        self.stamp(5, True)
        a("s_barrier")
        self.bstamp(22)
        a("s_branch LL_reduce")
        a.label("LL_agretry")
        agg_loads(False)
        a(f"s_add_u32 s{sT7}, s{sT7}, 1")
        a("s_waitcnt vmcnt(0)")
        a(f"s_cmp_lt_u32 s{sT7}, 0x40000")
        a("s_cbranch_scc1 LL_agchk")
        a("s_branch LL_agok")
        a.label("LL_hi")
        out[:] = out_save
        sK2 = sROT
        def piece(lo, hi, role=None):
            la = a.newlabel("Lpc_a"); le = a.newlabel("Lpc_e")
            if role is None:
                a(f"s_cmp_ge_u32 s{sR2}, 10")
                a(f"s_cbranch_scc1 {la}")
            for j in (range(lo // 4, hi // 4) if role != 'A' else []):
                base = (RING + 16384*j) % LDS_TOTAL
                for vv in range(2):
                    a(f"s_add_u32 m0, s{sL2X}, {base + 4096*vv}")
                    for i in range(4):
                        a(f"buffer_load_dwordx4 v{100+4*vv+i}, s[{S_R4}:{S_R4+3}], s{sK2} offen offset:{1024*i} lds")
                adv(sK2)
            if role is None:
                a(f"s_branch {le}")
                a.label(la)
            for u in (range(lo, hi) if role != 'B' else []):
                base = (RING + 4096*u) % LDS_TOTAL
                a(f"s_add_u32 m0, s{sL2X}, {base}")
                st = u % 5
                for vv in range(2):
                    a(f"buffer_load_dwordx4 v{100+5*vv+st}, s[{S_R4}:{S_R4+3}], s{sK2} offen offset:{1024*vv} lds")
                if st == 4:
                    a(f"s_add_u32 s{sK2}, s{sK2}, {80*1280}")
                    a(f"s_cmp_ge_u32 s{sK2}, {640*1280}")
                    a(f"s_cselect_b32 s{sK2}, 0, s{sK2}")
            if role is None: a.label(le)
            for u in range(lo, hi):
                out.extend([f'u{u}'] * 2)
        pre = 'nopre' not in self.opts
        wait_for('st17'); a("s_barrier")
        if pre: piece(0, 8)
        wait_for('st18'); a("s_barrier")
        if pre: piece(8, 16)
        wait_for('st19'); a("s_barrier")
        if pre: piece(16, 20)
        a("s_barrier")
        if 'pf2' in self.opts:
            la = a.newlabel("Lpf_a"); le = a.newlabel("Lpf_e")
            a(f"s_cmp_ge_u32 s{sR2}, 10")
            a(f"s_cbranch_scc1 {la}")
            a(f"s_lshl_b32 s{sT0}, s{sD0}, 6")
            a(f"v_add_u32 v2, s{sT0}, v1")
            a(f"v_mul_u32_u24 v2, 1280, v2")
            a(f"s_mov_b32 s{sT1}, s{sK2}")
            for i in range(5):
                a(f"buffer_load_dword v254, v2, s[{S_R4}:{S_R4+3}], s{sT1} offen")
                adv(sT1)
            a(f"s_branch {le}")
            a.label(la)
            a(f"s_min_u32 s{sT0}, s{sD0}, 4")
            a(f"s_lshl_b32 s{sT0}, s{sT0}, 8")
            a(f"s_sub_u32 s{sT1}, s{sL}, 2")
            a(f"s_lshl_b32 s{sT1}, s{sT1}, 7")
            a(f"s_add_u32 s{sT0}, s{sT0}, s{sT1}")
            a(f"v_mul_u32_u24 v2, 1280, v1")
            a(f"v_add_u32 v2, s{sK2}, v2")
            for i in range(5):
                a(f"v_subrev_u32 v3, {640*1280}, v2")
                a(f"v_min_u32 v3, v3, v2")
                a(f"buffer_load_dword v254, v3, s[{S_R4}:{S_R4+3}], s{sT0} offen")
                a(f"v_add_u32 v2, {64*1280}, v2")
            a.label(le)
        a("s_barrier")
        a("s_barrier")
        if P3X2: piece(20, 32)
        if 'gprof' in self.opts: self.stamp(5)
        a.label("LL_reduce")
        LA = [112 + 4*i for i in range(16)]
        vLA, vDA, vDA2, vDB, vDB2 = 16, 18, 19, 20, 21
        sCR = sM + 1
        sP0, sP1 = sT4, sT5
        vPR = 23
        self.tagpat(sP0, sP1)
        a(f"s_mov_b32 s{sT7}, 0")
        a(f"s_and_b32 s{sCR}, s{sC}, 3")
        a(f"s_mul_i32 s{sCR}, s{sCR}, {4*KVPITCH}")
        if 'bprof' in self.opts: a(f"s_mov_b32 s{sT6}, 0"); self.bstamp(26)
        def chk(r):
            for i in range(4):
                a(f"v_xor_b32 v{64+i}, s{sP0 if i % 2 == 0 else sP1}, v{r+i}")
            a(f"v_or3_b32 v72, v72, v64, v65")
            a(f"v_or3_b32 v72, v72, v66, v67")
        a.label("LL_probe")
        a(f"buffer_load_dwordx4 v[76:79], v{vPR}, {ws}, 0 offen sc1")
        a(f"s_add_u32 s{sT7}, s{sT7}, 1")
        a(f"s_cmp_ge_u32 s{sT7}, 0x40000")
        a("s_cbranch_scc1 LL_sum")
        a("v_mov_b32 v72, 0")
        a("s_waitcnt vmcnt(0)")
        chk(76)
        a(f"v_and_b32 v72, 0x10001, v72")
        a(f"v_cmp_ne_u32 vcc, 0, v72")
        a(f"s_cmp_lg_u64 vcc, 0")
        a("s_cbranch_scc1 LL_probe")
        self.stamp(6, True)
        self.bstamp(23)
        if 'bprof' in self.opts: a(f"s_add_u32 s{sT6}, s{sT6}, 1")
        a(f"s_mov_b32 s{sT0}, s{sCR}")
        for cc in range(16):
            a(f"buffer_load_dwordx4 v[{LA[cc]}:{LA[cc]+3}], v{vLA}, {ws}, s{sT0} offen sc1")
            if cc < 15:
                a(f"s_add_u32 s{sT0}, s{sT0}, {KVPITCH}")
                if cc % 4 == 3:
                    a(f"s_cmp_eq_u32 s{sT0}, {16*KVPITCH}")
                    a(f"s_cselect_b32 s{sT0}, 0, s{sT0}")
        AC, TP = 80, 88
        for cc in range(16):
            a(f"s_waitcnt vmcnt({15-cc})")
            chk(LA[cc])
            d = AC if cc == 0 else TP
            for i in range(4):
                a(f"v_lshlrev_b32 v{d+2*i}, 16, v{LA[cc]+i}")
                a(f"v_and_b32 v{d+2*i+1}, 0xffff0000, v{LA[cc]+i}")
            if cc:
                for i in range(4):
                    a(f"v_pk_add_f32 v[{AC+2*i}:{AC+2*i+1}], v[{AC+2*i}:{AC+2*i+1}], v[{TP+2*i}:{TP+2*i+1}]")
        a(f"v_and_b32 v72, v24, v72")
        a(f"v_cmp_ne_u32 vcc, 0, v72")
        a(f"s_cmp_lg_u64 vcc, 0")
        a("s_cbranch_scc1 LL_probe")
        a.label("LL_sum")
        if 'bprof' in self.opts:
            a(f"v_writelane_b32 v255, s{sT6}, 40")
            a(f"v_writelane_b32 v255, s{sT7}, 41")
        for i in range(4):
            a(f"v_cvt_pk_bf16_f32 v{TP+i}, v{AC+2*i}, v{AC+2*i+1}")
        a(f"ds_write_b64 v{vDA}, v[{TP}:{TP+1}]")
        a(f"ds_write_b64 v{vDA2}, v[{TP}:{TP+1}]")
        a(f"ds_write_b64 v{vDB}, v[{TP+2}:{TP+3}]")
        a(f"ds_write_b64 v{vDB2}, v[{TP+2}:{TP+3}]")
        a("s_waitcnt lgkmcnt(0)")
        self.stamp(7, True)
        self.bstamp(24)
        a("s_barrier")
        self.bstamp(25)
        self.bflush()
        self.stamp_flush(112, 0)
        a(f"s_cmp_lt_u32 s{sL}, 2")
        a("s_cbranch_scc1 L_end")
        if not pre:
            piece(0, 20)
            a("s_waitcnt vmcnt(0)")
        a("s_barrier")
        a(f"s_cmp_eq_u32 s{sR2}, 15")
        a("s_cbranch_scc1 L_end")
        out[:] = []
        if 'nop34' in self.opts: a(f"s_mov_b32 s{S_R4+2}, 0")
        la = a.newlabel("Ly_a")
        a(f"s_cmp_ge_u32 s{sR2}, 10")
        a(f"s_cbranch_scc1 {la}")
        piece(32 if P3X2 else 20, 40, 'B')
        a("s_barrier")
        if not P3X2: wait_for('u23')
        a("s_barrier")
        if not P3X2: wait_for('u31')
        a("s_barrier")
        wait_for('u39'); a("s_barrier")
        a("s_endpgm")
        a.label(la)
        out[:] = []
        piece(32 if P3X2 else 20, 40, 'A')
        if not P3X2: wait_for('u29')
        a("s_barrier")
        wait_for('u39'); a("s_barrier")
        a("s_endpgm")

    def reduce_addrs(self, part):
        a = self.a
        vLA, vLB, vDA, vDA2, vDB, vDB2 = 16, 17, 18, 19, 20, 21
        vt = 22
        if part == 0:
            a(f"v_subrev_u32 v{vt}, 256, v0")
            a(f"s_mul_i32 s{sT2}, s{sG}, {16*KVPITCH}")
            a(f"s_add_u32 s{sT2}, s{sT2}, {WS_KVP}")
            a(f"v_lshl_add_u32 v{vLA}, v{vt}, 4, s{sT2}")
            a(f"v_cmp_lt_u32 vcc, 209, v{vt}")
            a(f"v_mov_b32 v2, {OOB}")
            a(f"v_cndmask_b32 v{vLA}, v{vLA}, v2, vcc")
            a(f"v_mov_b32 v24, 0x10001")
            a(f"v_mov_b32 v2, 0")
            a(f"v_cndmask_b32 v24, v24, v2, vcc")
            a(f"v_and_b32 v23, 15, v1")
            a(f"v_mul_u32_u24 v23, {KVPITCH}, v23")
            a(f"v_bfe_u32 v2, v1, 4, 1")
            a(f"v_lshl_add_u32 v23, v2, 4, v23")
            a(f"s_lshr_b32 s{sT3}, s{sL}, 1")
            a(f"s_mul_i32 s{sT3}, s{sT3}, 1680")
            a(f"s_add_u32 s{sT2}, s{sT2}, s{sT3}")
            a(f"s_and_b32 s{sT3}, s{sL}, 1")
            a(f"s_lshl_b32 s{sT3}, s{sT3}, 7")
            a(f"s_add_u32 s{sT2}, s{sT2}, s{sT3}")
            a(f"s_add_u32 s{sT2}, s{sT2}, 1344")
            a(f"v_add_u32 v23, s{sT2}, v23")
        def lds_dst(qoff, vd, vd2, t0):
            q, e_, fq, dd, x, y = t0, t0+1, t0+2, t0+3, t0+4, t0+5
            a(f"v_lshl_add_u32 v{q}, v{vt}, 1, {qoff}")
            a(f"v_cmp_lt_u32 vcc, 209, v{q}")
            a(f"v_mov_b32 v{x}, 0")
            a(f"v_mov_b32 v{y}, 210")
            a(f"v_cndmask_b32 v{e_}, v{x}, v{y}, vcc")
            a(f"v_sub_u32 v{q}, v{q}, v{e_}")
            a(f"v_mov_b32 v{y}, {32*112}")
            a(f"v_cndmask_b32 v{e_}, v{x}, v{y}, vcc")
            a(f"v_mul_u32_u24 v{fq}, 3121, v{q}")
            a(f"v_lshrrev_b32 v{fq}, 16, v{fq}")
            a(f"v_mul_u32_u24 v{x}, 21, v{fq}")
            a(f"v_sub_u32 v{dd}, v{q}, v{x}")
            a(f"v_lshl_add_u32 v{e_}, v{fq}, 3, v{e_}")
            a(f"v_add_u32 v{x}, 8, v{e_}")
            a(f"v_cmp_lt_u32 vcc, 4, v{fq}")
            a(f"v_cndmask_b32 v{e_}, v{e_}, v{x}, vcc")
            a(f"v_subrev_u32 v{x}, 10, v{dd}")
            a(f"v_cmp_lt_u32 vcc, 9, v{dd}")
            a(f"v_cndmask_b32 v{x}, v{dd}, v{x}, vcc")
            a(f"v_mov_b32 v{y}, 0")
            a(f"v_mov_b32 v{q}, 4")
            a(f"v_cndmask_b32 v{y}, v{y}, v{q}, vcc")
            a(f"v_lshrrev_b32 v{q}, 2, v{x}")
            a(f"v_lshl_add_u32 v{y}, v{q}, 3, v{y}")
            a(f"v_and_b32 v{x}, 3, v{x}")
            a(f"v_add_u32 v{y}, v{y}, v{x}")
            a(f"v_mul_u32_u24 v{y}, 112, v{y}")
            a(f"v_add_u32 v{vd}, v{y}, v{e_}")
            a(f"v_subrev_u32 v{x}, {4*112}, v{vd}")
            a(f"v_cmp_eq_u32 vcc, 20, v{dd}")
            a(f"v_cndmask_b32 v{vd2}, v{vd}, v{x}, vcc")
        assert L_KVI == 0
        if part == 0:
            lds_dst(0, vDA, vDA2, 64)
            return
        lds_dst(1, vDB, vDB2, 64)
        a(f"v_mov_b32 v2, {L_DUM}")
        a(f"v_cmp_lt_u32 vcc, 209, v{vt}")
        a(f"v_cndmask_b32 v{vDA}, v{vDA}, v2, vcc")
        a(f"v_cndmask_b32 v{vDA2}, v{vDA2}, v2, vcc")
        a(f"v_cndmask_b32 v{vDB}, v{vDB}, v2, vcc")
        a(f"v_cndmask_b32 v{vDB2}, v{vDB2}, v2, vcc")

    def p2_loader_setup(self):
        a = self.a
        SW_ = S_R4
        la = a.newlabel("Lp2ls_a"); le = a.newlabel("Lp2ls_e")
        a(f"s_cmp_ge_u32 s{sR2}, 10")
        a(f"s_cbranch_scc1 {la}")
        a(f"s_cmp_eq_u32 s{sL}, 3")
        a(f"s_cselect_b32 s{SW_}, s{P_CIM}, s{P_CRE}")
        a(f"s_cselect_b32 s{SW_+1}, s{P_CIM+1}, s{P_CRE+1}")
        a(f"v_lshrrev_b32 v110, 3, v1")
        a(f"v_mul_u32_u24 v110, 1280, v110")
        a(f"s_mul_i32 s{sT0}, s{sD0}, {64*1280}")
        for vv in range(2):
            for i in range(4):
                a(f"v_add3_u32 v{100+4*vv+i}, v110, v{32 + (i & 1)}, s{sT0}")
                if i or vv: a(f"v_add_u32 v{100+4*vv+i}, {(32*vv + 8*i)*1280 - i*1024}, v{100+4*vv+i}")
        a(f"v_mov_b32 v108, v100")
        a(f"v_mov_b32 v109, v100")
        a(f"s_lshl_b32 s{sROT}, s{sROT2}, 7")
        a(f"s_sub_u32 s{sL2X}, s{sL}, 2")
        a(f"s_lshl_b32 s{sL2X}, s{sL2X}, 13")
        a(f"s_branch {le}")
        a.label(la)
        a(f"s_mov_b32 s{SW_}, s{P_WO}")
        a(f"s_mov_b32 s{SW_+1}, s{P_WO+1}")
        a(f"v_lshrrev_b32 v110, 4, v1")
        a(f"v_bfe_u32 v111, v1, 2, 2")
        a(f"v_xor_b32 v111, v111, v110")
        a(f"v_lshlrev_b32 v111, 6, v111")
        a(f"v_and_b32 v2, 3, v1")
        a(f"v_lshl_add_u32 v111, v2, 4, v111")
        a(f"s_min_u32 s{sT0}, s{sD0}, 4")
        a(f"s_lshl_b32 s{sT0}, s{sT0}, 8")
        a(f"v_add_u32 v111, s{sT0}, v111")
        a(f"s_sub_u32 s{sT0}, s{sL}, 2")
        a(f"s_mul_i32 s{sT0}, s{sT0}, 10")
        a(f"v_add_u32 v3, s{sT0}, v110")
        for vv in range(2):
            for st in range(4):
                base = 8*(st & 1) + 4*vv
                dst = 100 + 5*vv + st
                if base == 8:
                    a(f"v_add_u32 v2, 10, v3")
                    a(f"v_cmp_lt_u32 vcc, 1, v110")
                    a(f"v_cndmask_b32 v2, v3, v2, vcc")
                    a(f"v_add_u32 v2, {40*(st >> 1) + base}, v2")
                else:
                    a(f"v_add_u32 v2, {40*(st >> 1) + base + (10 if base > 8 else 0)}, v3")
                a(f"v_mul_u32_u24 v2, 1280, v2")
                a(f"v_add_u32 v{dst}, v2, v111")
                if vv: a(f"v_subrev_u32 v{dst}, 1024, v{dst}")
            dst = 100 + 5*vv + 4
            a(f"v_add_u32 v2, {40*vv + 26}, v3")
            a(f"v_mul_u32_u24 v2, 1280, v2")
            a(f"v_add_u32 v{dst}, v2, v111")
            if vv: a(f"v_subrev_u32 v{dst}, 1024, v{dst}")
        a(f"s_mul_i32 s{sROT}, s{sROT2}, {80*1280}")
        a(f"s_sub_u32 s{sL2X}, s{sL}, 2")
        a(f"s_lshl_b32 s{sL2X}, s{sL2X}, 11")
        a.label(le)
        a(f"s_and_b32 s{SW_+1}, s{SW_+1}, 0xffff")
        a(f"s_mov_b32 s{SW_+2}, 819200")
        a(f"s_mov_b32 s{SW_+3}, 0x00020000")

    def side_jobs(self, vS):
        a = self.a
        lend = a.newlabel("Lside_end"); l3 = a.newlabel("Lside3")
        a(f"s_cmp_eq_u32 s{sW}, 2")
        a(f"s_cbranch_scc1 {l3}")
        a(f"s_cmp_lg_u32 s{sW}, 1")
        a(f"s_cbranch_scc1 {lend}")
        lre, lim, ldt = 64, 65, 66
        a(f"v_lshlrev_b32 v{lre}, 16, v{vS+1}")
        a(f"v_lshlrev_b32 v{lim}, 16, v{vS+2}")
        a(f"v_lshlrev_b32 v{ldt}, 16, v{vS+3}")
        a(f"v_mul_f32 v{ldt}, s{sLOG2E}, v{ldt}")
        a(f"v_exp_f32 v{ldt}, v{ldt}")
        a(f"v_cvt_pk_bf16_f32 v{ldt}, v{ldt}, v{ldt}")
        a(f"v_lshlrev_b32 v{ldt}, 16, v{ldt}")
        a(f"v_mul_f32 v67, v{ldt}, v{lre}")
        a(f"v_mul_f32 v68, v{ldt}, v{lim}")
        a(f"v_mul_f32 v67, s{sLOG2E}, v67")
        a(f"v_exp_f32 v67, v67")
        a(f"v_mul_f32 v68, 0.15915494, v68")
        a(f"v_rndne_f32 v69, v68")
        a(f"v_sub_f32 v68, v68, v69")
        a(f"v_cos_f32 v69, v68")
        a(f"v_sin_f32 v70, v68")
        RE, IM = 72, 80
        a(f"v_mul_f32 v{RE}, v67, v69")
        a(f"v_mul_f32 v{IM+1}, v67, v70")
        a(f"v_mov_b32 v{IM}, v{RE}")
        a(f"v_sub_f32 v{RE+1}, 0, v{IM+1}")
        a(f"v_add_f32 v67, -1.0, v{RE}")
        a(f"v_mul_f32 v68, v{lre}, v{lre}")
        a(f"v_fmac_f32 v68, v{lim}, v{lim}")
        a(f"v_rcp_f32 v68, v68")
        a(f"v_mul_f32 v69, v67, v{lre}")
        a(f"v_fmac_f32 v69, v{IM+1}, v{lim}")
        a(f"v_mul_f32 v70, v{IM+1}, v{lre}")
        a(f"v_fma_f32 v70, -v67, v{lim}, v70")
        a(f"v_add_f32 v68, v68, v68")
        a(f"v_mul_f32 v{RE+2}, v69, v68")
        a(f"v_sub_f32 v{IM+2}, 0, v{RE+2}")
        a(f"v_mul_f32_e64 v{RE+3}, -v70, v68")
        a(f"v_mov_b32 v{IM+3}, v{RE+3}")
        x, y = RE, IM + 1
        for it in range(7):
            if it == 2: nx, ny = RE + 4, IM + 5
            elif it == 6: nx, ny = RE + 6, IM + 7
            else: nx, ny = (67, 68) if (x, y) != (67, 68) else (69, 70)
            a(f"v_mul_f32 v71, v{y}, v{y}")
            a(f"v_mul_f32 v{ny}, v{x}, v{y}")
            a(f"v_fma_f32 v{nx}, v{x}, v{x}, -v71")
            a(f"v_add_f32 v{ny}, v{ny}, v{ny}")
            x, y = nx, ny
        for o in (4, 6):
            a(f"v_mov_b32 v{IM+o}, v{RE+o}")
            a(f"v_sub_f32 v{RE+o+1}, 0, v{IM+o+1}")
        a(f"v_min_u32 v67, 39, v1")
        a(f"v_lshrrev_b32 v68, 3, v67")
        a(f"v_and_b32 v67, 7, v67")
        a(f"v_lshl_add_u32 v67, v68, 4, v67")
        a(f"v_lshlrev_b32 v67, 5, v67")
        a(f"ds_write_b128 v67, v[{RE}:{RE+3}] offset:{L_TAB}")
        a(f"ds_write_b128 v67, v[{RE+4}:{RE+7}] offset:{L_TAB+16}")
        a(f"ds_write_b128 v67, v[{IM}:{IM+3}] offset:{L_TAB+256}")
        a(f"ds_write_b128 v67, v[{IM+4}:{IM+7}] offset:{L_TAB+256+16}")
        a(f"s_branch {lend}")
        a.label(l3)
        for i in range(4): a(f"v_mov_b32 v{64+i}, 0")
        a(f"v_lshlrev_b32 v68, 4, v1")
        a(f"ds_write_b128 v68, v[64:67] offset:{L_WPH}")
        a(f"ds_write_b128 v68, v[64:67] offset:{L_WPH+1024}")
        a(f"v_min_u32 v68, {39*16}, v68")
        a(f"ds_write_b128 v68, v[64:67] offset:{L_WPH+2048}")
        a(f"v_min_u32 v64, 39, v1")
        a(f"v_add_u32 v65, 1, v64")
        a(f"v_cmp_lt_u32 vcc, 19, v64")
        a(f"v_cndmask_b32 v64, v64, v65, vcc")
        a(f"v_lshlrev_b32 v64, 6, v64")
        a(f"v_add_u32 v64, {L_WPH}, v64")
        for i, (o0, o1) in enumerate([(0, 1), (4, 5), (8, 2), (3, 6), (7, 10)]):
            a(f"ds_write2_b32 v64, v{vS+4+2*i}, v{vS+5+2*i} offset0:{o0} offset1:{o1}")
        a.label(lend)
        a("s_waitcnt lgkmcnt(0)")

    def build(self):
        a = self.a
        a.kernel_begin(KNAME, 256, 512, LDS_TOTAL)
        a.launch = [f"; @launch grid=(256,1,1) block=(512,1,1) lds={LDS_TOTAL}"] if 'single' in self.opts else a.launch
        self.prologue()
        self.loader()
        a.label("L_compute")
        self.compute()
        a.label("L_end")
        a("s_endpgm")
        a.kernel_end(KNAME, 256)
        return a

if __name__ == "__main__":
    for o in sys.argv[2:]:
        if '=' in o:
            kk, vv = o.split('='); globals()[kk] = int(vv)
    k = K(prof='prof' in sys.argv, opts=sys.argv[2:])
    a = k.build()
    hdr = "".join(open("concat_heads__linear_kernel_hedgehog__ssm_conv_s5__prompt.s.ref").read().splitlines(True)[:17]) if 'final' in sys.argv else ""
    open(sys.argv[1], "w").write(a.text(hdr))
```

```python
import sys
from asm2 import Asm

KNAME = "concat_heads__linear_kernel_hedgehog__ssm_conv_s5__prompt_kernel"
WS_FLAG_W, WS_FLAG_AG, WS_FLAG_KV, WS_FLAG_H, WS_FLAG_O = 0x1000, 0x2000, 0x3000, 0x4000, 0x5000
WS_PROF = 0x10000
WS_WP, WS_AGG, WS_KVP, WS_H, WS_O = 0x100000, 0x400000, 0x500000, 0x800000, 0xE00000
WS_BYTES = 0x1100000
OOB = 0x40000000
LDS_TOTAL = 163840
RING = 32768
L_STG = 0
L_TAB = 16384
L_WPH = L_TAB + 2560
L_SEG = L_WPH + 2688
L_KVI = 0
L_DUM = L_SEG + 6400
assert L_DUM + 64 <= RING
L_IMG = RING + 81920
L_HT = RING + 81920 + 33920
L_HT = 8192
IMGP = 264
P_AX, P_WQKV, P_WPHI, P_WO, P_BX, P_LRE, P_LIM, P_BRE, P_BIM, P_CRE, P_CIM, P_LDT, P_DSK, P_OUT, P_DBG, P_WS = [4 + 2*i for i in range(16)]
S_WS, S_R1, S_R2, S_R3, S_R4 = 36, 40, 44, 48, 52
sC, sG, sW, sROT, sTAG, sL = 56, 57, 58, 59, 60, 61
sT0, sT1, sT2, sT3, sT4, sT5, sT6, sT7 = 62, 63, 64, 65, 66, 67, 68, 69
sKS, sKSW, sLX, sLW, sIT, sC2 = 70, 71, 72, 73, 74, 75
sLOG2E = 76
sM = 78
sM2, sR2, sD0, sROT2 = 80, 81, 82, 83
sPT = 84
sL2X = 100
KMUL = 0x9e3779b1
KVPITCH = 3584
WFLAG_IT = 0
NLOCK = 0
TOUT = 0
TWS = 0
P3X2 = 1
HTOUCH = 0
SKEW = 2
SKIPE = 0
RLIT = -1
RLLATE = 0
KVZ = 4
SPEC = 2
GAHEAD = 6
NFILL = 6
FLIPBIT = 0
WGATE = 8
NTS = 4
NTQ = 1
NTA = 0
DPP = "row_ror:8 row_mask:0xf bank_mask:0xf"

class K:
    def __init__(self, prof=False, opts=()):
        self.a = Asm()
        self.prof = prof
        self.opts = opts
        self.ost = 'nt'
        self.ws = f"s[{S_WS}:{S_WS+3}]"

    def tag_from(self, v):
        a = self.a
        a(f"v_readfirstlane_b32 s{sTAG}, v{v}")
        a(f"s_add_u32 s{sTAG}, s{sTAG}, 1")
        a(f"s_mul_i32 s{sTAG}, s{sTAG}, {KMUL:#x}")

    def stamp(self, idx, late=False):
        if late and 'sprof' in self.opts: return
        if self.prof:
            self.a(f"s_memrealtime s[{sPT+2*idx}:{sPT+2*idx+1}]")

    def stamp_flush(self, vtmp, half=0):
        if not self.prof: return
        a = self.a
        a("s_waitcnt lgkmcnt(0)")
        a(f"s_lshl_b32 s{sT0}, s2, 3")
        a(f"s_add_u32 s{sT0}, s{sT0}, s{sW}")
        a(f"s_lshl_b32 s{sT0}, s{sT0}, 5")
        a(f"s_add_u32 s{sT0}, s{sT0}, {WS_PROF + 0x10000*half}")
        for i in range(8):
            a(f"v_mov_b32 v{vtmp+i}, s{sPT+2*i}")
        a(f"v_mov_b32 v{vtmp+8}, s{sT0}")
        a("s_mov_b64 exec, 1")
        a(f"buffer_store_dwordx4 v[{vtmp}:{vtmp+3}], v{vtmp+8}, {self.ws}, 0 offen")
        a(f"buffer_store_dwordx4 v[{vtmp+4}:{vtmp+7}], v{vtmp+8}, {self.ws}, 0 offen offset:16")
        a("s_mov_b64 exec, -1")
        a("s_waitcnt vmcnt(0)")

    def bstamp(self, idx):
        if 'bprof' not in self.opts: return
        a = self.a
        a(f"s_memrealtime s[{sPT}:{sPT+1}]")
        a("s_waitcnt lgkmcnt(0)")
        a(f"v_writelane_b32 v255, s{sPT}, {idx}")

    def bflush(self):
        if 'bprof' not in self.opts: return
        a = self.a
        a(f"s_lshl_b32 s{sT0}, s2, 3")
        a(f"s_add_u32 s{sT0}, s{sT0}, s{sW}")
        a(f"s_lshl_b32 s{sT0}, s{sT0}, 8")
        a(f"s_add_u32 s{sT0}, s{sT0}, {WS_PROF + 0x40000}")
        a(f"v_lshl_add_u32 v254, v1, 2, s{sT0}")
        a(f"buffer_store_dword v255, v254, {self.ws}, 0 offen")
        a("s_waitcnt vmcnt(0)")

    def itstamp(self):
        if not self.prof: return
        a = self.a
        a(f"s_memrealtime s[{sM}:{sM+1}]")
        a(f"s_lshl_b32 m0, s{sIT}, 1")
        a("s_waitcnt lgkmcnt(0)")
        a(f"s_movreld_b32 s{sPT+6}, s{sM}")

    def tagpat(self, s0, s1):
        a = self.a
        a(f"s_lshl_b32 s{s0}, s{sTAG}, 15")
        a(f"s_and_b32 s{s1}, s{sTAG}, 1")
        a(f"s_or_b32 s{s0}, s{s0}, s{s1}")
        a(f"s_lshl_b32 s{s1}, s{sTAG}, 13")
        a(f"s_bfe_u32 s{sT7}, s{sTAG}, 0x10002")
        a(f"s_or_b32 s{s1}, s{s1}, s{sT7}")

    def flag_store(self, soff, vt):
        a = self.a
        a(f"v_mov_b32 v{vt}, 0")
        a(f"v_mov_b32 v{vt+1}, s{sTAG}")
        a("s_mov_b64 exec, 1")
        a(f"buffer_store_dword v{vt+1}, v{vt}, {self.ws}, s{soff} offen sc1")
        a("s_mov_b64 exec, -1")

    def flag_addr(self, sd, base, srow, scol, colmul, sidx):
        a = self.a
        a(f"s_mul_i32 s{sd}, s{scol}, {colmul}")
        a(f"s_add_u32 s{sd}, s{sd}, s{sidx}")
        a(f"s_lshl_b32 s{sd}, s{sd}, 2")
        a(f"s_lshl_b32 s{sT7}, s{srow}, 8")
        a(f"s_add_u32 s{sd}, s{sd}, s{sT7}")
        a(f"s_add_u32 s{sd}, s{sd}, {base}")

    def poll_issue(self, vaddr, vdst):
        self.a(f"buffer_load_dword v{vdst}, v{vaddr}, {self.ws}, 0 offen sc1")

    def poll_wait(self, vaddr, vdst, smask=None):
        a = self.a
        l0 = a.newlabel("Lpoll"); l1 = a.newlabel("Lpollok")
        a(f"s_mov_b32 s{sT7}, 0")
        a.label(l0)
        a("s_waitcnt vmcnt(0)")
        a(f"v_cmp_eq_u32 vcc, s{sTAG}, v{vdst}")
        if smask is None:
            a(f"s_cmp_eq_u64 vcc, -1")
        else:
            a(f"s_and_b32 s{sT6}, vcc_lo, s{smask}")
            a(f"s_cmp_eq_u32 s{sT6}, s{smask}")
        a(f"s_cbranch_scc1 {l1}")
        a("s_sleep 1")
        self.poll_issue(vaddr, vdst)
        a(f"s_add_u32 s{sT7}, s{sT7}, 1")
        a(f"s_cmp_lt_u32 s{sT7}, 0x40000")
        a(f"s_cbranch_scc1 {l0}")
        a("s_waitcnt vmcnt(0)")
        a.label(l1)

    def poll_addr(self, v, base, srow, lanemask=63, sextra=None):
        a = self.a
        a(f"s_lshl_b32 s{sT0}, s{srow}, 8")
        a(f"s_add_u32 s{sT0}, s{sT0}, {base}")
        if sextra is not None:
            a(f"s_add_u32 s{sT0}, s{sT0}, s{sextra}")
        a(f"v_and_b32 v{v}, {lanemask}, v1")
        a(f"v_lshl_add_u32 v{v}, v{v}, 2, s{sT0}")

    def prologue(self):
        a = self.a
        a("s_cmp_ge_u32 s2, 256")
        a("s_cbranch_scc1 L_end")
        a("s_load_dwordx16 s[4:19], s[0:1], 0")
        a("s_load_dwordx16 s[20:35], s[0:1], 64")
        a("v_lshrrev_b32 v2, 6, v0")
        a("v_and_b32 v1, 63, v0")
        a(f"v_readfirstlane_b32 s{sW}, v2")
        a(f"s_bfe_u32 s{sT0}, s2, 0x20001")
        a(f"s_lshl_b32 s{sT0}, s{sT0}, 2")
        a(f"s_bfe_u32 s{sT1}, s2, 0x20003")
        a(f"s_add_u32 s{sC}, s{sT0}, s{sT1}")
        a(f"s_and_b32 s{sT0}, s2, 1")
        a(f"s_lshl_b32 s{sT0}, s{sT0}, 3")
        a(f"s_lshr_b32 s{sT2}, s2, 5")
        a(f"s_add_u32 s{sG}, s{sT0}, s{sT2}")
        a(f"s_mov_b32 s{sLOG2E}, 0x3fb8aa3b")
        a(f"s_mov_b32 s{sLOG2E+1}, 0x3fb8aa3b")
        a(f"s_cmp_lt_u32 s{sW}, 4")
        a("s_cbranch_scc1 L_compute")

    def p2_role(self):
        a = self.a
        a(f"s_and_b32 s{sC2}, s2, 7")
        a(f"s_lshl_b32 s{sC2}, s{sC2}, 1")
        a(f"s_lshr_b32 s{sT0}, s2, 7")
        a(f"s_add_u32 s{sC2}, s{sC2}, s{sT0}")
        a(f"s_bfe_u32 s{sR2}, s2, 0x40003")
        a(f"s_sub_u32 s{sT0}, s{sR2}, 10")
        a(f"s_mul_i32 s{sT1}, s{sT0}, 3")
        a(f"s_and_b32 s{sT1}, s{sT1}, 7")
        a(f"s_cmp_lt_u32 s{sR2}, 10")
        a(f"s_cselect_b32 s{sD0}, s{sR2}, s{sT0}")
        a(f"s_cselect_b32 s{sROT2}, s{sR2}, s{sT1}")
        a(f"s_cselect_b32 s{sT0}, 5, 4")
        a(f"s_lshl_b32 s{sT1}, s{sT0}, 1")
        a(f"s_bitcmp1_b32 s2, {FLIPBIT}")
        a(f"s_cselect_b32 s{sT0}, s{sT0}, 0")
        a(f"s_add_u32 s{sROT2}, s{sROT2}, s{sT0}")
        a(f"s_cmp_ge_u32 s{sROT2}, s{sT1}")
        a(f"s_cselect_b32 s{sT1}, s{sT1}, 0")
        a(f"s_sub_u32 s{sROT2}, s{sROT2}, s{sT1}")

    def softmax2(self, D, P, E, T, hook=None):
        a = self.a
        L = f"s[{sLOG2E}:{sLOG2E+1}]"
        def both(fn):
            for e in range(2): fn(e)
        def mx(e):
            d, t = D[e], T[e]
            a(f"v_max3_f32 v{t}, v{d}, v{d+1}, v{d+2}")
            a(f"v_max3_f32 v{t+1}, -v{d}, -v{d+1}, -v{d+2}")
            for i in (3, 5, 7):
                a(f"v_max3_f32 v{t}, v{t}, v{d+i}, v{d+i+1}")
                a(f"v_max3_f32 v{t+1}, v{t+1}, -v{d+i}, -v{d+i+1}")
            a(f"v_max_f32 v{t}, v{t}, v{d+9}")
            a(f"v_max_f32_e64 v{t+1}, v{t+1}, -v{d+9}")
        both(mx)
        both(lambda e: a(f"v_permlane32_swap_b32 v{T[e]}, v{T[e]+1}"))
        both(lambda e: a(f"v_max_f32 v{T[e]}, v{T[e]}, v{T[e]+1}"))
        both(lambda e: a(f"v_mov_b32 v{T[e]+1}, v{T[e]}"))
        both(lambda e: a(f"v_permlane32_swap_b32 v{T[e]}, v{T[e]+1}"))
        both(lambda e: a(f"v_pk_mul_f32 v[{T[e]+2}:{T[e]+3}], v[{T[e]}:{T[e]+1}], {L} neg_lo:[0,1] neg_hi:[0,1]"))
        for i in range(5):
            for e in range(2):
                d, t, x = D[e] + 2*i, T[e] + 2, E[e] + 2*i
                a(f"v_pk_fma_f32 v[{x}:{x+1}], v[{d}:{d+1}], {L}, v[{t}:{t+1}] op_sel:[0,0,0] op_sel_hi:[1,1,0]")
                a(f"v_pk_fma_f32 v[{x+10}:{x+11}], v[{d}:{d+1}], {L}, v[{t}:{t+1}] op_sel:[0,0,1] op_sel_hi:[1,1,1] neg_lo:[0,1,0] neg_hi:[0,1,0]")
        for i in range(20):
            for e in range(2):
                a(f"v_exp_f32 v{E[e]+i}, v{E[e]+i}")
        if hook: hook()
        for e in range(2):
            x, t = E[e], T[e]
            a(f"v_pk_add_f32 v[{t}:{t+1}], v[{x}:{x+1}], v[{x+2}:{x+3}]")
            a(f"v_pk_add_f32 v[{t+2}:{t+3}], v[{x+10}:{x+11}], v[{x+12}:{x+13}]")
        for i in (4, 6, 8):
            for e in range(2):
                x, t = E[e], T[e]
                a(f"v_pk_add_f32 v[{t}:{t+1}], v[{t}:{t+1}], v[{x+i}:{x+i+1}]")
                a(f"v_pk_add_f32 v[{t+2}:{t+3}], v[{t+2}:{t+3}], v[{x+10+i}:{x+11+i}]")
        for e in range(2):
            t = T[e]
            a(f"v_add_f32 v{t}, v{t}, v{t+1}")
            a(f"v_add_f32 v{t+1}, v{t+2}, v{t+3}")
        both(lambda e: a(f"v_permlane32_swap_b32 v{T[e]}, v{T[e]+1}"))
        both(lambda e: a(f"v_add_f32 v{T[e]}, v{T[e]}, v{T[e]+1}"))
        both(lambda e: a(f"v_rcp_f32 v{T[e]}, v{T[e]}"))
        both(lambda e: a(f"v_mov_b32 v{T[e]+1}, v{T[e]}"))
        both(lambda e: a(f"v_permlane32_swap_b32 v{T[e]}, v{T[e]+1}"))
        for i in range(5):
            for e in range(2):
                x, t = E[e] + 2*i, T[e]
                a(f"v_pk_mul_f32 v[{x}:{x+1}], v[{x}:{x+1}], v[{t}:{t+1}] op_sel:[0,0] op_sel_hi:[1,0]")
                a(f"v_pk_mul_f32 v[{x+10}:{x+11}], v[{x+10}:{x+11}], v[{t}:{t+1}] op_sel:[0,1] op_sel_hi:[1,1]")
        for i in range(10):
            for e in range(2):
                a(f"v_cvt_pk_bf16_f32 v{P[e]+i}, v{E[e]+2*i}, v{E[e]+2*i+1}")

    def compute(self):
        a = self.a
        ws = self.ws
        U = 16; ACC = 56; OPS = 120; SC = 200; TMP = 220
        vX0, vX1, vW0, vW1 = 4, 5, 6, 7
        vPA, vPD = 8, 9
        vJ, vGm, vN, vHH = 10, 11, 12, 13
        self.stamp(0)
        SQ = S_R4
        rq = f"s[{SQ}:{SQ+3}]"
        a(f"v_and_b32 v{vJ}, 15, v1")
        a(f"v_lshrrev_b32 v{vGm}, 4, v1")
        a(f"v_min_u32 v2, 14, v{vJ}")
        a(f"v_mul_u32_u24 v3, 52, v2")
        a(f"v_lshrrev_b32 v3, 8, v3")
        a(f"v_mul_u32_u24 v3, {1280 - 80}, v3")
        a(f"v_lshl_add_u32 v2, v2, 4, v3")
        a(f"v_mul_u32_u24 v3, 3840, v{vGm}")
        a(f"v_add_u32 v2, v2, v3")
        a(f"v_add_u32 v3, {4*3840 - 1024}, v2")
        a(f"s_mul_i32 s{sT0}, s{sC}, {40*3840}")
        a(f"s_mul_i32 s{sT1}, s{sG}, 80")
        a(f"s_add_u32 s{sT0}, s{sT0}, s{sT1}")
        a(f"s_mul_i32 s{sT1}, s{sW}, {8*3840}")
        a(f"s_add_u32 s{sT1}, s{sT0}, s{sT1}")
        a(f"s_add_u32 s{sT0}, s{sT0}, {32*3840}")
        a(f"s_cmp_lg_u32 s{sW}, 0")
        a(f"s_cselect_b32 s{sT0}, {OOB}, s{sT0}")
        a(f"s_lshl_b32 s{sT2}, s{sW}, 11")
        a(f"s_mov_b32 m0, s{sT2}")
        a("s_waitcnt lgkmcnt(0)")
        a.srd(SQ, P_WQKV, 2457600)
        if not RLLATE:
            a(f"buffer_load_dwordx4 v2, {rq}, s{sT1} offen {NTQ*'nt'} lds")
            a(f"buffer_load_dwordx4 v3, {rq}, s{sT1} offen offset:1024 {NTQ*'nt'} lds")
            a(f"s_add_u32 m0, s{sT2}, 8192")
            a(f"buffer_load_dwordx4 v2, {rq}, s{sT0} offen {NTQ*'nt'} lds")
            a(f"buffer_load_dwordx4 v3, {rq}, s{sT0} offen offset:1024 {NTQ*'nt'} lds")
        else:
            a(f"v_mov_b32 v198, v2")
            a(f"v_mov_b32 v199, v3")
            a(f"s_mov_b32 s{sKS}, s{sT0}")
            a(f"s_mov_b32 s{sKSW}, s{sT1}")
        vS = 130
        a.srd(S_WS, P_WS, WS_BYTES)
        a("v_mov_b32 v2, 0")
        a(f"buffer_load_dword v15, v2, {ws}, 0 offen sc1")
        a(f"v_min_u32 v3, 39, v1")
        a(f"s_mul_i32 s{sT1}, s{sG}, 40")
        a(f"v_add_lshl_u32 v2, v3, s{sT1}, 1")
        a(f"s_cmp_eq_u32 s{sW}, 1")
        a(f"s_cselect_b32 s{sT0}, 0, {OOB}")
        a.srd(S_R1, P_LRE, 1280); a.srd(S_R2, P_LIM, 1280); a.srd(S_R3, P_LDT, 1280)
        a(f"buffer_load_ushort v{vS+1}, v2, s[{S_R1}:{S_R1+3}], s{sT0} offen")
        a(f"buffer_load_ushort v{vS+2}, v2, s[{S_R2}:{S_R2+3}], s{sT0} offen")
        a(f"buffer_load_ushort v{vS+3}, v2, s[{S_R3}:{S_R3+3}], s{sT0} offen")
        a(f"v_mul_u32_u24 v2, 40, v3")
        a(f"s_mul_i32 s{sT1}, s{sG}, 1600")
        a(f"s_cmp_eq_u32 s{sW}, 2")
        a(f"s_cselect_b32 s{sT0}, s{sT1}, {OOB}")
        a.srd(SQ, P_WPHI, 25600)
        for i in range(5):
            a(f"buffer_load_dwordx2 v[{vS+4+2*i}:{vS+5+2*i}], v2, {rq}, s{sT0} offen offset:{8*i}")
        a(f"s_getpc_b64 s[{sM}:{sM+1}]")
        a.label("L_pc")
        a(f"s_lshr_b32 s{sT0}, s2, 3")
        a(f"s_lshl_b32 s{sT0}, s{sT0}, 2")
        a(f"s_add_u32 s{sT0}, s{sT0}, s{sW}")
        a(f"s_lshl_b32 s{sT0}, s{sT0}, 8")
        a(f"v_and_b32 v2, 1, v1")
        a(f"v_lshl_add_u32 v2, v2, 7, s{sT0}")
        a(f"s_sub_u32 s{sM}, s{sM}, L_pc-{KNAME}")
        a(f"s_subb_u32 s{sM+1}, s{sM+1}, 0")
        a(f"v_min_u32 v2, L_end-{KNAME}, v2")
        a(f"global_load_dword v255, v2, s[{sM}:{sM+1}]")
        if RLLATE:
            a.srd(S_R1, P_WQKV, 2457600)
            r1_ = f"s[{S_R1}:{S_R1+3}]"
            a(f"buffer_load_dwordx4 v198, {r1_}, s{sKSW} offen {NTQ*'nt'} lds")
            a(f"buffer_load_dwordx4 v199, {r1_}, s{sKSW} offen offset:1024 {NTQ*'nt'} lds")
            a(f"s_add_u32 m0, s{sT2}, 8192")
            a(f"buffer_load_dwordx4 v198, {r1_}, s{sKS} offen {NTQ*'nt'} lds")
            a(f"buffer_load_dwordx4 v199, {r1_}, s{sKS} offen offset:1024 {NTQ*'nt'} lds")
        a(f"v_and_b32 v{vN}, 31, v1")
        a(f"v_lshrrev_b32 v{vHH}, 5, v1")
        t = 192
        a(f"v_and_b32 v{t}, 3, v1")
        a(f"v_lshl_add_u32 v{t}, v{vGm}, 2, v{t}")
        a(f"v_min_u32 v{t+1}, 14, v{t}")
        a(f"v_lshlrev_b32 v{t+1}, 3, v{t+1}")
        a(f"v_mov_b32 v{t+2}, 80")
        a(f"v_mov_b32 v{t+3}, 32")
        a(f"v_cmp_gt_u32 vcc, 10, v{t}")
        a(f"v_cndmask_b32 v{t+2}, v{t+2}, v{t+3}, vcc")
        a(f"v_mov_b32 v{t+3}, 72")
        a(f"v_cmp_eq_u32 vcc, 5, v{t}")
        a(f"v_cndmask_b32 v{t+2}, v{t+2}, v{t+3}, vcc")
        a(f"v_mov_b32 v{t+3}, 0")
        a(f"v_cmp_gt_u32 vcc, 5, v{t}")
        a(f"v_cndmask_b32 v{t+2}, v{t+2}, v{t+3}, vcc")
        a(f"v_add_u32 v{t+1}, v{t+1}, v{t+2}")
        a(f"v_bfe_u32 v{t+2}, v1, 2, 2")
        a(f"v_lshl_add_u32 v{t+1}, v{t+2}, 8, v{t+1}")
        vRL = t + 1
        a(f"v_add_u32 v{vRL}, s{sT2}, v{t+1}")
        a(f"s_add_u32 s{sT3}, s{sC}, s{sW}")
        a(f"s_and_b32 s{sT3}, s{sT3}, 1")
        a(f"v_mov_b32 v{t+2}, 512")
        a(f"v_mov_b32 v{t+3}, 448")
        a(f"v_cmp_lt_u32 vcc, 31, v1")
        a(f"v_cndmask_b32 v{t+2}, v{t+2}, v{t+3}, vcc")
        a(f"v_mul_lo_u32 v{t+2}, v{t+2}, s{sT3}")
        a(f"v_lshl_add_u32 v{t+2}, v{vN}, 4, v{t+2}")
        a(f"v_lshl_add_u32 v{t+2}, v{vHH}, 10, v{t+2}")
        a(f"v_mov_b32 v{t+3}, {OOB}")
        a(f"v_cmp_lt_u32 vcc, 59, v1")
        a(f"v_cndmask_b32 v{t+2}, v{t+2}, v{t+3}, vcc")
        vRS = t + 2
        a(f"s_mul_i32 s{sT2}, s{sG}, 153600")
        a(f"s_add_u32 s{sT2}, s{sT2}, {WS_WP}")
        a(f"s_mul_i32 s{sT4}, s{sC}, 5")
        a(f"s_add_u32 s{sT4}, s{sT4}, s{sW}")
        a(f"s_lshr_b32 s{sT4}, s{sT4}, 1")
        a(f"s_mul_i32 s{sT4}, s{sT4}, 3840")
        a(f"s_add_u32 s{sT4}, s{sT4}, s{sT2}")
        a(f"s_add_u32 s{sT5}, s{sT4}, 7680")
        a(f"s_cmp_lg_u32 s{sW}, 0")
        a(f"s_cselect_b32 s{sT5}, {OOB}, s{sT5}")
        R = 176
        def relayout():
            for m in range(2):
                for e in range(2):
                    r = R + 8*m + 4*e
                    a(f"ds_read_b64_tr_b16 v[{r}:{r+1}], v{vRL} offset:{8192*m + 40*e}")
                    a(f"ds_read_b64_tr_b16 v[{r+2}:{r+3}], v{vRL} offset:{8192*m + 40*e + 1024}")
            for m in range(2):
                for e in range(2):
                    r = R + 8*m + 4*e
                    a(f"s_waitcnt lgkmcnt({6 - 2*(2*m+e)})")
                    a(f"buffer_store_dwordx4 v[{r}:{r+3}], v{vRS}, {ws}, s{sRL1 if m == 0 else sRL2} offen offset:{1920*e} sc1")
        sRL1, sRL2 = sLX, sLW
        a(f"s_mov_b32 s{sRL1}, s{sT4}")
        a(f"s_mov_b32 s{sRL2}, s{sT5}")
        if RLIT < 0:
            a("s_waitcnt vmcnt(10)")
            relayout()
        if 'sprof' in self.opts: self.stamp(5)
        a(f"v_lshrrev_b32 v14, 1, v{vJ}")
        a(f"v_xor_b32 v14, v14, v{vGm}")
        a(f"v_lshlrev_b32 v14, 4, v14")
        a(f"v_lshl_add_u32 v14, v{vJ}, 7, v14")
        a(f"s_lshl_b32 s{sT0}, s{sW}, 12")
        a(f"v_add_u32 v{vX0}, s{sT0}, v14")
        a(f"v_add_u32 v{vW0}, 16384, v14")
        a(f"v_xor_b32 v{vX1}, 64, v{vX0}")
        a(f"v_xor_b32 v{vW1}, 64, v{vW0}")
        self.poll_addr(vPA, WS_FLAG_W, sG)
        self.flag_addr(sM2, WS_FLAG_W, sG, sC, 4, sW)
        self.p2_role()
        for i in range(40): a(f"v_mov_b32 v{U+i}, 0")
        a(f"s_waitcnt vmcnt({4 if RLIT < 0 else (4 if RLLATE else 0)})")
        self.tag_from(15)
        vXA = [4, 5, 6, 7]; vWA = 15; vSEG = 14; vXA0 = 254; vTB = 255
        a(f"v_bfe_u32 v14, v1, 1, 3")
        a(f"v_xor_b32 v14, v14, v{vHH}")
        a(f"v_lshlrev_b32 v14, 4, v14")
        a(f"v_lshl_add_u32 v14, v{vN}, 7, v14")
        a(f"s_lshl_b32 s{sT0}, s{sW}, 12")
        a(f"s_add_u32 s{sT0}, s{sT0}, 0x10000")
        a(f"v_add_u32 v{vXA0}, s{sT0}, v14")
        a(f"v_lshlrev_b32 v{vWA}, 4, v1")
        a(f"v_add_u32 v{vWA}, {0x10000 + 16384}, v{vWA}")
        a(f"v_mul_u32_u24 v{vSEG}, 80, v{vJ}")
        a(f"v_lshl_add_u32 v{vSEG}, v{vGm}, 2, v{vSEG}")
        a(f"s_lshl_b32 s{sT0}, s{sW}, 4")
        a(f"s_add_u32 s{sT0}, s{sT0}, {L_SEG}")
        a(f"v_add_u32 v{vSEG}, s{sT0}, v{vSEG}")
        a(f"v_lshlrev_b32 v{vTB}, 5, v{vJ}")
        self.side_jobs(vS)
        for i in range(64): a(f"v_mov_b32 v{ACC+i}, 0")
        a("s_barrier")
        self.stamp(1)
        if 'clk' in self.opts: a(f"s_memtime s[{sPT+14}:{sPT+15}]")
        def b_reads(st, kx, kw):
            b = OPS + 28*st
            for tr in range(2):
                a(f"ds_read_b128 v[{b+4*tr}:{b+4*tr+3}], v{kx} offset:{RING + 2048*tr}")
            for tc in range(5):
                a(f"ds_read_b128 v[{b+8+4*tc}:{b+8+4*tc+3}], v{kw} offset:{RING + 2048*tc}")
        def b_mfma(st):
            b = OPS + 28*st
            for tc in range(5):
                for tr in range(2):
                    d = U + 8*tc + 4*tr
                    a(f"v_mfma_f32_16x16x32_bf16 v[{d}:{d+3}], v[{b+4*tr}:{b+4*tr+3}], v[{b+8+4*tc}:{b+8+4*tc+3}], v[{d}:{d+3}]")
        b_reads(0, vX0, vW0)
        a(f"s_mov_b32 s{sIT}, 0")
        def inter(ms, rs):
            per = -(-len(rs) // max(1, len(ms) - 1)) if rs else 0
            ri = 0
            for i, m in enumerate(ms):
                a(m)
                for _ in range(per):
                    if ri < len(rs): a(rs[ri]); ri += 1
            while ri < len(rs): a(rs[ri]); ri += 1
        def b_reads_l(st, kx, kw):
            b = OPS + 28*st
            return ([f"ds_read_b128 v[{b+4*tr}:{b+4*tr+3}], v{kx} offset:{RING + 2048*tr}" for tr in range(2)] +
                    [f"ds_read_b128 v[{b+8+4*tc}:{b+8+4*tc+3}], v{kw} offset:{RING + 2048*tc}" for tc in range(5)])
        def b_mfma_l(st):
            b = OPS + 28*st
            return [f"v_mfma_f32_16x16x32_bf16 v[{U+8*tc+4*tr}:{U+8*tc+4*tr+3}], v[{b+4*tr}:{b+4*tr+3}], v[{b+8+4*tc}:{b+8+4*tc+3}], v[{U+8*tc+4*tr}:{U+8*tc+4*tr+3}]"
                    for tc in range(5) for tr in range(2)]
        self.inter = inter
        a("s_waitcnt lgkmcnt(0)")
        a.label("LB_loop")
        inter(b_mfma_l(0)[:8], b_reads_l(1, vX1, vW1))
        a(f"v_add_u32 v{vX0}, 0x8000, v{vX0}")
        a(f"v_add_u32 v{vW0}, 0x8000, v{vW0}")
        a(b_mfma_l(0)[8])
        a(f"v_and_b32 v{vX0}, 0x1ffff, v{vX0}")
        a(f"v_and_b32 v{vW0}, 0x1ffff, v{vW0}")
        a(b_mfma_l(0)[9])
        a(f"v_xor_b32 v{vX1}, 64, v{vX0}")
        a(f"v_xor_b32 v{vW1}, 64, v{vW0}")
        if RLIT >= 0:
            a(f"s_cmp_lg_u32 s{sIT}, {RLIT}")
            a("s_cbranch_scc1 LB_nr")
            a("s_waitcnt vmcnt(0)")
            relayout()
            a.label("LB_nr")
        a(f"s_cmp_lg_u32 s{sIT}, {WFLAG_IT if RLIT < 0 else RLIT + 2}")
        a("s_cbranch_scc1 LB_nf")
        a("s_waitcnt vmcnt(0)")
        self.flag_store(sM2, 2)
        a.label("LB_nf")
        a(f"s_cmp_lg_u32 s{sW}, 0")
        a("s_cbranch_scc1 LB_np")
        a(f"s_cmp_lg_u32 s{sIT}, {WGATE-3}")
        a("s_cbranch_scc1 LB_n5")
        self.poll_issue(vPA, vPD)
        a.label("LB_n5")
        a(f"s_cmp_lg_u32 s{sIT}, {WGATE-1}")
        a("s_cbranch_scc1 LB_np")
        self.poll_wait(vPA, vPD)
        a.label("LB_np")
        a("s_waitcnt lgkmcnt(0)")
        for m in b_mfma_l(1)[:2]: a(m)
        a("s_barrier")
        inter(b_mfma_l(1)[2:], b_reads_l(0, vX0, vW0))
        a(f"s_add_u32 s{sIT}, s{sIT}, 1")
        a(f"s_cmp_lt_u32 s{sIT}, 10")
        a("s_waitcnt lgkmcnt(0)")
        a("s_cbranch_scc1 LB_loop")
        self.stamp(2)
        ds = []
        def dsi(txt, lab):
            a(txt); ds.append(lab)
        def dsw(lab):
            idxs = [i for i, l in enumerate(ds) if l == lab]
            if not idxs: return
            n = len(ds) - 1 - idxs[-1]
            a(f"s_waitcnt lgkmcnt({min(n, 15)})")
            del ds[:len(ds) - min(n, 15)]
        def a_reads_l(k):
            b = OPS + 20*k
            return ([f"ds_read_b128 v[{b}:{b+3}], v{vXA[k]} offset:{RING}"] +
                    [f"ds_read_b128 v[{b+4+4*f}:{b+7+4*f}], v{vWA} offset:{RING + (4*k+f)*1024}" for f in range(4)])
        def a_mfma_l(k):
            b = OPS + 20*k
            return [f"v_mfma_f32_32x32x16_bf16 v[{ACC+16*f}:{ACC+16*f+15}], v[{b+4+4*f}:{b+7+4*f}], v[{b}:{b+3}], v[{ACC+16*f}:{ACC+16*f+15}]" for f in range(4)]
        def ureg(tc, tt): return U + 8*tc + tt
        def emit_fill(q, n):
            k = 0
            while q and k < n:
                it = q.pop(0)
                if it[0] == 'i': a(it[1]); k += 1
                elif it[0] == 'ds': dsi(it[1], it[2]); k += 1
                elif it[0] == 'w': dsw(it[1])
        def a_stage(pre, post, npre, npost, last=False):
            def grp(ms, rs, lab, q, n):
                rs = list(rs)
                for i, m in enumerate(ms):
                    a(m)
                    for _ in range(2):
                        if rs: dsi(rs.pop(0), lab)
                    emit_fill(q, n)
            dsw('r0'); grp(a_mfma_l(0), a_reads_l(2), 'r2', pre, npre)
            dsw('r1'); grp(a_mfma_l(1), a_reads_l(3), 'r3', pre, npre)
            dsw('r2')
            m2 = a_mfma_l(2)
            a(m2[0])
            if not last:
                a(f"v_add_u32 v{vXA[0]}, 0x8000, v{vXA[0]}")
                a(f"v_add_u32 v{vWA}, 0x8000, v{vWA}")
                a(f"v_and_b32 v{vXA[0]}, 0x1ffff, v{vXA[0]}")
                a(f"v_and_b32 v{vWA}, 0x1ffff, v{vWA}")
            emit_fill(pre, npre)
            a(m2[1])
            if not last:
                for k in range(1, 4):
                    a(f"v_xor_b32 v{vXA[k]}, {32*k}, v{vXA[0]}")
            if pre is not post:
                emit_fill(pre, 1000)
                a("s_waitcnt lgkmcnt(0)"); del ds[:]
            else:
                dsw('r3')
            a("s_barrier")
            grp(m2[2:], a_reads_l(0) if not last else [], 'r0', post, npost)
            if not last: dsi(a_reads_l(0)[4], 'r0')
            grp(a_mfma_l(3), a_reads_l(1) if not last else [], 'r1', post, npost)
        a(f"v_mov_b32 v{vXA[0]}, v{vXA0}")
        for tc in range(5):
            dsi(f"ds_read_b128 v[{SC+4*tc}:{SC+4*tc+3}], v{vTB} offset:{L_TAB + 512*tc}", 'sc')
        for k in range(1, 4):
            a(f"v_xor_b32 v{vXA[k]}, {32*k}, v{vXA[0]}")
        for x in a_reads_l(0): dsi(x, 'r0')
        for x in a_reads_l(1): dsi(x, 'r1')
        self.stamp(3)
        if 'clk' in self.opts: a(f"s_memtime s[{sPT+10}:{sPT+11}]")
        f1 = [('w', 'sc')]
        A0, A1 = TMP, TMP + 5
        prev = [ureg(tc, 0) for tc in range(5)]
        for tt in range(1, 8):
            cur = A0 if tt % 2 else A1
            for tc in range(5):
                f1.append(('i', f"v_fma_f32 v{cur+tc}, v{SC+4*tc}, v{prev[tc]}, v{ureg(tc, tt)}"))
            for tc in range(5):
                f1.append(('i', f"v_fmac_f32_dpp v{cur+tc}, v{prev[tc]}, v{SC+4*tc+1} {DPP}"))
            prev = [cur + tc for tc in range(5)]
        for tc in range(5):
            f1.append(('ds', f"ds_write_b32 v{vSEG}, v{prev[tc]} offset:{1280*tc}", 'seg'))
        a_stage(f1, [], 8, 0)
        vHW, vHR, vHS = 2, 3, 15
        a(f"s_mov_b32 s{sIT}, 1")
        assert ds == ['r0']*5 + ['r1']*5
        a.label("LA_loop")
        a_stage([], [], 0, 0)
        a(f"s_add_u32 s{sIT}, s{sIT}, 1")
        a(f"s_cmp_lt_u32 s{sIT}, 10")
        a("s_cbranch_scc1 LA_loop")
        assert ds == ['r0']*5 + ['r1']*5
        fa = [('i', f"v_lshlrev_b32 v{vHW}, 6, v{vJ}"),
              ('i', f"v_lshl_add_u32 v{vHW}, v{vGm}, 4, v{vHW}"),
              ('i', f"v_add_u32 v{vHW}, s{sT0}, v{vHW}"),
              ('i', f"v_bfe_u32 v{vHR}, v1, 2, 2"),
              ('i', f"v_lshl_add_u32 v{vHR}, v{vHH}, 3, v{vHR}"),
              ('i', f"v_lshlrev_b32 v{vHR}, 6, v{vHR}"),
              ('i', f"v_bfe_u32 v{vHS}, v1, 4, 1"),
              ('i', f"v_lshl_add_u32 v{vHR}, v{vHS}, 5, v{vHR}"),
              ('i', f"v_and_b32 v{vHS}, 3, v1"),
              ('i', f"v_lshl_add_u32 v{vHR}, v{vHS}, 3, v{vHR}"),
              ('i', f"v_add_u32 v{vHR}, s{sT0}, v{vHR}"),
              ('i', f"v_lshl_add_u32 v{vHS}, v1, 4, s{sT2}"),
              ('i', f"s_mov_b32 s{sT0}, 4096")]
        SV = 120; OTm = [126, 134]; HPm = [142, 146]; HFm = [160, 164, 168, 172, 176]
        f2 = []
        for tc in range(5):
            f2.append(('ds', f"ds_read_b32 v{SV+tc}, v{vSEG} offset:{1280*tc}", 'sv'))
        f2.append(('w', 'sv'))
        prev = [SV + tc for tc in range(5)]
        for tt in range(8):
            for tc in range(5):
                u = ureg(tc, tt)
                f2.append(('i', f"v_fma_f32 v{u}, v{SC+4*tc}, v{prev[tc]}, v{u}"))
            for tc in range(5):
                u = ureg(tc, tt)
                f2.append(('i', f"v_fmac_f32_dpp v{u}, v{prev[tc]}, v{SC+4*tc+1} {DPP}"))
            prev = [ureg(tc, tt) for tc in range(5)]
        def hstore(tc):
            hf = HFm[tc]
            so = "0" if tc < 4 else f"s{sT0}"
            return [('w', f'ht{tc}'), ('i', f"buffer_store_dwordx4 v[{hf}:{hf+3}], v{vHS}, {ws}, {so} offen offset:{1024*(tc & 3)} sc1")]
        for tc in range(5):
            o = OTm[tc & 1]; hp = HPm[tc & 1]; hf = HFm[tc]
            for tt in range(8):
                f2.append(('i', f"v_mul_f32 v{o+tt}, v{SC+4*tc+2}, v{ureg(tc, tt)}"))
            for tt in range(8):
                f2.append(('i', f"v_fmac_f32_dpp v{o+tt}, v{ureg(tc, tt)}, v{SC+4*tc+3} {DPP}"))
            if tc: f2 += hstore(tc - 1)
            for i in range(4):
                f2.append(('i', f"v_cvt_pk_bf16_f32 v{hp+i}, v{o+2*i}, v{o+2*i+1}"))
            f2.append(('ds', f"ds_write_b128 v{vHW}, v[{hp}:{hp+3}] offset:{1024*(tc & 1)}", 'hw'))
            for rd in range(2):
                f2.append(('ds', f"ds_read_b64_tr_b16 v[{hf+2*rd}:{hf+2*rd+1}], v{vHR} offset:{1024*(tc & 1) + 256*rd}", f'ht{tc}'))
        f2 += hstore(4)
        del ds[:]
        def btail():
            a(f"s_lshl_b32 s{sT0}, s{sW}, 11")
            a(f"s_add_u32 s{sT0}, s{sT0}, {L_HT}")
            a(f"s_lshl_b32 s{sT1}, s{sC}, 2")
            a(f"s_add_u32 s{sT1}, s{sT1}, s{sW}")
            a(f"s_mul_i32 s{sT2}, s{sT1}, 81920")
            a(f"s_mul_i32 s{sT3}, s{sG}, 5120")
            a(f"s_add_u32 s{sT2}, s{sT2}, s{sT3}")
            a(f"s_add_u32 s{sT2}, s{sT2}, {WS_H}")
            emit_fill(f2, 5)
            emit_fill(fa, 1000)
            emit_fill(f2, 1000)
            self.flag_addr(sM2, WS_FLAG_H, sC, sW, 16, sG)
        self.stamp(4)
        if 'clk' in self.opts: a(f"s_memtime s[{sPT+12}:{sPT+13}]")
        WF = 160
        PK = 224
        v1a, v3a, v4a = 4, 5, 6
        a(f"v_bfe_u32 v7, v1, 2, 2")
        a(f"v_and_b32 v8, 3, v1")
        a(f"v_lshlrev_b32 v8, 3, v8")
        a(f"v_bfe_u32 v9, v1, 4, 1")
        a(f"v_lshl_add_u32 v8, v9, 5, v8")
        a(f"v_add_u32 v8, {L_WPH}, v8")
        a(f"v_lshl_add_u32 v{v1a}, v{vHH}, 2, v7")
        a(f"v_lshl_add_u32 v{v1a}, v{v1a}, 6, v8")
        a(f"v_add_u32 v9, 16, v7")
        a(f"v_mov_b32 v2, 20")
        a(f"v_cmp_lt_u32 vcc, 31, v1")
        a(f"v_cndmask_b32 v{v3a}, v9, v2, vcc")
        a(f"v_cndmask_b32 v{v4a}, v2, v9, vcc")
        a(f"v_lshl_add_u32 v{v3a}, v{v3a}, 6, v8")
        a(f"v_lshl_add_u32 v{v4a}, v{v4a}, 6, v8")
        a("s_waitcnt lgkmcnt(0)")
        for e in range(2):
            w = WF + 16*e; o = 1344*e
            a(f"ds_read_b64_tr_b16 v[{w+8}:{w+9}], v{v4a} offset:{o}")
            a(f"ds_read_b64_tr_b16 v[{w+10}:{w+11}], v{v1a} offset:{o}")
            a(f"ds_read_b64_tr_b16 v[{w+12}:{w+13}], v{v1a} offset:{o+512}")
            a(f"ds_read_b64_tr_b16 v[{w}:{w+1}], v{v1a} offset:{o}")
            a(f"ds_read_b64_tr_b16 v[{w+2}:{w+3}], v{v1a} offset:{o+512}")
            a(f"ds_read_b64_tr_b16 v[{w+4}:{w+5}], v{v3a} offset:{o}")
            for z in (6, 7, 14, 15): a(f"v_mov_b32 v{w+z}, 0")
        vIP, vIV = 7, 8
        a(f"v_mul_u32_u24 v{vIP}, {IMGP}, v{vN}")
        a(f"s_mul_i32 s{sT0}, s{sW}, {32*IMGP}")
        a(f"s_add_u32 s{sT0}, s{sT0}, {L_IMG}")
        a(f"v_add_u32 v{vIP}, s{sT0}, v{vIP}")
        a(f"v_lshl_add_u32 v{vIV}, v{vHH}, 3, v{vIP}")
        a(f"v_mul_u32_u24 v2, 40, v{vHH}")
        a(f"v_add_u32 v{vIP}, v{vIP}, v2")
        order = [4, 5, 6, 7, 8, 9, 10, 11, 0, 1, 2, 3, 12, 13, 14, 15]
        for i in order[:8]:
            for e in range(2):
                s = ACC + 32*e + 2*i
                a(f"v_cvt_pk_bf16_f32 v{PK+16*e+i}, v{s}, v{s+1}")
        DK = [120, 136]; DQ = [ACC, ACC + 16]
        a("s_waitcnt lgkmcnt(0)")
        for e in range(2):
            w = WF + 16*e; p = PK + 16*e
            a(f"v_mfma_f32_32x32x16_bf16 v[{DK[e]}:{DK[e]+15}], v[{w+8}:{w+11}], v[{p+4}:{p+7}], 0")
        for e in range(2):
            w = WF + 16*e; p = PK + 16*e
            a(f"v_mfma_f32_32x32x16_bf16 v[{DK[e]}:{DK[e]+15}], v[{w+12}:{w+15}], v[{p+8}:{p+11}], v[{DK[e]}:{DK[e]+15}]")
        for i in order[8:]:
            for e in range(2):
                s = ACC + 32*e + 2*i
                a(f"v_cvt_pk_bf16_f32 v{PK+16*e+i}, v{s}, v{s+1}")
        a(f"v_mov_b32 v2, 0x3f80")
        a(f"v_mov_b32 v3, 0")
        for e in range(2):
            p = PK + 16*e
            a(f"v_cndmask_b32 v{p+14}, v{p+14}, v2, vcc")
            a(f"v_cndmask_b32 v{p+15}, v{p+15}, v3, vcc")
        for e in range(2):
            w = WF + 16*e; p = PK + 16*e
            a(f"v_mfma_f32_32x32x16_bf16 v[{DQ[e]}:{DQ[e]+15}], v[{w}:{w+3}], v[{p}:{p+3}], 0")
        for e in range(2):
            w = WF + 16*e; p = PK + 16*e
            a(f"v_mfma_f32_32x32x16_bf16 v[{DQ[e]}:{DQ[e]+15}], v[{w+4}:{w+7}], v[{p+4}:{p+7}], v[{DQ[e]}:{DQ[e]+15}]")
        for e in range(2):
            p = PK + 16*e
            for m in range(3):
                a(f"ds_write_b64 v{vIV}, v[{p+10+2*m}:{p+11+2*m}] offset:{160 + 48*e + 16*m}")
        E = [88, 152]; T = [108, 112]
        PKK = [PK, PK + 16]
        self.softmax2(DK, PKK, E, T)
        for e in range(2):
            for m in range(5):
                a(f"ds_write_b64 v{vIP}, v[{PKK[e]+2*m}:{PKK[e]+2*m+1}] offset:{80*e + 8*m}")
        a(f"v_and_b32 v2, 1, v{vGm}")
        a(f"v_lshlrev_b32 v2, 4, v2")
        a(f"v_bfe_u32 v3, v1, 2, 2")
        a(f"v_lshl_add_u32 v2, v3, 2, v2")
        a(f"v_lshl_add_u32 v2, v{vHH}, 1, v2")
        a(f"v_mul_u32_u24 v2, {IMGP}, v2")
        a(f"v_and_b32 v3, 3, v1")
        a(f"v_lshl_add_u32 v2, v3, 3, v2")
        a(f"s_lshr_b32 s{sT0}, s{sW}, 1")
        a(f"s_and_b32 s{sT1}, s{sW}, 1")
        a(f"s_mul_i32 s{sT2}, s{sT0}, 80")
        a(f"s_add_u32 s{sT2}, s{sT2}, {L_IMG}")
        vKA, vKB = 6, 7
        a(f"v_add_u32 v{vKA}, s{sT2}, v2")
        a(f"s_mul_i32 s{sT2}, s{sT0}, 48")
        a(f"s_lshl_b32 s{sT3}, s{sT1}, 5")
        a(f"s_add_u32 s{sT2}, s{sT2}, s{sT3}")
        a(f"s_add_u32 s{sT2}, s{sT2}, {L_IMG + 160}")
        a(f"v_add_u32 v4, s{sT2}, v2")
        vKS, vKS2 = 8, 9
        a(f"s_lshl_b32 s{sT2}, s{sG}, 4")
        a(f"s_add_u32 s{sT2}, s{sT2}, s{sC}")
        a(f"s_mul_i32 s{sT2}, s{sT2}, {KVPITCH}")
        a(f"s_mul_i32 s{sT3}, s{sT0}, 1680")
        a(f"s_add_u32 s{sT2}, s{sT2}, s{sT3}")
        a(f"s_add_u32 s{sT2}, s{sT2}, {WS_KVP}")
        a(f"s_lshl_b32 s{sT3}, s{sT1}, 4")
        a(f"v_add_u32 v2, s{sT3}, v{vJ}")
        a(f"v_mul_u32_u24 v3, 21, v{vGm}")
        a(f"v_add_u32 v3, v3, v2")
        a(f"v_lshl_add_u32 v5, v3, 3, s{sT2}")
        a(f"v_mov_b32 v3, {OOB}")
        a(f"v_cmp_lt_u32 vcc, 20, v2")
        a(f"v_cndmask_b32 v5, v5, v3, vcc")
        a(f"v_cmp_lt_u32 vcc, 31, v1")
        a(f"v_cndmask_b32 v{vKS2}, v5, v3, vcc")
        vKB = 4; vKS = 5
        a("s_waitcnt lgkmcnt(0)")
        a("s_barrier")
        FA = 120
        FB = 88
        DKV = 180
        for k in range(4):
            for rd in range(2):
                a(f"ds_read_b64_tr_b16 v[{FB+4*k+2*rd}:{FB+4*k+2*rd+1}], v{vKB} offset:{k*32*IMGP + rd*IMGP}")
            for ft in range(3):
                for rd in range(2):
                    r = FA + 12*k + 4*ft + 2*rd
                    a(f"ds_read_b64_tr_b16 v[{r}:{r+1}], v{vKA} offset:{k*32*IMGP + rd*IMGP + 32*ft}")
        for k in range(4):
            a(f"s_waitcnt lgkmcnt({min(15, 8*(3-k))})")
            for ft in range(3):
                r = FA + 12*k + 4*ft; d = DKV + 4*ft
                c = "0" if k == 0 else f"v[{d}:{d+3}]"
                a(f"v_mfma_f32_16x16x32_bf16 v[{d}:{d+3}], v[{r}:{r+3}], v[{FB+4*k}:{FB+4*k+3}], {c}")
        a(f"v_mov_b32 v2, 0x10001")
        self.tagpat(sT0, sT1)
        for i in range(6):
            a(f"v_cvt_pk_bf16_f32 v{DKV+12+i}, v{DKV+2*i}, v{DKV+2*i+1}")
        for i in range(6):
            a(f"v_bfi_b32 v{DKV+12+i}, v2, s{sT0 + (i & 1)}, v{DKV+12+i}")
        for ft in range(3):
            d = DKV + 12 + 2*ft
            a(f"buffer_store_dwordx2 v[{d}:{d+1}], v{vKS2 if ft == 2 else vKS}, {ws}, 0 offen offset:{672*ft} sc1")
        a("s_barrier")
        PQ = [224, 236]
        E = [88, 120]; T = [108, 112]
        self.softmax2(DQ, PQ, E, T)
        for e in range(2):
            a(f"v_mov_b32 v{PQ[e]+10}, 0")
            a(f"v_mov_b32 v{PQ[e]+11}, 0")
        if 'clk' not in self.opts: self.stamp(5)
        SO, SXB = S_R1, S_R2
        ro = f"s[{SO}:{SO+3}]"; rxb = f"s[{SXB}:{SXB+3}]"
        a.srd(SO, P_OUT, 2048*1280*4)
        a.srd(SXB, P_BX, 2621440)
        vF, vO, vA0 = 4, 5, 6
        a(f"s_lshl_b32 s{sIT}, s{sC2}, 2")
        a(f"s_add_u32 s{sIT}, s{sIT}, s{sW}")
        a(f"s_lshl_b32 s{sT2}, s{sIT}, 5")
        a(f"v_lshl_add_u32 v2, v{vHH}, 2, s{sT2}")
        for i in range(64): a(f"v_mov_b32 v{ACC+i}, 0")
        a(f"s_cmp_ge_u32 s{sR2}, 10")
        a("s_cbranch_scc1 L_early_a")
        a(f"s_lshl_b32 s{sT3}, s{sD0}, 6")
        a(f"v_add_lshl_u32 v3, v{vN}, s{sT3}, 1")
        a(f"v_mul_u32_u24 v8, 1280, v2")
        a(f"v_add_u32 v8, v8, v3")
        a(f"v_mov_b32 v9, v3")
        a(f"v_mul_u32_u24 v{vO}, 5120, v2")
        a(f"v_lshl_add_u32 v{vO}, v3, 1, v{vO}")
        a(f"v_add_u32 v{vO}, 2560, v{vO}")
        a(f"s_mul_i32 s{sT4}, s{sIT}, 81920")
        a(f"s_add_u32 s{sT4}, s{sT4}, {WS_H}")
        a(f"v_lshl_add_u32 v{vF}, v1, 4, s{sT4}")
        a(f"v_bfe_u32 v{vA0}, v1, 1, 3")
        a(f"v_lshlrev_b32 v{vA0}, 4, v{vA0}")
        a(f"v_lshl_add_u32 v{vA0}, v{vN}, 7, v{vA0}")
        a(f"v_lshl_add_u32 v{vA0}, v{vHH}, 13, v{vA0}")
        a("s_branch L_early_e")
        a.label("L_early_a")
        a(f"s_lshl_b32 s{sT3}, s{sD0}, 7")
        a(f"v_add_lshl_u32 v3, v{vN}, s{sT3}, 2")
        a(f"v_mul_u32_u24 v{vO}, 5120, v2")
        a(f"v_add_u32 v{vO}, v{vO}, v3")
        a(f"s_mul_i32 s{sT4}, s{sIT}, 40960")
        a(f"s_add_u32 s{sT4}, s{sT4}, {WS_O}")
        a(f"v_lshl_add_u32 v{vF}, v1, 4, s{sT4}")
        a(f"v_bfe_u32 v3, v1, 2, 2")
        a(f"v_mul_u32_u24 v{vA0}, 320, v3")
        a(f"v_lshl_add_u32 v{vA0}, v{vHH}, 11, v{vA0}")
        a(f"v_bfe_u32 v3, v1, 4, 1")
        a(f"v_lshl_add_u32 v{vA0}, v3, 5, v{vA0}")
        a(f"v_and_b32 v3, 3, v1")
        a(f"v_lshl_add_u32 v{vA0}, v3, 3, v{vA0}")
        a(f"v_mov_b32 v8, 0")
        a(f"v_mov_b32 v9, 0")
        a.label("L_early_e")
        def skiploads():
            a.srd(S_R3, P_DSK, 1280)
            a(f"buffer_load_ushort v14, v9, s[{S_R3}:{S_R3+3}], 0 offen")
            a(f"buffer_load_ushort v15, v9, s[{S_R3}:{S_R3+3}], 0 offen offset:64")
            for r in range(16):
                a(f"s_mov_b32 s{sT6}, {(8*(r >> 2) + (r & 3))*1280}")
                for t in range(2):
                    a(f"buffer_load_short_d16_hi v{216+16*t+r}, v8, {rxb}, s{sT6} offen offset:{64*t}")
        btail()
        if 'clk' not in self.opts: self.stamp(6)
        a(f"s_lshl_b32 s{sT1}, s{sC}, 2")
        a(f"s_add_u32 s{sT1}, s{sT1}, s{sW}")
        a(f"s_add_u32 s{sT5}, s{sM2}, {WS_FLAG_O - WS_FLAG_H}")
        a(f"v_mul_u32_u24 v2, 112, v{vN}")
        a(f"v_mul_u32_u24 v3, 48, v{vHH}")
        a(f"v_add_u32 v7, v2, v3")
        a(f"s_mul_i32 s{sT2}, s{sT1}, 40960")
        a(f"s_lshr_b32 s{sT3}, s{sG}, 1")
        a(f"s_mul_i32 s{sT3}, s{sT3}, 5120")
        a(f"s_add_u32 s{sT2}, s{sT2}, s{sT3}")
        a(f"s_add_u32 s{sT2}, s{sT2}, {WS_O}")
        a(f"v_lshl_add_u32 v14, v1, 4, s{sT2}")
        a(f"s_and_b32 s{sT3}, s{sG}, 1")
        a(f"s_lshl_b32 s{sT4}, s{sT3}, 11")
        a(f"s_lshl_b32 s{sT3}, s{sT3}, 3")
        a(f"s_add_u32 s{sT3}, s{sT3}, 4096")
        a(f"s_lshl_b32 s{sT1}, s{sW}, 6")
        a(f"s_add_u32 s{sT2}, s{sT1}, {WS_FLAG_O - WS_FLAG_H}")
        a(f"s_cmp_ge_u32 s{sR2}, 10")
        a(f"s_cselect_b32 s{sT1}, s{sT2}, s{sT1}")
        vPA2 = 10
        self.poll_addr(vPA2, WS_FLAG_H, sC2, 15, sT1)
        a("s_waitcnt vmcnt(0)")
        self.flag_store(sM2, 2)
        a("s_barrier")
        self.poll_issue(vPA2, 13)
        KF = 120
        for e in range(2):
            for k in range(3):
                r = KF + 12*e + 4*k
                a(f"ds_read_b128 v[{r}:{r+3}], v7 offset:{L_KVI + 3584*e + 16*k}")
        DO = [16, 32]
        a("s_waitcnt lgkmcnt(0)")
        for k in range(3):
            for e in range(2):
                r = KF + 12*e + 4*k; d = DO[e]
                c = "0" if k == 0 else f"v[{d}:{d+15}]"
                a(f"v_mfma_f32_32x32x16_bf16 v[{d}:{d+15}], v[{r}:{r+3}], v[{PQ[e]+4*k}:{PQ[e]+4*k+3}], {c}")
        OP = 144
        for e in range(2):
            a(f"v_add_f32 v{DO[e]+10}, 0x358637bd, v{DO[e]+10}")
        for e in range(2):
            a(f"v_rcp_f32 v{DO[e]+10}, v{DO[e]+10}")
        for i in range(5):
            for e in range(2):
                d = DO[e]
                a(f"v_pk_mul_f32 v[{d+2*i}:{d+2*i+1}], v[{d+2*i}:{d+2*i+1}], v[{d+10}:{d+11}] op_sel:[0,0] op_sel_hi:[1,0]")
        for e in range(2):
            for i in range(5):
                a(f"v_cvt_pk_bf16_f32 v{OP+5*e+i}, v{DO[e]+2*i}, v{DO[e]+2*i+1}")
        a(f"buffer_store_dwordx4 v[{OP}:{OP+3}], v14, {ws}, s{sT4} offen sc1")
        a(f"buffer_store_dwordx4 v[{OP+4}:{OP+7}], v14, {ws}, s{sT4} offen offset:1024 sc1")
        a(f"buffer_store_dwordx2 v[{OP+8}:{OP+9}], v14, {ws}, s{sT3} offen sc1")
        a("s_waitcnt vmcnt(0)")
        self.flag_store(sT5, 2)
        if 'clk' not in self.opts: self.stamp(7)
        self.stamp_flush(160, 0)
        a("s_barrier")
        HR = 120
        vAD = [7, 8, 9, 11]
        WB = 184
        a(f"s_cmp_eq_u32 s{sR2}, 15")
        a("s_cbranch_scc1 L_end")
        a(f"s_cmp_ge_u32 s{sR2}, 10")
        a("s_cbranch_scc1 LP2_A")
        SK = 216
        for i in range(32): a(f"v_mov_b32 v{SK+i}, 0")
        self.poll_wait(vPA2, 13)
        skiploads()
        self.stamp(0)
        a(f"s_lshl_b32 s{sKS}, s{sROT2}, 13")
        def ld(slot, kk):
            r = HR + 4*slot
            so = sKS if kk < 4 else sKSW
            return f"buffer_load_dwordx4 v[{r}:{r+3}], v{vF}, {ws}, s{so} offen offset:{1024*(kk & 3)} sc1"
        def adv(step, lim):
            a(f"s_add_u32 s{sKS}, s{sKS}, {step}")
            a(f"s_cmp_eq_u32 s{sKS}, {lim}")
            a(f"s_cselect_b32 s{sKS}, 0, s{sKS}")
        def lds_adv(step):
            a(f"v_add_u32 v{vAD[0]}, s{sLW}, v{vA0}")
            a(f"s_add_u32 s{sLW}, s{sLW}, {step}")
            a(f"s_cmp_ge_u32 s{sLW}, {LDS_TOTAL}")
            a(f"s_cselect_b32 s{sLW}, 0, s{sLW}")
        for st in range(2):
            a(f"s_add_u32 s{sKSW}, s{sKS}, 4096")
            for kk in range(8): a(ld(8*st + kk, kk))
            adv(8192, 81920)
        a(f"s_mov_b32 s{sIT}, 0")
        a(f"s_mov_b32 s{sLW}, {RING}")
        def rdB(rho):
            b = WB + 8*(rho & 3)
            return [f"v_xor_b32 v{vAD[1 + (rho & 1)]}, {16*(rho & 7)}, v{vAD[0]}"] + \
                   [f"ds_read_b128 v[{b+4*t}:{b+4*t+3}], v{vAD[1 + (rho & 1)]} offset:{4096*t}" for t in range(2)]
        lds_adv(16384)
        for rho in range(3):
            for x in rdB(rho): a(x)
        a.label("LP2B_loop")
        a(f"s_cmp_ge_u32 s{sIT}, 4")
        a(f"s_cselect_b32 s{sKS}, {OOB}, s{sKS}")
        for sidx in range(16):
            st, kk = sidx >> 3, sidx & 7
            rho = sidx + 3
            if kk == 0: a(f"s_add_u32 s{sKSW}, s{sKS}, 4096")
            if rho == 16:
                a(f"s_cmp_ge_u32 s{sIT}, 4")
                a("s_cbranch_scc1 LP2B_nb")
                a("s_barrier")
                a.label("LP2B_nb")
            if rho in (8, 16): lds_adv(16384)
            rr = rdB(rho)
            a(rr[0])
            a(f"s_waitcnt vmcnt(15) lgkmcnt(4)")
            b = WB + 8*(sidx & 3); h = HR + 4*sidx
            for t in range(2):
                d = ACC + 16*t
                a(f"v_mfma_f32_32x32x16_bf16 v[{d}:{d+15}], v[{h}:{h+3}], v[{b+4*t}:{b+4*t+3}], v[{d}:{d+15}]")
                a(rr[1+t])
            a(ld(sidx, kk))
            if kk == 7: adv(8192, 81920)
        a(f"s_cmp_lg_u32 s{sIT}, 1")
        a("s_cbranch_scc1 LP2B_ns")
        a(f"v_lshlrev_b32 v14, 16, v14")
        a(f"v_lshlrev_b32 v15, 16, v15")
        for t in range(2):
            for r in range(0, 16, 2):
                x = SK + 16*t + r
                a(f"v_mul_f32 v{x}, v{x}, v{14+t}")
                a(f"v_mul_f32 v{x+1}, v{x+1}, v{14+t}")
                a(f"v_cvt_pk_bf16_f32 v{x+1}, v{x}, v{x+1}")
                a(f"v_lshlrev_b32 v{x}, 16, v{x+1}")
                a(f"v_and_b32 v{x+1}, 0xffff0000, v{x+1}")
        a.label("LP2B_ns")
        self.itstamp()
        a(f"s_add_u32 s{sIT}, s{sIT}, 1")
        a(f"s_cmp_lt_u32 s{sIT}, 5")
        a("s_cbranch_scc1 LP2B_loop")
        self.stamp(1)
        for r in range(16):
            a(f"s_mov_b32 s{sT4}, {(8*(r >> 2) + (r & 3))*5120}")
            for t in range(2):
                a(f"v_add_f32 v{ACC+16*t+r}, v{ACC+16*t+r}, v{SK+16*t+r}")
                a(f"buffer_store_dword v{ACC+16*t+r}, v{vO}, {ro}, s{sT4} offen offset:{128*t} {self.ost}")
        a("s_branch LP2_end")
        a.label("LP2_A")
        self.poll_issue(vPA2, 13)
        self.poll_wait(vPA2, 13)
        self.stamp(0)
        HA = 120
        WBA = [16, 32, None]
        def wreg(buf, t):
            if buf < 2: return WBA[buf] + 4*t
            return [48, 52, 248, 252][t]
        a(f"s_mul_i32 s{sKS}, s{sROT2}, 5120")
        def ldA(u):
            kk = u % 5
            if kk == 0: a(f"s_add_u32 s{sKSW}, s{sKS}, 4096")
            r = HA + 4*(u % 32)
            so = sKS if kk < 4 else sKSW
            a(f"buffer_load_dwordx4 v[{r}:{r+3}], v{vF}, {ws}, s{so} offen offset:{1024*(kk & 3)} sc1")
            if kk == 4: adv(5120, 40960)
        vLP = [7, 8, 9, 11]
        vT2 = [2, 3, 10, 12]
        for t in range(4):
            a(f"v_xor_b32 v{vLP[t]}, {64*t}, v{vA0}")
        def rdA(u, t):
            base = (RING + 4096*u) % LDS_TOTAL
            w = wreg(u % 3, t)
            return [f"v_add_u32 v{vT2[t]}, {base}, v{vLP[t]}"] + \
                   [f"ds_read_b64_tr_b16 v[{w+2*rd}:{w+2*rd+1}], v{vT2[t]} offset:{1024*rd}" for rd in range(2)]
        for u in range(32): ldA(u)
        ds = []
        def rd_issue(u, t):
            r = rdA(u, t)
            a(r[0]); a(r[1]); a(r[2]); ds.extend([(u, t)]*2)
        def rd_wait(u, t):
            idx = [i for i, l in enumerate(ds) if l == (u, t)]
            n = len(ds) - 1 - idx[-1] if idx else None
            if n is not None: del ds[:len(ds) - min(n, 15)]
            return n
        def ostore(t, r):
            a(f"s_mov_b32 s{sT4}, {(8*(r >> 2) + (r & 3))*5120}")
            a(f"buffer_store_dword v{ACC+16*t+r}, v{vO}, {ro}, s{sT4} offen offset:{128*t} {self.ost}")
        order = [(s_ - SKEW*t, t) for s_ in range(40 + 3*SKEW) for t in range(4) if 0 <= s_ - SKEW*t < 40]
        nxt = {}
        for t in range(4):
            for u in range(2): rd_issue(u, t)
        nld = 32; vm_done = -1; nst = 0
        pend = []
        lastpos = {t: max(i for i, x in enumerate(order) if x[1] == t) for t in range(4)}
        for i, (u, t) in enumerate(order):
            if t == 0 and u + 2 in (20, 30): a("s_barrier")
            n = rd_wait(u, t)
            w = []
            if u > vm_done:
                w.append(f"vmcnt({min(63, nld - 1 - u + nst)})"); vm_done = u
            if n is not None: w.append(f"lgkmcnt({min(n, 15)})")
            if w: a("s_waitcnt " + " ".join(w))
            h = HA + 4*(u % 32); d = ACC + 16*t; bb = wreg(u % 3, t)
            a(f"v_mfma_f32_32x32x16_bf16 v[{d}:{d+15}], v[{h}:{h+3}], v[{bb}:{bb+3}], v[{d}:{d+15}]")
            if u + 2 < 40: rd_issue(u + 2, t)
            if t == 3 and u < 8: ldA(32 + u); nld += 1
            for tt in range(4):
                if i == lastpos[tt] + 3: pend += [(tt, r) for r in range(16)]
            for _ in range(3):
                if pend: ostore(*pend.pop(0)); nst += 1
            if self.prof and t == 0 and u % 10 == 9: self.stamp(3 + u // 10)
        done_t = {tt for tt in range(4) if lastpos[tt] + 3 < len(order)}
        rest = pend + [(tt, r) for tt in range(4) if tt not in done_t for r in range(16)]
        a(f"s_xor_b32 s{sT0}, s2, 80")
        a(f"s_or_b32 s{sT0}, s{sT0}, s{sW}")
        a(f"s_cmp_lg_u32 s{sT0}, 0")
        a(f"s_cselect_b32 s{sT1}, {OOB}, 0")
        a(f"s_mul_i32 s{sTAG}, s{sTAG}, {pow(KMUL, -1, 1 << 32):#x}")
        self.flag_store(sT1, 2)
        self.stamp(1)
        for x in rest: ostore(*x)
        a.label("LP2_end")
        if self.prof:
            a("s_waitcnt vmcnt(0)")
        self.stamp(2)
        self.stamp_flush(160, 1)
        a("s_endpgm")

    def loader(self):
        a = self.a
        ws = self.ws
        SX, SB, SXA, STR = S_R1, S_R2, S_R3, S_R4
        rx = f"s[{SX}:{SX+3}]"; rb = f"s[{SB}:{SB+3}]"; rxa = f"s[{SXA}:{SXA+3}]"; rt = f"s[{STR}:{STR+3}]"
        self.stamp(0)
        a(f"s_sub_u32 s{sL}, s{sW}, 4")
        if 'bprof' in self.opts: a("v_mov_b32 v255, 0")
        self.bstamp(32)
        out = []
        def issue(txt, lab):
            a(txt); out.append(lab)
        def wait_for(lab):
            idx = max(i for i, l in enumerate(out) if l == lab)
            n = len(out) - 1 - idx
            assert n <= 63
            a(f"s_waitcnt vmcnt({n})")
            del out[:idx+1]
        vXB = [4, 5, 6, 7]; vXA = [8, 9, 10, 11]; vBM = [12, 13, 14]; vWP = [28, 29, 30, 31]; vT = 15; vTW = 27
        sTLO, sTHI = sM, sM + 1
        a(f"s_lshl_b32 s{sT1}, s{sC}, 7")
        a(f"s_mul_i32 s{sT3}, s{sG}, 40")
        a(f"s_and_b32 s{sT4}, s{sG}, 7")
        a(f"s_and_b32 s{sT5}, s{sC}, 3")
        a(f"s_lshl_b32 s{sT6}, s{sT5}, 1")
        a(f"s_add_u32 s{sT6}, s{sT6}, s{sT4}")
        a(f"s_and_b32 s{sM}, s{sT6}, 7")
        a(f"s_lshl_b32 s{sM}, s{sM}, 7")
        a(f"s_add_u32 s{sT6}, s{sT6}, s{sT5}")
        a(f"s_cmp_ge_u32 s{sT6}, 10")
        a(f"s_cselect_b32 s{sT5}, 10, 0")
        a(f"s_sub_u32 s{sT6}, s{sT6}, s{sT5}")
        a(f"s_lshl_b32 s{sM+1}, s{sT6}, 7")
        a(f"s_mov_b32 s{sM2}, s{sM+1}")
        a(f"v_lshrrev_b32 v2, 3, v1")
        a(f"v_and_b32 v3, 7, v1")
        a(f"v_lshrrev_b32 v16, 1, v2")
        a(f"v_xor_b32 v32, v3, v16")
        a(f"v_xor_b32 v33, 4, v32")
        a(f"v_lshlrev_b32 v32, 4, v32")
        a(f"v_lshlrev_b32 v33, 4, v33")
        a(f"s_lshl_b32 s{sT0}, s{sL}, 5")
        a(f"s_add_u32 s{sT0}, s{sT0}, s{sT1}")
        a(f"s_mul_i32 s{sT0}, s{sT0}, 1280")
        a(f"v_mul_u32_u24 v34, 1280, v2")
        a(f"v_lshrrev_b32 v35, 2, v2")
        a(f"v_lshlrev_b32 v35, 3, v35")
        a(f"v_and_b32 v36, 3, v2")
        a(f"v_add_u32 v35, v35, v36")
        a(f"v_mul_u32_u24 v35, 1280, v35")
        for i in range(4):
            a(f"v_add3_u32 v{vXB[i]}, v35, v{32 + (i & 1)}, s{sT0}")
            if i: a(f"v_add_u32 v{vXB[i]}, {(16*(i & 1) + 4*(i >> 1))*1280 - i*1024}, v{vXB[i]}")
        a(f"s_and_b32 s{sT1}, s{sL}, 1")
        a(f"s_lshl_b32 s{sT1}, s{sT1}, 6")
        a(f"v_xor_b32 v36, s{sT1}, v32")
        a(f"s_lshr_b32 s{sT2}, s{sL}, 1")
        a(f"s_lshl_b32 s{sT2}, s{sT2}, 3")
        a(f"s_add_u32 s{sT2}, s{sT2}, s{sT3}")
        a(f"s_mul_i32 s{sT2}, s{sT2}, 1280")
        a(f"v_add3_u32 v{vBM[0]}, v34, v36, s{sT2}")
        a(f"v_add_u32 v{vBM[1]}, {16*1280}, v{vBM[0]}")
        a(f"s_cmp_ge_u32 s{sL}, 2")
        a(f"s_cselect_b32 s{sT3}, {OOB}, {32*1280}")
        a(f"v_add_u32 v{vBM[2]}, s{sT3}, v{vBM[0]}")
        a(f"s_lshl_b32 s{sLX}, s{sL}, 12")
        a(f"s_lshl_b32 s{sLW}, s{sL}, 10")
        a("s_waitcnt lgkmcnt(0)")
        a.srd(SX, P_BX, 2621440)
        a(f"s_cmp_eq_u32 s{sT1}, 64")
        a(f"s_cselect_b32 s{SB}, s{P_BIM}, s{P_BRE}")
        a(f"s_cselect_b32 s{SB+1}, s{P_BIM+1}, s{P_BRE+1}")
        a(f"s_and_b32 s{SB+1}, s{SB+1}, 0xffff")
        a(f"s_mov_b32 s{SB+2}, 819200")
        a(f"s_mov_b32 s{SB+3}, 0x00020000")
        def adv(reg, lim=1280):
            a(f"s_add_u32 s{reg}, s{reg}, 128")
            a(f"s_cmp_ge_u32 s{reg}, {lim}")
            a(f"s_cselect_b32 s{reg}, 0, s{reg}")
        def stageB(S):
            sl = RING + (S % 4) * 32768
            a(f"s_add_u32 m0, s{sLX}, {sl}")
            if S < NLOCK:
                a(f"s_movk_i32 s{sKS}, {128*S}")
            else:
                a(f"s_add_u32 s{sKS}, s{sM}, {128*NLOCK}")
                adv(sM, 128*(10 - NLOCK))
            for i in range(4):
                issue(f"buffer_load_dwordx4 v{vXB[i]}, {rx}, s{sKS} offen offset:{1024*i} {'nt' if S < NTS else ''} lds", f'st{S}')
            for m in range(3):
                a(f"s_add_u32 m0, s{sLW}, {sl + 16384 + 4096*m}")
                issue(f"buffer_load_dwordx4 v{vBM[m]}, {rb}, s{sKS} offen {'nt' if S < NTS else ''} lds", f'st{S}')
        def stageAx(S):
            sl = RING + (S % 4) * 32768
            a(f"s_add_u32 m0, s{sLX}, {sl}")
            for i in range(4):
                issue(f"buffer_load_dwordx4 v{vXA[i]}, {rxa}, s{sM+1} offen offset:{1024*i} {'nt' if S < 10 + NTA else ''} lds", f'st{S}')
            adv(sM + 1)
        def stageAw(S):
            sl = RING + (S % 4) * 32768
            a(f"s_add_u32 m0, s{sLX}, {sl + 16384}")
            a(f"s_mul_i32 s{sKS}, s{sM2}, 120")
            for i in range(4):
                issue(f"buffer_load_dwordx4 v{vWP[i]}, {ws}, s{sKS} offen offset:{1024*i} sc1 lds", f'st{S}')
            adv(sM2)
        stageB(0); stageB(1)
        self.stamp(1)
        a.srd(S_WS, P_WS, WS_BYTES)
        vS = 26
        a("v_mov_b32 v2, 0")
        issue(f"buffer_load_dword v{vS}, v2, {ws}, 0 offen sc1", 'ep')
        a.srd(SXA, P_AX, 2621440)
        for i in range(4):
            a(f"v_add3_u32 v{vXA[i]}, v34, v{32 + (i & 1)}, s{sT0}")
            if i: a(f"v_add_u32 v{vXA[i]}, {i*8*1280 - i*1024}, v{vXA[i]}")
        a(f"s_mul_i32 s{sT2}, s{sG}, 153600")
        a(f"s_add_u32 s{sT2}, s{sT2}, {WS_WP}")
        a(f"s_mul_i32 s{sT3}, s{sL}, 3840")
        a(f"s_add_u32 s{sT3}, s{sT3}, s{sT2}")
        a(f"v_lshl_add_u32 v{vWP[0]}, v1, 4, s{sT3}")
        a(f"v_and_b32 v36, 31, v1")
        a(f"v_min_u32 v37, 27, v36")
        a(f"v_lshlrev_b32 v37, 4, v37")
        a(f"v_lshrrev_b32 v35, 5, v1")
        a(f"v_mul_u32_u24 v34, 448, v35")
        a(f"v_add3_u32 v{vWP[1]}, v37, v34, s{sT3}")
        a(f"v_subrev_u32 v{vWP[2]}, 128, v{vWP[0]}")
        a(f"v_subrev_u32 v{vWP[3]}, 128, v{vWP[1]}")
        vQ = 38
        a(f"v_and_b32 v{vQ}, 15, v1")
        a(f"v_add_u32 v{vQ}, 64, v{vQ}")
        a(f"s_cmp_eq_u32 s{sL}, 0")
        a(f"s_cselect_b64 vcc, -1, 0")
        a(f"v_cndmask_b32 v{vQ}, v{vQ}, v1, vcc")
        self.p2_role()
        self.reduce_addrs(0); self.reduce_addrs(1)
        self.p2_loader_setup()
        SG, TB, vSA = 40, 56, 39
        AG = 64
        def agg_loads(track):
            a(f"s_mul_i32 s{sT0}, s{sG}, {16*384}")
            a(f"s_add_u32 s{sT0}, s{sT0}, {WS_AGG}")
            a(f"v_lshl_add_u32 v3, v{vQ}, 2, s{sT0}")
            a(f"s_cmp_ge_u32 s{sL}, 2")
            a(f"s_cselect_b32 s{sT3}, 0, s{sC}")
            for m in range(15):
                a(f"s_sub_u32 s{sT1}, s{sT3}, {15 - m}")
                a(f"s_mul_i32 s{sT2}, s{sT1}, 384")
                a(f"s_cmp_lt_i32 s{sT1}, 0")
                a(f"s_cselect_b32 s{sT2}, {OOB}, s{sT2}")
                t = f"buffer_load_dword v{AG+m}, v3, {ws}, s{sT2} offen sc1"
                if track: issue(t, 'ag')
                else: a(t)
        for S in range(17):
            wait_for(f'st{S}')
            a("s_barrier")
            self.bstamp(S)
            if S == 0:
                self.stamp(2)
                stageB(2); stageB(3)
            elif S <= 6:
                stageB(S + 3)
            else:
                stageAx(S + 3)
                if S == WGATE:
                    for q in range(10, S + 4): stageAw(q)
                elif S > WGATE:
                    stageAw(S + 3)
            if S == 11:
                a(f"v_mul_u32_u24 v{vSA}, 80, v{vQ}")
                for m in range(4):
                    a(f"ds_read_b128 v[{SG+4*m}:{SG+4*m+3}], v{vSA} offset:{L_SEG + 16*m}")
                a(f"v_lshlrev_b32 v2, 5, v{vQ}")
                a(f"ds_read_b128 v[{TB}:{TB+3}], v2 offset:{L_TAB + 16}")
                a(f"s_lshl_b32 s{sT0}, s{sG}, 4")
                a(f"s_add_u32 s{sT0}, s{sT0}, s{sC}")
                a(f"s_mul_i32 s{sT0}, s{sT0}, 384")
                a(f"s_add_u32 s{sT0}, s{sT0}, {WS_AGG}")
                a(f"v_lshl_add_u32 v3, v{vQ}, 2, s{sT0}")
                a(f"s_cmp_ge_u32 s{sL}, 2")
                a(f"s_cselect_b32 s{sT5}, {OOB}, 0")
                a(f"v_mov_b32 v2, 0xfff")
                a("s_waitcnt lgkmcnt(0)")
                prev = SG
            if S in (11, 12, 13):
                for sg in range(1 + 5*(S - 11), 6 + 5*(S - 11)):
                    cur = 60 + (sg & 1)
                    a(f"v_fma_f32 v{cur}, v{TB}, v{prev}, v{SG+sg}")
                    a(f"v_fmac_f32_dpp v{cur}, v{prev}, v{TB+1} {DPP}")
                    prev = cur
            if S == 13:
                a(f"v_bfi_b32 v{prev}, v2, s{sTAG}, v{prev}")
                issue(f"buffer_store_dword v{prev}, v3, {ws}, s{sT5} offen sc1", 'agg')
            if S == 2:
                self.tag_from(vS)
            if S == 5 and TWS:
                a(f"s_lshl_b32 s{sT0}, s{sC2}, 2")
                a(f"s_add_u32 s{sT0}, s{sT0}, s{sL}")
                a(f"s_mul_i32 s{sT1}, s{sT0}, 81920")
                a(f"s_add_u32 s{sT1}, s{sT1}, {WS_H}")
                a(f"s_mul_i32 s{sT2}, s{sT0}, 40960")
                a(f"s_add_u32 s{sT2}, s{sT2}, {WS_O - 20*4096}")
                a(f"s_cmp_lt_u32 s{sR2}, 10")
                a(f"s_cselect_b32 s{sT1}, s{sT1}, {OOB}")
                a(f"s_cselect_b32 s{sT2}, {OOB}, s{sT2}")
                a(f"v_mov_b32 v2, s{sT1}")
                a(f"v_mov_b32 v3, s{sT2}")
                a(f"v_cmp_lt_u32 vcc, 19, v1")
                a(f"v_cndmask_b32 v2, v2, v3, vcc")
                a(f"v_lshl_add_u32 v2, v1, 12, v2")
                a(f"s_mul_i32 s{sT1}, s{sG}, {16*KVPITCH}")
                a(f"s_add_u32 s{sT1}, s{sT1}, {WS_KVP - 32*KVPITCH}")
                a(f"v_mul_u32_u24 v3, {KVPITCH}, v1")
                a(f"v_add_u32 v3, s{sT1}, v3")
                a(f"v_cmp_lt_u32 vcc, 29, v1")
                a(f"v_cndmask_b32 v2, v2, v3, vcc")
                a(f"v_mov_b32 v3, {OOB}")
                a(f"v_cmp_lt_u32 vcc, 47, v1")
                a(f"v_cndmask_b32 v2, v2, v3, vcc")
                issue(f"buffer_load_dword v254, v2, {ws}, 0 offen sc1", 't')
            if S == KVZ:
                a(f"v_mov_b32 v60, 0")
                a(f"v_mov_b32 v61, 0")
                a(f"v_mul_u32_u24 v2, 112, v1")
                a(f"ds_write_b64 v2, v[60:61] offset:{L_KVI+40}")
                a(f"ds_write_b64 v2, v[60:61] offset:{L_KVI+88}")
                a("s_waitcnt lgkmcnt(0)")
        a(f"s_cmp_ge_u32 s{sL}, 2")
        a("s_cbranch_scc1 LL_hi")
        out_save = list(out)
        wait_for('st17'); a("s_barrier"); self.bstamp(17)
        if TOUT:
            a.srd(S_R3, P_OUT, 2048*1280*4)
            a(f"s_lshl_b32 s{sT0}, s{sC2}, 7")
            a(f"s_lshl_b32 s{sT1}, s{sL}, 6")
            a(f"s_add_u32 s{sT0}, s{sT0}, s{sT1}")
            a(f"v_add_u32 v2, s{sT0}, v1")
            a(f"v_mul_u32_u24 v2, 5120, v2")
            a(f"s_lshl_b32 s{sT0}, s{sD0}, 8")
            a(f"s_add_u32 s{sT1}, s{sT0}, 2560")
            a(f"s_lshl_b32 s{sT0}, s{sT0}, 1")
            a(f"s_cmp_lt_u32 s{sR2}, 10")
            a(f"s_cselect_b32 s{sT0}, s{sT1}, s{sT0}")
            issue(f"buffer_load_dword v254, v2, s[{S_R3}:{S_R3+3}], s{sT0} offen", 't')
        wait_for('st18'); a("s_barrier"); self.bstamp(18)
        wait_for('st19'); a("s_barrier"); self.bstamp(19)
        a("s_barrier")
        self.bstamp(20)
        self.stamp(4, True)
        agg_loads(False)
        a("s_barrier")
        self.bstamp(21)
        a(f"s_mov_b32 s{sT7}, 0")
        a("s_waitcnt vmcnt(0)")
        a.label("LL_agchk")
        a("v_mov_b32 v62, 0")
        for m in range(15):
            a(f"s_cmp_ge_u32 s{sC}, {15 - m}")
            a(f"s_cselect_b32 s{sT0}, 0xfff, 0")
            a(f"v_xor_b32 v63, s{sTAG}, v{AG+m}")
            a(f"v_and_or_b32 v62, v63, s{sT0}, v62")
        a(f"v_cmp_ne_u32 vcc, 0, v62")
        a(f"s_cmp_lg_u64 vcc, 0")
        a("s_cbranch_scc1 LL_agretry")
        a.label("LL_agok")
        prev = AG
        for m in range(1, 15):
            cur = 60 + (m & 1) if m < 14 else 80
            a(f"v_fma_f32 v{cur}, v{TB+2}, v{prev}, v{AG+m}")
            a(f"v_fmac_f32_dpp v{cur}, v{prev}, v{TB+3} {DPP}")
            prev = cur
        SS = 80
        for sg in range(15):
            a(f"v_fma_f32 v{SS+sg+1}, v{TB}, v{SS+sg}, v{SG+sg}")
            a(f"v_fmac_f32_dpp v{SS+sg+1}, v{SS+sg}, v{TB+1} {DPP}")
        for m in range(4):
            a(f"ds_write_b128 v{vSA}, v[{SS+4*m}:{SS+4*m+3}] offset:{L_SEG + 16*m}")
        a("s_waitcnt lgkmcnt(0)")
        self.stamp(5, True)
        a("s_barrier")
        self.bstamp(22)
        a("s_branch LL_reduce")
        a.label("LL_agretry")
        agg_loads(False)
        a(f"s_add_u32 s{sT7}, s{sT7}, 1")
        a("s_waitcnt vmcnt(0)")
        a(f"s_cmp_lt_u32 s{sT7}, 0x40000")
        a("s_cbranch_scc1 LL_agchk")
        a("s_branch LL_agok")
        a.label("LL_hi")
        out[:] = out_save
        sK2 = sROT
        def piece(lo, hi, role=None):
            la = a.newlabel("Lpc_a"); le = a.newlabel("Lpc_e")
            if role is None:
                a(f"s_cmp_ge_u32 s{sR2}, 10")
                a(f"s_cbranch_scc1 {la}")
            for j in (range(lo // 4, hi // 4) if role != 'A' else []):
                base = (RING + 16384*j) % LDS_TOTAL
                for vv in range(2):
                    a(f"s_add_u32 m0, s{sL2X}, {base + 4096*vv}")
                    for i in range(4):
                        a(f"buffer_load_dwordx4 v{100+4*vv+i}, s[{S_R4}:{S_R4+3}], s{sK2} offen offset:{1024*i} lds")
                adv(sK2)
            if role is None:
                a(f"s_branch {le}")
                a.label(la)
            for u in (range(lo, hi) if role != 'B' else []):
                base = (RING + 4096*u) % LDS_TOTAL
                a(f"s_add_u32 m0, s{sL2X}, {base}")
                st = u % 5
                for vv in range(2):
                    a(f"buffer_load_dwordx4 v{100+5*vv+st}, s[{S_R4}:{S_R4+3}], s{sK2} offen offset:{1024*vv} lds")
                if st == 4:
                    a(f"s_add_u32 s{sK2}, s{sK2}, {80*1280}")
                    a(f"s_cmp_ge_u32 s{sK2}, {640*1280}")
                    a(f"s_cselect_b32 s{sK2}, 0, s{sK2}")
            if role is None: a.label(le)
            for u in range(lo, hi):
                out.extend([f'u{u}'] * 2)
        pre = 'nopre' not in self.opts
        wait_for('st17'); a("s_barrier")
        if pre: piece(0, 8)
        wait_for('st18'); a("s_barrier")
        if pre: piece(8, 16)
        wait_for('st19'); a("s_barrier")
        if pre: piece(16, 20)
        a("s_barrier")
        if 'pf2' in self.opts:
            la = a.newlabel("Lpf_a"); le = a.newlabel("Lpf_e")
            a(f"s_cmp_ge_u32 s{sR2}, 10")
            a(f"s_cbranch_scc1 {la}")
            a(f"s_lshl_b32 s{sT0}, s{sD0}, 6")
            a(f"v_add_u32 v2, s{sT0}, v1")
            a(f"v_mul_u32_u24 v2, 1280, v2")
            a(f"s_mov_b32 s{sT1}, s{sK2}")
            for i in range(5):
                a(f"buffer_load_dword v254, v2, s[{S_R4}:{S_R4+3}], s{sT1} offen")
                adv(sT1)
            a(f"s_branch {le}")
            a.label(la)
            a(f"s_min_u32 s{sT0}, s{sD0}, 4")
            a(f"s_lshl_b32 s{sT0}, s{sT0}, 8")
            a(f"s_sub_u32 s{sT1}, s{sL}, 2")
            a(f"s_lshl_b32 s{sT1}, s{sT1}, 7")
            a(f"s_add_u32 s{sT0}, s{sT0}, s{sT1}")
            a(f"v_mul_u32_u24 v2, 1280, v1")
            a(f"v_add_u32 v2, s{sK2}, v2")
            for i in range(5):
                a(f"v_subrev_u32 v3, {640*1280}, v2")
                a(f"v_min_u32 v3, v3, v2")
                a(f"buffer_load_dword v254, v3, s[{S_R4}:{S_R4+3}], s{sT0} offen")
                a(f"v_add_u32 v2, {64*1280}, v2")
            a.label(le)
        a("s_barrier")
        a("s_barrier")
        if P3X2: piece(20, 32)
        if 'gprof' in self.opts: self.stamp(5)
        a.label("LL_reduce")
        LA = [112 + 4*i for i in range(16)]
        vLA, vDA, vDA2, vDB, vDB2 = 16, 18, 19, 20, 21
        sCR = sM + 1
        sP0, sP1 = sT4, sT5
        vPR = 23
        self.tagpat(sP0, sP1)
        a(f"s_mov_b32 s{sT7}, 0")
        a(f"s_and_b32 s{sCR}, s{sC}, 3")
        a(f"s_mul_i32 s{sCR}, s{sCR}, {4*KVPITCH}")
        if 'bprof' in self.opts: a(f"s_mov_b32 s{sT6}, 0"); self.bstamp(26)
        def chk(r):
            for i in range(4):
                a(f"v_xor_b32 v{64+i}, s{sP0 if i % 2 == 0 else sP1}, v{r+i}")
            a(f"v_or3_b32 v72, v72, v64, v65")
            a(f"v_or3_b32 v72, v72, v66, v67")
        a.label("LL_probe")
        a(f"buffer_load_dwordx4 v[76:79], v{vPR}, {ws}, 0 offen sc1")
        a(f"s_add_u32 s{sT7}, s{sT7}, 1")
        a(f"s_cmp_ge_u32 s{sT7}, 0x40000")
        a("s_cbranch_scc1 LL_sum")
        a("v_mov_b32 v72, 0")
        a("s_waitcnt vmcnt(0)")
        chk(76)
        a(f"v_and_b32 v72, 0x10001, v72")
        a(f"v_cmp_ne_u32 vcc, 0, v72")
        a(f"s_cmp_lg_u64 vcc, 0")
        a("s_cbranch_scc1 LL_probe")
        self.stamp(6, True)
        self.bstamp(23)
        if 'bprof' in self.opts: a(f"s_add_u32 s{sT6}, s{sT6}, 1")
        a(f"s_mov_b32 s{sT0}, s{sCR}")
        for cc in range(16):
            a(f"buffer_load_dwordx4 v[{LA[cc]}:{LA[cc]+3}], v{vLA}, {ws}, s{sT0} offen sc1")
            if cc < 15:
                a(f"s_add_u32 s{sT0}, s{sT0}, {KVPITCH}")
                if cc % 4 == 3:
                    a(f"s_cmp_eq_u32 s{sT0}, {16*KVPITCH}")
                    a(f"s_cselect_b32 s{sT0}, 0, s{sT0}")
        AC, TP = 80, 88
        for cc in range(16):
            a(f"s_waitcnt vmcnt({15-cc})")
            chk(LA[cc])
            d = AC if cc == 0 else TP
            for i in range(4):
                a(f"v_lshlrev_b32 v{d+2*i}, 16, v{LA[cc]+i}")
                a(f"v_and_b32 v{d+2*i+1}, 0xffff0000, v{LA[cc]+i}")
            if cc:
                for i in range(4):
                    a(f"v_pk_add_f32 v[{AC+2*i}:{AC+2*i+1}], v[{AC+2*i}:{AC+2*i+1}], v[{TP+2*i}:{TP+2*i+1}]")
        a(f"v_and_b32 v72, v24, v72")
        a(f"v_cmp_ne_u32 vcc, 0, v72")
        a(f"s_cmp_lg_u64 vcc, 0")
        a("s_cbranch_scc1 LL_probe")
        a.label("LL_sum")
        if 'bprof' in self.opts:
            a(f"v_writelane_b32 v255, s{sT6}, 40")
            a(f"v_writelane_b32 v255, s{sT7}, 41")
        for i in range(4):
            a(f"v_cvt_pk_bf16_f32 v{TP+i}, v{AC+2*i}, v{AC+2*i+1}")
        a(f"ds_write_b64 v{vDA}, v[{TP}:{TP+1}]")
        a(f"ds_write_b64 v{vDA2}, v[{TP}:{TP+1}]")
        a(f"ds_write_b64 v{vDB}, v[{TP+2}:{TP+3}]")
        a(f"ds_write_b64 v{vDB2}, v[{TP+2}:{TP+3}]")
        a("s_waitcnt lgkmcnt(0)")
        self.stamp(7, True)
        self.bstamp(24)
        a("s_barrier")
        self.bstamp(25)
        self.bflush()
        self.stamp_flush(112, 0)
        a(f"s_cmp_lt_u32 s{sL}, 2")
        a("s_cbranch_scc1 L_end")
        if not pre:
            piece(0, 20)
            a("s_waitcnt vmcnt(0)")
        a("s_barrier")
        a(f"s_cmp_eq_u32 s{sR2}, 15")
        a("s_cbranch_scc1 L_end")
        out[:] = []
        if 'nop34' in self.opts: a(f"s_mov_b32 s{S_R4+2}, 0")
        la = a.newlabel("Ly_a")
        a(f"s_cmp_ge_u32 s{sR2}, 10")
        a(f"s_cbranch_scc1 {la}")
        piece(32 if P3X2 else 20, 40, 'B')
        a("s_barrier")
        if not P3X2: wait_for('u23')
        a("s_barrier")
        if not P3X2: wait_for('u31')
        a("s_barrier")
        wait_for('u39'); a("s_barrier")
        a("s_endpgm")
        a.label(la)
        out[:] = []
        piece(32 if P3X2 else 20, 40, 'A')
        if not P3X2: wait_for('u29')
        a("s_barrier")
        wait_for('u39'); a("s_barrier")
        a("s_endpgm")

    def reduce_addrs(self, part):
        a = self.a
        vLA, vLB, vDA, vDA2, vDB, vDB2 = 16, 17, 18, 19, 20, 21
        vt = 22
        if part == 0:
            a(f"v_subrev_u32 v{vt}, 256, v0")
            a(f"s_mul_i32 s{sT2}, s{sG}, {16*KVPITCH}")
            a(f"s_add_u32 s{sT2}, s{sT2}, {WS_KVP}")
            a(f"v_lshl_add_u32 v{vLA}, v{vt}, 4, s{sT2}")
            a(f"v_cmp_lt_u32 vcc, 209, v{vt}")
            a(f"v_mov_b32 v2, {OOB}")
            a(f"v_cndmask_b32 v{vLA}, v{vLA}, v2, vcc")
            a(f"v_mov_b32 v24, 0x10001")
            a(f"v_mov_b32 v2, 0")
            a(f"v_cndmask_b32 v24, v24, v2, vcc")
            a(f"v_and_b32 v23, 15, v1")
            a(f"v_mul_u32_u24 v23, {KVPITCH}, v23")
            a(f"v_bfe_u32 v2, v1, 4, 1")
            a(f"v_lshl_add_u32 v23, v2, 4, v23")
            a(f"s_lshr_b32 s{sT3}, s{sL}, 1")
            a(f"s_mul_i32 s{sT3}, s{sT3}, 1680")
            a(f"s_add_u32 s{sT2}, s{sT2}, s{sT3}")
            a(f"s_and_b32 s{sT3}, s{sL}, 1")
            a(f"s_lshl_b32 s{sT3}, s{sT3}, 7")
            a(f"s_add_u32 s{sT2}, s{sT2}, s{sT3}")
            a(f"s_add_u32 s{sT2}, s{sT2}, 1344")
            a(f"v_add_u32 v23, s{sT2}, v23")
        def lds_dst(qoff, vd, vd2, t0):
            q, e_, fq, dd, x, y = t0, t0+1, t0+2, t0+3, t0+4, t0+5
            a(f"v_lshl_add_u32 v{q}, v{vt}, 1, {qoff}")
            a(f"v_cmp_lt_u32 vcc, 209, v{q}")
            a(f"v_mov_b32 v{x}, 0")
            a(f"v_mov_b32 v{y}, 210")
            a(f"v_cndmask_b32 v{e_}, v{x}, v{y}, vcc")
            a(f"v_sub_u32 v{q}, v{q}, v{e_}")
            a(f"v_mov_b32 v{y}, {32*112}")
            a(f"v_cndmask_b32 v{e_}, v{x}, v{y}, vcc")
            a(f"v_mul_u32_u24 v{fq}, 3121, v{q}")
            a(f"v_lshrrev_b32 v{fq}, 16, v{fq}")
            a(f"v_mul_u32_u24 v{x}, 21, v{fq}")
            a(f"v_sub_u32 v{dd}, v{q}, v{x}")
            a(f"v_lshl_add_u32 v{e_}, v{fq}, 3, v{e_}")
            a(f"v_add_u32 v{x}, 8, v{e_}")
            a(f"v_cmp_lt_u32 vcc, 4, v{fq}")
            a(f"v_cndmask_b32 v{e_}, v{e_}, v{x}, vcc")
            a(f"v_subrev_u32 v{x}, 10, v{dd}")
            a(f"v_cmp_lt_u32 vcc, 9, v{dd}")
            a(f"v_cndmask_b32 v{x}, v{dd}, v{x}, vcc")
            a(f"v_mov_b32 v{y}, 0")
            a(f"v_mov_b32 v{q}, 4")
            a(f"v_cndmask_b32 v{y}, v{y}, v{q}, vcc")
            a(f"v_lshrrev_b32 v{q}, 2, v{x}")
            a(f"v_lshl_add_u32 v{y}, v{q}, 3, v{y}")
            a(f"v_and_b32 v{x}, 3, v{x}")
            a(f"v_add_u32 v{y}, v{y}, v{x}")
            a(f"v_mul_u32_u24 v{y}, 112, v{y}")
            a(f"v_add_u32 v{vd}, v{y}, v{e_}")
            a(f"v_subrev_u32 v{x}, {4*112}, v{vd}")
            a(f"v_cmp_eq_u32 vcc, 20, v{dd}")
            a(f"v_cndmask_b32 v{vd2}, v{vd}, v{x}, vcc")
        assert L_KVI == 0
        if part == 0:
            lds_dst(0, vDA, vDA2, 64)
            return
        lds_dst(1, vDB, vDB2, 64)
        a(f"v_mov_b32 v2, {L_DUM}")
        a(f"v_cmp_lt_u32 vcc, 209, v{vt}")
        a(f"v_cndmask_b32 v{vDA}, v{vDA}, v2, vcc")
        a(f"v_cndmask_b32 v{vDA2}, v{vDA2}, v2, vcc")
        a(f"v_cndmask_b32 v{vDB}, v{vDB}, v2, vcc")
        a(f"v_cndmask_b32 v{vDB2}, v{vDB2}, v2, vcc")

    def p2_loader_setup(self):
        a = self.a
        SW_ = S_R4
        la = a.newlabel("Lp2ls_a"); le = a.newlabel("Lp2ls_e")
        a(f"s_cmp_ge_u32 s{sR2}, 10")
        a(f"s_cbranch_scc1 {la}")
        a(f"s_cmp_eq_u32 s{sL}, 3")
        a(f"s_cselect_b32 s{SW_}, s{P_CIM}, s{P_CRE}")
        a(f"s_cselect_b32 s{SW_+1}, s{P_CIM+1}, s{P_CRE+1}")
        a(f"v_lshrrev_b32 v110, 3, v1")
        a(f"v_mul_u32_u24 v110, 1280, v110")
        a(f"s_mul_i32 s{sT0}, s{sD0}, {64*1280}")
        for vv in range(2):
            for i in range(4):
                a(f"v_add3_u32 v{100+4*vv+i}, v110, v{32 + (i & 1)}, s{sT0}")
                if i or vv: a(f"v_add_u32 v{100+4*vv+i}, {(32*vv + 8*i)*1280 - i*1024}, v{100+4*vv+i}")
        a(f"v_mov_b32 v108, v100")
        a(f"v_mov_b32 v109, v100")
        a(f"s_lshl_b32 s{sROT}, s{sROT2}, 7")
        a(f"s_sub_u32 s{sL2X}, s{sL}, 2")
        a(f"s_lshl_b32 s{sL2X}, s{sL2X}, 13")
        a(f"s_branch {le}")
        a.label(la)
        a(f"s_mov_b32 s{SW_}, s{P_WO}")
        a(f"s_mov_b32 s{SW_+1}, s{P_WO+1}")
        a(f"v_lshrrev_b32 v110, 4, v1")
        a(f"v_bfe_u32 v111, v1, 2, 2")
        a(f"v_xor_b32 v111, v111, v110")
        a(f"v_lshlrev_b32 v111, 6, v111")
        a(f"v_and_b32 v2, 3, v1")
        a(f"v_lshl_add_u32 v111, v2, 4, v111")
        a(f"s_min_u32 s{sT0}, s{sD0}, 4")
        a(f"s_lshl_b32 s{sT0}, s{sT0}, 8")
        a(f"v_add_u32 v111, s{sT0}, v111")
        a(f"s_sub_u32 s{sT0}, s{sL}, 2")
        a(f"s_mul_i32 s{sT0}, s{sT0}, 10")
        a(f"v_add_u32 v3, s{sT0}, v110")
        for vv in range(2):
            for st in range(4):
                base = 8*(st & 1) + 4*vv
                dst = 100 + 5*vv + st
                if base == 8:
                    a(f"v_add_u32 v2, 10, v3")
                    a(f"v_cmp_lt_u32 vcc, 1, v110")
                    a(f"v_cndmask_b32 v2, v3, v2, vcc")
                    a(f"v_add_u32 v2, {40*(st >> 1) + base}, v2")
                else:
                    a(f"v_add_u32 v2, {40*(st >> 1) + base + (10 if base > 8 else 0)}, v3")
                a(f"v_mul_u32_u24 v2, 1280, v2")
                a(f"v_add_u32 v{dst}, v2, v111")
                if vv: a(f"v_subrev_u32 v{dst}, 1024, v{dst}")
            dst = 100 + 5*vv + 4
            a(f"v_add_u32 v2, {40*vv + 26}, v3")
            a(f"v_mul_u32_u24 v2, 1280, v2")
            a(f"v_add_u32 v{dst}, v2, v111")
            if vv: a(f"v_subrev_u32 v{dst}, 1024, v{dst}")
        a(f"s_mul_i32 s{sROT}, s{sROT2}, {80*1280}")
        a(f"s_sub_u32 s{sL2X}, s{sL}, 2")
        a(f"s_lshl_b32 s{sL2X}, s{sL2X}, 11")
        a.label(le)
        a(f"s_and_b32 s{SW_+1}, s{SW_+1}, 0xffff")
        a(f"s_mov_b32 s{SW_+2}, 819200")
        a(f"s_mov_b32 s{SW_+3}, 0x00020000")

    def side_jobs(self, vS):
        a = self.a
        lend = a.newlabel("Lside_end"); l3 = a.newlabel("Lside3")
        a(f"s_cmp_eq_u32 s{sW}, 2")
        a(f"s_cbranch_scc1 {l3}")
        a(f"s_cmp_lg_u32 s{sW}, 1")
        a(f"s_cbranch_scc1 {lend}")
        lre, lim, ldt = 64, 65, 66
        a(f"v_lshlrev_b32 v{lre}, 16, v{vS+1}")
        a(f"v_lshlrev_b32 v{lim}, 16, v{vS+2}")
        a(f"v_lshlrev_b32 v{ldt}, 16, v{vS+3}")
        a(f"v_mul_f32 v{ldt}, s{sLOG2E}, v{ldt}")
        a(f"v_exp_f32 v{ldt}, v{ldt}")
        a(f"v_cvt_pk_bf16_f32 v{ldt}, v{ldt}, v{ldt}")
        a(f"v_lshlrev_b32 v{ldt}, 16, v{ldt}")
        a(f"v_mul_f32 v67, v{ldt}, v{lre}")
        a(f"v_mul_f32 v68, v{ldt}, v{lim}")
        a(f"v_mul_f32 v67, s{sLOG2E}, v67")
        a(f"v_exp_f32 v67, v67")
        a(f"v_mul_f32 v68, 0.15915494, v68")
        a(f"v_rndne_f32 v69, v68")
        a(f"v_sub_f32 v68, v68, v69")
        a(f"v_cos_f32 v69, v68")
        a(f"v_sin_f32 v70, v68")
        RE, IM = 72, 80
        a(f"v_mul_f32 v{RE}, v67, v69")
        a(f"v_mul_f32 v{IM+1}, v67, v70")
        a(f"v_mov_b32 v{IM}, v{RE}")
        a(f"v_sub_f32 v{RE+1}, 0, v{IM+1}")
        a(f"v_add_f32 v67, -1.0, v{RE}")
        a(f"v_mul_f32 v68, v{lre}, v{lre}")
        a(f"v_fmac_f32 v68, v{lim}, v{lim}")
        a(f"v_rcp_f32 v68, v68")
        a(f"v_mul_f32 v69, v67, v{lre}")
        a(f"v_fmac_f32 v69, v{IM+1}, v{lim}")
        a(f"v_mul_f32 v70, v{IM+1}, v{lre}")
        a(f"v_fma_f32 v70, -v67, v{lim}, v70")
        a(f"v_add_f32 v68, v68, v68")
        a(f"v_mul_f32 v{RE+2}, v69, v68")
        a(f"v_sub_f32 v{IM+2}, 0, v{RE+2}")
        a(f"v_mul_f32_e64 v{RE+3}, -v70, v68")
        a(f"v_mov_b32 v{IM+3}, v{RE+3}")
        x, y = RE, IM + 1
        for it in range(7):
            if it == 2: nx, ny = RE + 4, IM + 5
            elif it == 6: nx, ny = RE + 6, IM + 7
            else: nx, ny = (67, 68) if (x, y) != (67, 68) else (69, 70)
            a(f"v_mul_f32 v71, v{y}, v{y}")
            a(f"v_mul_f32 v{ny}, v{x}, v{y}")
            a(f"v_fma_f32 v{nx}, v{x}, v{x}, -v71")
            a(f"v_add_f32 v{ny}, v{ny}, v{ny}")
            x, y = nx, ny
        for o in (4, 6):
            a(f"v_mov_b32 v{IM+o}, v{RE+o}")
            a(f"v_sub_f32 v{RE+o+1}, 0, v{IM+o+1}")
        a(f"v_min_u32 v67, 39, v1")
        a(f"v_lshrrev_b32 v68, 3, v67")
        a(f"v_and_b32 v67, 7, v67")
        a(f"v_lshl_add_u32 v67, v68, 4, v67")
        a(f"v_lshlrev_b32 v67, 5, v67")
        a(f"ds_write_b128 v67, v[{RE}:{RE+3}] offset:{L_TAB}")
        a(f"ds_write_b128 v67, v[{RE+4}:{RE+7}] offset:{L_TAB+16}")
        a(f"ds_write_b128 v67, v[{IM}:{IM+3}] offset:{L_TAB+256}")
        a(f"ds_write_b128 v67, v[{IM+4}:{IM+7}] offset:{L_TAB+256+16}")
        a(f"s_branch {lend}")
        a.label(l3)
        for i in range(4): a(f"v_mov_b32 v{64+i}, 0")
        a(f"v_lshlrev_b32 v68, 4, v1")
        a(f"ds_write_b128 v68, v[64:67] offset:{L_WPH}")
        a(f"ds_write_b128 v68, v[64:67] offset:{L_WPH+1024}")
        a(f"v_min_u32 v68, {39*16}, v68")
        a(f"ds_write_b128 v68, v[64:67] offset:{L_WPH+2048}")
        a(f"v_min_u32 v64, 39, v1")
        a(f"v_add_u32 v65, 1, v64")
        a(f"v_cmp_lt_u32 vcc, 19, v64")
        a(f"v_cndmask_b32 v64, v64, v65, vcc")
        a(f"v_lshlrev_b32 v64, 6, v64")
        a(f"v_add_u32 v64, {L_WPH}, v64")
        for i, (o0, o1) in enumerate([(0, 1), (4, 5), (8, 2), (3, 6), (7, 10)]):
            a(f"ds_write2_b32 v64, v{vS+4+2*i}, v{vS+5+2*i} offset0:{o0} offset1:{o1}")
        a.label(lend)
        a("s_waitcnt lgkmcnt(0)")

    def build(self):
        a = self.a
        a.kernel_begin(KNAME, 256, 512, LDS_TOTAL)
        a.launch = [f"; @launch grid=(256,1,1) block=(512,1,1) lds={LDS_TOTAL}"] if 'single' in self.opts else a.launch
        self.prologue()
        self.loader()
        a.label("L_compute")
        self.compute()
        a.label("L_end")
        a("s_endpgm")
        a.kernel_end(KNAME, 256)
        return a

if __name__ == "__main__":
    for o in sys.argv[2:]:
        if '=' in o:
            kk, vv = o.split('='); globals()[kk] = int(vv)
    k = K(prof='prof' in sys.argv, opts=sys.argv[2:])
    a = k.build()
    hdr = "".join(open("concat_heads__linear_kernel_hedgehog__ssm_conv_s5__prompt.s.ref").read().splitlines(True)[:17]) if 'final' in sys.argv else ""
    open(sys.argv[1], "w").write(a.text(hdr))
```

```python
import sys
import gen as G
from gen import *

R16 = 16384
LA_WPH = 0; LA_KVI = 5632; LA_DUM = 12800 + 64; ASLOT = 49152
LA_IMG = LDS_TOTAL - 67600
LB_TAB = 0; BSLOT = 36864; LB_SEG = LDS_TOTAL - 24576; LB_HT = LB_SEG + 12800; CSLOT = 24576
AGP = 640
NTS = 3
SKEW = 2
MIX = 0
TICKET = 0
sSLOT = sLW

class K2(K):
    def inter(self, ms, rs, per=None):
        a = self.a
        if per is None: per = -(-len(rs) // max(1, len(ms) - 1)) if rs else 0
        ri = 0
        for m in ms:
            a(m)
            for _ in range(per):
                if ri < len(rs): a(rs[ri]); ri += 1
        while ri < len(rs): a(rs[ri]); ri += 1

    def prologue(self):
        a = self.a
        a("s_cmp_ge_u32 s2, 256")
        a("s_cbranch_scc1 L_end")
        a("s_load_dwordx16 s[4:19], s[0:1], 0")
        a("s_load_dwordx16 s[20:35], s[0:1], 64")
        a("v_lshrrev_b32 v2, 6, v0")
        a("v_and_b32 v1, 63, v0")
        a(f"v_readfirstlane_b32 s{sW}, v2")
        if TICKET:
            a(f"s_getreg_b32 s{sT0}, hwreg(HW_REG_XCC_ID)")
            a(f"s_and_b32 s{sT0}, s{sT0}, 7")
            a("v_mov_b32 v4, 16320")
            a(f"s_cmp_lg_u32 s{sW}, 0")
            a("s_cbranch_scc1 L_tkw")
            a("s_waitcnt lgkmcnt(0)")
            a.srd(S_R1, P_DBG, 256)
            a(f"s_mov_b32 s{sT2}, 0")
            a("s_mov_b64 exec, 1")
            a.label("L_tk")
            a(f"s_lshl_b32 s{sT1}, s{sT0}, 5")
            a(f"v_mov_b32 v2, s{sT1}")
            a("v_mov_b32 v3, 1")
            a(f"buffer_atomic_add v3, v2, s[{S_R1}:{S_R1+3}], 0 offen sc0 sc1")
            a(f"s_add_u32 s{sT2}, s{sT2}, 1")
            a("s_waitcnt vmcnt(0)")
            a(f"v_readfirstlane_b32 s{sT1}, v3")
            a(f"s_cmp_lt_u32 s{sT1}, 32")
            a("s_cbranch_scc1 L_tko")
            a(f"s_add_u32 s{sT0}, s{sT0}, 1")
            a(f"s_and_b32 s{sT0}, s{sT0}, 7")
            a(f"s_cmp_lt_u32 s{sT2}, 8")
            a("s_cbranch_scc1 L_tk")
            a.label("L_tko")
            a(f"s_lshl_b32 s{sT1}, s{sT1}, 3")
            a(f"s_add_u32 s{sT1}, s{sT1}, s{sT0}")
            a(f"s_and_b32 s{sT1}, s{sT1}, 255")
            a(f"v_mov_b32 v3, s{sT1}")
            a("ds_write_b32 v4, v3")
            a("s_mov_b64 exec, -1")
            a("s_waitcnt lgkmcnt(0)")
            a.label("L_tkw")
            a("s_barrier")
            a("ds_read_b32 v3, v4")
            a("s_waitcnt lgkmcnt(0)")
            a("v_readfirstlane_b32 s2, v3")
            a("s_and_b32 s2, s2, 255")
        if MIX:
            a(f"s_and_b32 s{sC2}, s2, 7")
            a(f"s_lshl_b32 s{sC2}, s{sC2}, 1")
            a(f"s_lshr_b32 s{sT0}, s2, 7")
            a(f"s_add_u32 s{sC2}, s{sC2}, s{sT0}")
            a(f"s_bfe_u32 s{sR2}, s2, 0x30004")
            a(f"s_mov_b32 s{sLOG2E}, 0x3fb8aa3b")
            a(f"s_mov_b32 s{sLOG2E+1}, 0x3fb8aa3b")
            a(f"s_sub_u32 s{sL}, s{sW}, 4")
            a(f"s_bfe_u32 s{sT1}, s2, 0x20004")
            a(f"s_lshr_b32 s{sT2}, s2, 6")
            a("s_bitcmp1_b32 s2, 3")
            a("s_cbranch_scc1 L_B")
            a(f"s_and_b32 s{sT0}, s2, 4")
            a(f"s_add_u32 s{sC}, s{sT0}, s{sT1}")
            a(f"s_and_b32 s{sT0}, s2, 3")
            a(f"s_lshl_b32 s{sT0}, s{sT0}, 2")
            a(f"s_add_u32 s{sG}, s{sT0}, s{sT2}")
            a(f"s_xor_b32 s{sD0}, s{sG}, 1")
            a(f"s_and_b32 s{sROT2}, s{sC2}, 1")
            a(f"s_lshl_b32 s{sROT2}, s{sROT2}, 2")
            a(f"s_add_u32 s{sROT2}, s{sROT2}, s{sR2}")
            a(f"s_and_b32 s{sROT2}, s{sROT2}, 7")
        else:
            a(f"s_and_b32 s{sC2}, s2, 3")
            a(f"s_lshl_b32 s{sC2}, s{sC2}, 2")
            a(f"s_lshr_b32 s{sT0}, s2, 6")
            a(f"s_add_u32 s{sC2}, s{sC2}, s{sT0}")
            a(f"s_bfe_u32 s{sR2}, s2, 0x30003")
            a(f"s_mov_b32 s{sLOG2E}, 0x3fb8aa3b")
            a(f"s_mov_b32 s{sLOG2E+1}, 0x3fb8aa3b")
            a(f"s_sub_u32 s{sL}, s{sW}, 4")
            a("s_bitcmp1_b32 s2, 2")
            a("s_cbranch_scc1 L_B")
            a(f"s_bfe_u32 s{sT0}, s2, 0x10001")
            a(f"s_lshl_b32 s{sT0}, s{sT0}, 2")
            a(f"s_bfe_u32 s{sT1}, s2, 0x20003")
            a(f"s_add_u32 s{sC}, s{sT0}, s{sT1}")
            a(f"s_and_b32 s{sT0}, s2, 1")
            a(f"s_lshl_b32 s{sT0}, s{sT0}, 3")
            a(f"s_lshr_b32 s{sT2}, s2, 5")
            a(f"s_add_u32 s{sG}, s{sT0}, s{sT2}")
            a(f"s_xor_b32 s{sD0}, s{sG}, 1")
            a(f"s_and_b32 s{sROT2}, s{sC2}, 3")
            a(f"s_lshl_b32 s{sROT2}, s{sROT2}, 1")
            a(f"s_add_u32 s{sROT2}, s{sROT2}, s{sR2}")
            a(f"s_and_b32 s{sROT2}, s{sROT2}, 7")
        self.rot()
        a(f"s_cmp_lt_u32 s{sW}, 4")
        a("s_cbranch_scc1 L_Acomp")

    def rot(self):
        a = self.a
        a(f"s_mul_i32 s{sT1}, s{sT1}, 3")
        a(f"s_add_u32 s{sROT}, s{sT1}, s{sT2}")
        a(f"s_cmp_ge_u32 s{sROT}, 10")
        a(f"s_cselect_b32 s{sT0}, 10, 0")
        a(f"s_sub_u32 s{sROT}, s{sROT}, s{sT0}")
        a(f"s_lshl_b32 s{sROT}, s{sROT}, 7")

    def codepf(self, lab):
        a = self.a
        a(f"s_getpc_b64 s[{sM}:{sM+1}]")
        a.label(lab)
        a(f"s_lshr_b32 s{sT0}, s2, 3")
        a(f"s_lshl_b32 s{sT0}, s{sT0}, 2")
        a(f"s_add_u32 s{sT0}, s{sT0}, s{sW}")
        a(f"s_mul_i32 s{sT0}, s{sT0}, 384")
        a(f"v_min_u32 v2, 2, v1")
        a(f"v_lshl_add_u32 v2, v2, 7, s{sT0}")
        a(f"s_sub_u32 s{sM}, s{sM}, {lab}-{KNAME}")
        a(f"s_subb_u32 s{sM+1}, s{sM+1}, 0")
        a(f"v_min_u32 v2, L_end-{KNAME}, v2")
        a(f"global_load_dword v255, v2, s[{sM}:{sM+1}]")

    class VM:
        def __init__(s, a): s.a = a; s.out = []
        def issue(s, t, lab): s.a(t); s.out.append(lab)
        def wait(s, lab):
            idx = max(i for i, l in enumerate(s.out) if l == lab)
            n = len(s.out) - 1 - idx
            assert n <= 63
            s.a(f"s_waitcnt vmcnt({n})")
            del s.out[:idx+1]

    def adv(self, reg, step, lim):
        a = self.a
        a(f"s_add_u32 s{reg}, s{reg}, {step}")
        a(f"s_cmp_ge_u32 s{reg}, {lim}")
        a(f"s_cselect_b32 s{reg}, 0, s{reg}")

    def swz(self):
        a = self.a
        a(f"v_lshrrev_b32 v2, 3, v1")
        a(f"v_and_b32 v3, 7, v1")
        a(f"v_lshrrev_b32 v34, 1, v2")
        a(f"v_xor_b32 v32, v3, v34")
        a(f"v_xor_b32 v33, 4, v32")
        a(f"v_lshlrev_b32 v32, 4, v32")
        a(f"v_lshlrev_b32 v33, 4, v33")
        a(f"v_mul_u32_u24 v34, 1280, v2")

    def a_loader(self):
        a = self.a; ws = self.ws
        vm = self.VM(a)
        SX, SQ, SO_ = S_R1, S_R2, S_R4
        rx = f"s[{SX}:{SX+3}]"; rq = f"s[{SQ}:{SQ+3}]"; rw = f"s[{SO_}:{SO_+3}]"
        self.stamp(0)
        vX = [4, 5, 6, 7]; vWq = [8, 9, 10, 11]
        if 'bprof' in self.opts: a("v_mov_b32 v255, 0")
        self.bstamp(32)
        self.swz()
        a(f"s_lshl_b32 s{sT0}, s{sC}, 8")
        a(f"s_lshl_b32 s{sT1}, s{sL}, 6")
        a(f"s_add_u32 s{sT0}, s{sT0}, s{sT1}")
        a(f"s_mul_i32 s{sT0}, s{sT0}, 1280")
        for i in range(4):
            a(f"v_add3_u32 v{vX[i]}, v34, v{32 + (i & 1)}, s{sT0}")
            if i: a(f"v_add_u32 v{vX[i]}, {i*8*1280 - i*1024}, v{vX[i]}")
        a(f"v_lshrrev_b32 v2, 4, v1")
        a(f"v_lshlrev_b32 v3, 2, v2")
        a(f"v_sub_u32 v3, v1, v3")
        a(f"v_and_b32 v3, 15, v3")
        a(f"v_min_u32 v3, 14, v3")
        a(f"v_mul_u32_u24 v12, 52, v3")
        a(f"v_lshrrev_b32 v12, 8, v12")
        a(f"v_mul_u32_u24 v12, 1200, v12")
        a(f"v_lshl_add_u32 v12, v3, 4, v12")
        a(f"v_mul_u32_u24 v2, 3840, v2")
        a(f"s_mul_i32 s{sT0}, s{sG}, 80")
        a(f"s_mul_i32 s{sT1}, s{sD0}, 80")
        a(f"v_mov_b32 v13, s{sT0}")
        a(f"v_mov_b32 v14, s{sT1}")
        a(f"v_cmp_gt_u32 vcc, 5, v3")
        a(f"v_cndmask_b32 v13, v13, v14, vcc")
        a(f"s_mul_i32 s{sT0}, s{sL}, {16*3840}")
        a(f"v_add3_u32 v12, v12, v2, v13")
        a(f"v_add_u32 v{vWq[0]}, s{sT0}, v12")
        for i in range(1, 4):
            a(f"v_add_u32 v{vWq[i]}, {i*(4*3840 - 1024)}, v{vWq[0]}")
        a(f"s_lshl_b32 s{sLX}, s{sL}, 13")
        a(f"s_lshl_b32 s{sLW}, s{sL}, 12")
        a("s_waitcnt lgkmcnt(0)")
        a.srd(SX, P_AX, 2621440)
        a.srd(SQ, P_WQKV, 2457600)
        if 'now' in self.opts: a(f"s_mov_b32 s{SQ+2}, 0")
        if 'nox' in self.opts: a(f"s_mov_b32 s{SX+2}, 0")
        def stage(S):
            sl = R16 + (S % 3) * ASLOT
            nt = 'nt' if S < NTS else ''
            a(f"s_add_u32 m0, s{sLW}, {sl + 32768}")
            a(f"s_mul_i32 s{sKSW}, s{sROT}, 1920")
            for i in range(4):
                vm.issue(f"buffer_load_dwordx4 v{vWq[i]}, {rq}, s{sKSW} offen offset:{1024*i} {nt} lds", f'st{S}')
            a(f"s_add_u32 m0, s{sLX}, {sl}")
            a(f"s_add_u32 s{sKS}, s{sROT}, {32*1280}")
            for i in range(4):
                vm.issue(f"buffer_load_dwordx4 v{vX[i]}, {rx}, s{sROT} offen offset:{1024*i} {nt} lds", f'st{S}')
            a(f"s_add_u32 m0, s{sLX}, {sl + 4096}")
            for i in range(4):
                vm.issue(f"buffer_load_dwordx4 v{vX[i]}, {rx}, s{sKS} offen offset:{1024*i} {nt} lds", f'st{S}')
            self.adv(sROT, 128, 1280)
        stage(0)
        a.srd(S_WS, P_WS, WS_BYTES)
        a("v_mov_b32 v2, 0")
        vm.issue(f"buffer_load_dword v26, v2, {ws}, 0 offen sc1", 'ep')
        G.L_KVI = 0
        sv = (self.__dict__.get('_'),)
        a(f"s_mov_b32 s{sM2}, s{sG}")
        a(f"s_mov_b32 s{sG}, s{sD0}")
        self.reduce_addrs8()
        a(f"s_mov_b32 s{sG}, s{sM2}")
        a.srd(SO_, P_WO, 819200)
        a(f"v_lshrrev_b32 v110, 4, v1")
        a(f"v_bfe_u32 v111, v1, 2, 2")
        a(f"v_xor_b32 v111, v111, v110")
        a(f"v_min_u32 v111, 2, v111")
        a(f"v_lshlrev_b32 v111, 6, v111")
        a(f"v_and_b32 v2, 3, v1")
        a(f"v_lshl_add_u32 v111, v2, 4, v111")
        a(f"s_mul_i32 s{sT0}, s{sR2}, 192")
        a(f"v_add_u32 v111, s{sT0}, v111")
        a(f"s_lshr_b32 s{sT0}, s{sL}, 1")
        a(f"s_mul_i32 s{sT0}, s{sT0}, 10")
        a(f"s_and_b32 s{sT1}, s{sL}, 1")
        a(f"s_lshl_b32 s{sT2}, s{sT1}, 2")
        a(f"v_add_u32 v108, s{sT2}, v110")
        for st in range(4):
            a(f"v_add_u32 v109, {8*(st & 1)}, v108")
            a(f"v_add_u32 v2, 10, v109")
            a(f"v_cmp_lt_u32 vcc, 9, v109")
            a(f"v_cndmask_b32 v109, v109, v2, vcc")
            a(f"s_add_u32 s{sT3}, s{sT0}, {40*(st >> 1)}")
            a(f"v_add_u32 v109, s{sT3}, v109")
            a(f"v_mul_u32_u24 v109, 1280, v109")
            a(f"v_add_u32 v{100+st}, v109, v111")
        a(f"s_mul_i32 s{sT3}, s{sT1}, 40")
        a(f"s_add_u32 s{sT3}, s{sT3}, s{sT0}")
        a(f"s_add_u32 s{sT3}, s{sT3}, 26")
        a(f"v_add_u32 v109, s{sT3}, v110")
        a(f"v_mul_u32_u24 v109, 1280, v109")
        a(f"v_add_u32 v104, v109, v111")
        a(f"s_mul_i32 s{sROT2}, s{sROT2}, {80*1280}")
        a(f"s_lshl_b32 s{sL2X}, s{sL}, 10")
        a(f"v_mov_b32 v60, 0")
        a(f"v_mov_b32 v61, 0")
        a(f"v_mul_u32_u24 v2, 112, v1")
        a(f"ds_write_b64 v2, v[60:61] offset:{LA_KVI+40}")
        a(f"ds_write_b64 v2, v[60:61] offset:{LA_KVI+88}")
        stage(1)
        def units(lo, hi):
            for u in range(lo, hi):
                a(f"s_add_u32 m0, s{sL2X}, {(R16 + 4096*u) % LDS_TOTAL}")
                vm.issue(f"buffer_load_dwordx4 v{100 + u % 5}, {rw}, s{sROT2} offen lds", f'u{u}')
                if u % 5 == 4: self.adv(sROT2, 80*1280, 640*1280)
        for S in range(10):
            vm.wait(f'st{S}')
            if S == 0: a("s_waitcnt lgkmcnt(0)")
            a("s_barrier")
            self.bstamp(S)
            if S == 0: self.stamp(1)
            if S + 2 < 10: stage(S + 2)
            if S == 1: self.tag_from(26)
        a("s_barrier")
        self.bstamp(10); self.bflush()
        self.stamp(2)
        units(0, 19)
        a("s_barrier")
        a("s_barrier")
        self.stamp(3)
        units(19, 36)
        LA = [112 + 4*i for i in range(8)]
        vLA, vDA, vDA2, vDB, vDB2, vPR = 16, 18, 19, 20, 21, 23
        sP0, sP1, sCR = sT4, sT5, sM + 1
        self.tagpat(sP0, sP1)
        a(f"s_mov_b32 s{sT7}, 0")
        a(f"s_and_b32 s{sCR}, s{sC}, 3")
        a(f"s_mul_i32 s{sCR}, s{sCR}, {2*KVPITCH}")
        def chk(r):
            for i in range(4):
                a(f"v_xor_b32 v{64+i}, s{sP0 if i % 2 == 0 else sP1}, v{r+i}")
            a(f"v_or3_b32 v72, v72, v64, v65")
            a(f"v_or3_b32 v72, v72, v66, v67")
        a.label("LAl_probe")
        a(f"buffer_load_dwordx4 v[76:79], v{vPR}, {ws}, 0 offen sc1")
        a(f"s_add_u32 s{sT7}, s{sT7}, 1")
        a(f"s_cmp_ge_u32 s{sT7}, 0x40000")
        a("s_cbranch_scc1 LAl_sum")
        a("v_mov_b32 v72, 0")
        a("s_waitcnt vmcnt(0)")
        chk(76)
        a(f"v_and_b32 v72, 0x10001, v72")
        a(f"v_cmp_ne_u32 vcc, 0, v72")
        a(f"s_cmp_lg_u64 vcc, 0")
        a("s_cbranch_scc1 LAl_probe")
        self.stamp(4)
        a(f"s_mov_b32 s{sT0}, s{sCR}")
        for cc in range(8):
            a(f"buffer_load_dwordx4 v[{LA[cc]}:{LA[cc]+3}], v{vLA}, {ws}, s{sT0} offen sc1")
            if cc < 7:
                a(f"s_add_u32 s{sT0}, s{sT0}, {KVPITCH}")
                if cc % 2 == 1:
                    a(f"s_cmp_eq_u32 s{sT0}, {8*KVPITCH}")
                    a(f"s_cselect_b32 s{sT0}, 0, s{sT0}")
        AC, TP = 80, 88
        for cc in range(8):
            a(f"s_waitcnt vmcnt({7-cc})")
            chk(LA[cc])
            d = AC if cc == 0 else TP
            for i in range(4):
                a(f"v_lshlrev_b32 v{d+2*i}, 16, v{LA[cc]+i}")
                a(f"v_and_b32 v{d+2*i+1}, 0xffff0000, v{LA[cc]+i}")
            if cc:
                for i in range(4):
                    a(f"v_pk_add_f32 v[{AC+2*i}:{AC+2*i+1}], v[{AC+2*i}:{AC+2*i+1}], v[{TP+2*i}:{TP+2*i+1}]")
        a(f"v_and_b32 v72, v24, v72")
        a(f"v_cmp_ne_u32 vcc, 0, v72")
        a(f"s_cmp_lg_u64 vcc, 0")
        a("s_cbranch_scc1 LAl_probe")
        a.label("LAl_sum")
        for i in range(4):
            a(f"v_cvt_pk_bf16_f32 v{TP+i}, v{AC+2*i}, v{AC+2*i+1}")
        a(f"ds_write_b64 v{vDA}, v[{TP}:{TP+1}] offset:{LA_KVI}")
        a(f"ds_write_b64 v{vDA2}, v[{TP}:{TP+1}] offset:{LA_KVI}")
        a(f"ds_write_b64 v{vDB}, v[{TP+2}:{TP+3}] offset:{LA_KVI}")
        a(f"ds_write_b64 v{vDB2}, v[{TP+2}:{TP+3}] offset:{LA_KVI}")
        a("s_waitcnt lgkmcnt(0)")
        self.stamp(5)
        a("s_barrier")
        self.stamp_flush(112, 0)
        a("s_barrier")
        a(f"s_cmp_eq_u32 s{sR2}, 7")
        a("s_cbranch_scc1 L_end")
        units(36, 40)
        a("s_waitcnt vmcnt(0)")
        a("s_barrier")
        a("s_endpgm")

    def reduce_addrs8(self):
        a = self.a
        G.L_DUM = LA_DUM - LA_KVI
        globals()['L_DUM'] = LA_DUM - LA_KVI
        n0 = len(a.items)
        self.reduce_addrs(0); self.reduce_addrs(1)
        from asm2 import Ins
        for i in range(n0, len(a.items)):
            it = a.items[i]
            if isinstance(it, Ins):
                t = it.text.replace(f", {16*KVPITCH}", f", {8*KVPITCH}").replace("v_and_b32 v23, 15, v1", "v_and_b32 v23, 7, v1")
                if t != it.text: a.items[i] = Ins(t)

    def a_compute(self):
        a = self.a; ws = self.ws
        vN, vHH, vJ, vGm = 12, 13, 14, 15
        ACC = 16; OPS = 144; vXL = 240; vWL = [241, 242, 243, 244]
        vX = [4, 5, 6, 7]; vWr = [8, 9, 10, 11]
        self.stamp(0)
        a(f"v_and_b32 v{vJ}, 15, v1")
        a(f"v_lshrrev_b32 v{vGm}, 4, v1")
        a(f"v_and_b32 v{vN}, 31, v1")
        a(f"v_lshrrev_b32 v{vHH}, 5, v1")
        a(f"v_min_u32 v3, 39, v1")
        a(f"v_mul_u32_u24 v3, 40, v3")
        a(f"s_cmp_eq_u32 s{sW}, 1")
        a(f"s_cselect_b32 s{sT0}, s{sG}, s{sD0}")
        a(f"s_mul_i32 s{sT0}, s{sT0}, 1600")
        a(f"s_sub_u32 s{sT1}, s{sW}, 1")
        a(f"s_cmp_lt_u32 s{sT1}, 2")
        a(f"s_cselect_b32 s{sT3}, s{sT0}, {OOB}")
        a("s_waitcnt lgkmcnt(0)")
        a.srd(S_WS, P_WS, WS_BYTES)
        a("v_mov_b32 v2, 0")
        a(f"buffer_load_dword v250, v2, {ws}, 0 offen sc1")
        a.srd(S_R4, P_WPHI, 25600)
        vS = 150
        for i in range(5):
            a(f"buffer_load_dwordx2 v[{vS+2*i}:{vS+1+2*i}], v3, s[{S_R4}:{S_R4+3}], s{sT3} offen offset:{8*i}")
        self.codepf("L_pcA")
        a(f"v_bfe_u32 v2, v1, 1, 3")
        a(f"v_xor_b32 v2, v2, v{vHH}")
        a(f"v_lshlrev_b32 v2, 4, v2")
        a(f"v_lshl_add_u32 v2, v{vN}, 7, v2")
        a(f"s_lshl_b32 s{sT0}, s{sW}, 13")
        a(f"v_add_u32 v{vXL}, s{sT0}, v2")
        t = 170
        a(f"v_bfe_u32 v{t}, v1, 2, 2")
        a(f"v_lshl_add_u32 v{t+1}, v{vHH}, 3, v{t}")
        a(f"v_lshlrev_b32 v{t+1}, 8, v{t+1}")
        a(f"v_and_b32 v{t+2}, 3, v1")
        a(f"v_lshl_add_u32 v{t+1}, v{t+2}, 3, v{t+1}")
        a(f"v_bfe_u32 v{t+2}, v1, 4, 1")
        a(f"v_lshl_add_u32 v{t+1}, v{t+2}, 5, v{t+1}")
        a(f"v_add_u32 v{t+1}, 32768, v{t+1}")
        for f in range(4):
            a(f"v_add_u32 v{t+2}, {f}, v{t}")
            a(f"v_and_b32 v{t+2}, 3, v{t+2}")
            a(f"v_lshl_add_u32 v{vWL[f]}, v{t+2}, 6, v{t+1}")
        for k in range(4):
            a(f"v_xor_b32 v{vX[k]}, {32*k}, v{vXL}")
            a(f"v_mov_b32 v{vWr[k]}, v{vWL[k]}")
        a("s_waitcnt vmcnt(1)")
        self.tag_from(250)
        a(f"s_cmp_ge_u32 s{sT1}, 2")
        a("s_cbranch_scc1 LA_nowp")
        a(f"s_mul_i32 s{sT0}, s{sT1}, 2688")
        for i in range(4): a(f"v_mov_b32 v{64+i}, 0")
        a(f"v_lshl_add_u32 v68, v1, 4, s{sT0}")
        a(f"ds_write_b128 v68, v[64:67] offset:{LA_WPH}")
        a(f"ds_write_b128 v68, v[64:67] offset:{LA_WPH+1024}")
        a(f"v_min_u32 v69, 39, v1")
        a(f"v_lshl_add_u32 v68, v69, 4, s{sT0}")
        a(f"ds_write_b128 v68, v[64:67] offset:{LA_WPH+2048}")
        a(f"v_add_u32 v65, 1, v69")
        a(f"v_cmp_lt_u32 vcc, 19, v69")
        a(f"v_cndmask_b32 v64, v69, v65, vcc")
        a(f"v_lshl_add_u32 v64, v64, 6, s{sT0}")
        for i, (o0, o1) in enumerate([(0, 1), (4, 5), (8, 2), (3, 6), (7, 10)]):
            a(f"ds_write2_b32 v64, v{vS+2*i}, v{vS+1+2*i} offset0:{o0} offset1:{o1}")
        a("s_waitcnt lgkmcnt(0)")
        a.label("LA_nowp")
        for i in range(128): a(f"v_mov_b32 v{ACC+i}, 0")
        a(f"s_mov_b32 s{sSLOT}, 0")
        a(f"s_mov_b32 s{sIT}, 0")
        a("s_barrier")
        self.stamp(1)
        def rd(k):
            b = OPS + 24*(k & 1)
            r = [f"ds_read_b128 v[{b+4*tt}:{b+4*tt+3}], v{vX[k]} offset:{R16 + 4096*tt}" for tt in range(2)]
            for f in range(4):
                for h in range(2):
                    r.append(f"ds_read_b64_tr_b16 v[{b+8+4*f+2*h}:{b+9+4*f+2*h}], v{vWr[f]} offset:{R16 + (16*k + 4*h)*256}")
            return r
        def mm(k):
            b = OPS + 24*(k & 1)
            return [f"v_mfma_f32_32x32x16_bf16 v[{ACC+64*tt+16*f}:{ACC+64*tt+16*f+15}], v[{b+8+4*f}:{b+11+4*f}], v[{b+4*tt}:{b+4*tt+3}], v[{ACC+64*tt+16*f}:{ACC+64*tt+16*f+15}]"
                    for f in range(4) for tt in range(2)] if 'nomm' not in self.opts else ["s_nop 0"]*8
        for x in rd(0): a(x)
        a.label("LA_loop")
        for k in range(2):
            a("s_waitcnt lgkmcnt(0)")
            self.inter(mm(k), rd(k + 1), 2)
        a("s_waitcnt lgkmcnt(0)")
        self.adv(sSLOT, ASLOT, 3*ASLOT)
        upd = [f"v_add_u32 v{vX[0]}, s{sSLOT}, v{vXL}"] + [f"v_xor_b32 v{vX[k]}, {32*k}, v{vX[0]}" for k in range(1, 4)] + \
              [f"v_add_u32 v{vWr[f]}, s{sSLOT}, v{vWL[f]}" for f in range(4)]
        m2 = mm(2)
        self.inter(m2[:5], rd(3), 2)
        self.inter(m2[5:], upd, 3)
        a("s_waitcnt lgkmcnt(0)")
        m3 = mm(3)
        a(m3[0]); a(m3[1])
        a("s_barrier")
        self.inter(m3[2:], rd(0), 2)
        a(f"s_add_u32 s{sIT}, s{sIT}, 1")
        a(f"s_cmp_lt_u32 s{sIT}, 10")
        a("s_cbranch_scc1 LA_loop")
        self.stamp(2)
        PK = 144; WF = 208
        def pk(tt, e): return PK + 32*tt + 16*e
        v1a, v3a, v5a = 4, 5, 6
        a(f"v_bfe_u32 v7, v1, 2, 2")
        a(f"v_and_b32 v8, 3, v1")
        a(f"v_lshlrev_b32 v8, 3, v8")
        a(f"v_bfe_u32 v9, v1, 4, 1")
        a(f"v_lshl_add_u32 v8, v9, 5, v8")
        a(f"v_lshl_add_u32 v{v1a}, v{vHH}, 2, v7")
        a(f"v_lshl_add_u32 v{v1a}, v{v1a}, 6, v8")
        a(f"v_add_u32 v9, 16, v7")
        a(f"v_mov_b32 v2, 20")
        a(f"v_cmp_lt_u32 vcc, 31, v1")
        a(f"v_cndmask_b32 v{v3a}, v9, v2, vcc")
        a(f"v_cndmask_b32 v{v5a}, v2, v7, vcc")
        a(f"v_lshl_add_u32 v{v3a}, v{v3a}, 6, v8")
        a(f"v_lshl_add_u32 v{v5a}, v{v5a}, 6, v8")
        a("s_waitcnt lgkmcnt(0)")
        for qk in range(2):
            for e in range(2):
                w = WF + 16*qk + 8*e; o = LA_WPH + 2688*qk + 1344*e
                if e == 0:
                    a(f"ds_read_b64_tr_b16 v[{w}:{w+1}], v{v1a} offset:{o}")
                    a(f"ds_read_b64_tr_b16 v[{w+2}:{w+3}], v{v1a} offset:{o+512}")
                    a(f"ds_read_b64_tr_b16 v[{w+4}:{w+5}], v{v3a} offset:{o}")
                else:
                    a(f"ds_read_b64_tr_b16 v[{w}:{w+1}], v{v5a} offset:{o}")
                    a(f"ds_read_b64_tr_b16 v[{w+2}:{w+3}], v{v1a} offset:{o+256}")
                    a(f"ds_read_b64_tr_b16 v[{w+4}:{w+5}], v{v1a} offset:{o+768}")
                for z in (6, 7): a(f"v_mov_b32 v{w+z}, 0")
        vIP, vIV, vIV2, vIV3 = 7, 8, 10, 11
        a(f"v_mul_u32_u24 v{vIP}, {IMGP}, v{vN}")
        a(f"s_mul_i32 s{sT0}, s{sW}, {64*IMGP}")
        a(f"s_add_u32 s{sT0}, s{sT0}, {LA_IMG}")
        a(f"v_add_u32 v{vIP}, s{sT0}, v{vIP}")
        a(f"v_lshl_add_u32 v{vIV}, v{vHH}, 3, v{vIP}")
        a(f"v_lshl_add_u32 v{vIV2}, v{vHH}, 4, v{vIP}")
        a(f"v_mul_u32_u24 v2, 48, v{vHH}")
        a(f"v_add_u32 v{vIV3}, v{vIP}, v2")
        a(f"v_mul_u32_u24 v2, 40, v{vHH}")
        a(f"v_add_u32 v{vIP}, v{vIP}, v2")
        for tt in range(2):
            for i in range(30):
                s_ = ACC + 64*tt + 2*i
                a(f"v_cvt_pk_bf16_f32 v{PK+32*tt+i}, v{s_}, v{s_+1}")
            a(f"v_mov_b32 v{PK+32*tt+30}, 0x3f80")
            a(f"v_mov_b32 v{PK+32*tt+31}, 0")
        def DK(tt, e): return 16 + 32*tt + 16*e
        def DQ(tt, e): return 80 + 32*tt + 16*e
        a("s_waitcnt lgkmcnt(0)")
        TE = [(tt, e) for tt in range(2) for e in range(2)]
        for qk, D in ((0, DK), (1, DQ)):
            for st in range(2):
                for tt, e in TE:
                    w = WF + 16*qk + 8*e + 4*st; d = D(tt, e)
                    p = PK + 32*tt + (10 if qk == 0 else 0) + 4*e + 4*st
                    c = "0" if st == 0 else f"v[{d}:{d+15}]"
                    a(f"v_mfma_f32_32x32x16_bf16 v[{d}:{d+15}], v[{w}:{w+3}], v[{p}:{p+3}], {c}")
                    if qk == 1 and e == 1:
                        for U_, va, off in ([(10, vIV, 0), (11, vIV, 16), (12, vIV2, 32)] if st == 0 else [(13, vIV, 56), (14, vIV, 72), (15, vIV3, 40)]):
                            r = PK + 32*tt + 2*U_
                            a(f"ds_write_b64 v{va}, v[{r}:{r+1}] offset:{32*IMGP*tt + 160 + off}")
        a("s_waitcnt lgkmcnt(0)")
        E = [208, 228]; T = [248, 252]
        for tt in range(2):
            self.softmax2([DK(tt, 0), DK(tt, 1)], [pk(tt, 0), pk(tt, 1)], E, T)
            for e in range(2):
                for m in range(5):
                    a(f"ds_write_b64 v{vIP}, v[{pk(tt, e)+2*m}:{pk(tt, e)+2*m+1}] offset:{32*IMGP*tt + 80*e + 8*m}")
        a(f"v_and_b32 v2, 1, v{vGm}")
        a(f"v_lshlrev_b32 v2, 4, v2")
        a(f"v_bfe_u32 v3, v1, 2, 2")
        a(f"v_lshl_add_u32 v2, v3, 2, v2")
        a(f"v_lshl_add_u32 v2, v{vHH}, 1, v2")
        a(f"v_mul_u32_u24 v2, {IMGP}, v2")
        a(f"v_and_b32 v3, 3, v1")
        a(f"v_lshl_add_u32 v2, v3, 3, v2")
        a(f"s_lshr_b32 s{sT0}, s{sW}, 1")
        a(f"s_and_b32 s{sT1}, s{sW}, 1")
        a(f"s_mul_i32 s{sT2}, s{sT0}, 80")
        a(f"s_add_u32 s{sT2}, s{sT2}, {LA_IMG}")
        vKA, vKB, vKS, vKS2 = 6, 4, 5, 9
        a(f"v_add_u32 v{vKA}, s{sT2}, v2")
        a(f"s_mul_i32 s{sT2}, s{sT0}, 48")
        a(f"s_lshl_b32 s{sT3}, s{sT1}, 5")
        a(f"s_add_u32 s{sT2}, s{sT2}, s{sT3}")
        a(f"s_add_u32 s{sT2}, s{sT2}, {LA_IMG + 160}")
        a(f"v_add_u32 v{vKB}, s{sT2}, v2")
        a(f"s_lshl_b32 s{sT2}, s{sG}, 3")
        a(f"s_add_u32 s{sT2}, s{sT2}, s{sC}")
        a(f"s_mul_i32 s{sT2}, s{sT2}, {KVPITCH}")
        a(f"s_mul_i32 s{sT3}, s{sT0}, 1680")
        a(f"s_add_u32 s{sT2}, s{sT2}, s{sT3}")
        a(f"s_add_u32 s{sT2}, s{sT2}, {WS_KVP}")
        a(f"s_lshl_b32 s{sT3}, s{sT1}, 4")
        a(f"v_add_u32 v2, s{sT3}, v{vJ}")
        a(f"v_mul_u32_u24 v3, 21, v{vGm}")
        a(f"v_add_u32 v3, v3, v2")
        a(f"v_lshl_add_u32 v{vKS}, v3, 3, s{sT2}")
        a(f"v_mov_b32 v3, {OOB}")
        a(f"v_cmp_lt_u32 vcc, 20, v2")
        a(f"v_cndmask_b32 v{vKS}, v{vKS}, v3, vcc")
        a(f"v_cmp_lt_u32 vcc, 31, v1")
        a(f"v_cndmask_b32 v{vKS2}, v{vKS}, v3, vcc")
        self.tagpat(sT0, sT1)
        a("s_waitcnt lgkmcnt(0)")
        a("s_barrier")
        self.stamp(3)
        BK = [16, 144]; DKV = 208
        def kvr(k):
            b = BK[k >> 2] + 16*(k & 3)
            r = [f"ds_read_b64_tr_b16 v[{b+2*h}:{b+2*h+1}], v{vKB} offset:{k*32*IMGP + h*IMGP}" for h in range(2)]
            for ft in range(3):
                for h in range(2):
                    r.append(f"ds_read_b64_tr_b16 v[{b+4+4*ft+2*h}:{b+5+4*ft+2*h}], v{vKA} offset:{k*32*IMGP + h*IMGP + 32*ft}")
            return r
        for x in kvr(0): a(x)
        for k in range(8):
            if k < 7:
                for x in kvr(k + 1): a(x)
            a(f"s_waitcnt lgkmcnt({8 if k < 7 else 0})")
            b = BK[k >> 2] + 16*(k & 3)
            for ft in range(3):
                d = DKV + 4*ft
                c = "0" if k == 0 else f"v[{d}:{d+3}]"
                a(f"v_mfma_f32_16x16x32_bf16 v[{d}:{d+3}], v[{b+4+4*ft}:{b+7+4*ft}], v[{b}:{b+3}], {c}")
        a(f"v_mov_b32 v2, 0x10001")
        for i in range(6):
            a(f"v_cvt_pk_bf16_f32 v{DKV+12+i}, v{DKV+2*i}, v{DKV+2*i+1}")
        for i in range(6):
            a(f"v_bfi_b32 v{DKV+12+i}, v2, s{sT0 + (i & 1)}, v{DKV+12+i}")
        for ft in range(3):
            d = DKV + 12 + 2*ft
            a(f"buffer_store_dwordx2 v[{d}:{d+1}], v{vKS2 if ft == 2 else vKS}, {ws}, 0 offen offset:{672*ft} sc1")
        a("s_barrier")
        self.stamp(4)
        def PQ(tt, e): return 144 + 24*tt + 12*e
        E = [16, 36]; T = [56, 60]
        for tt in range(2):
            self.softmax2([DQ(tt, 0), DQ(tt, 1)], [PQ(tt, 0), PQ(tt, 1)], E, T)
            for e in range(2):
                a(f"v_mov_b32 v{PQ(tt, e)+10}, 0")
                a(f"v_mov_b32 v{PQ(tt, e)+11}, 0")
        self.stamp(5)
        SO = S_R1; ro = f"s[{SO}:{SO+3}]"
        a.srd(SO, P_OUT, 2048*1280*4)
        vF, vO, vA0, vO2, vPA = 4, 5, 6, 8, 10
        a(f"s_lshl_b32 s{sT0}, s{sC2}, 2")
        a(f"s_add_u32 s{sT0}, s{sT0}, s{sW}")
        a(f"s_lshl_b32 s{sT2}, s{sT0}, 5")
        a(f"v_lshl_add_u32 v2, v{vHH}, 2, s{sT2}")
        a(f"s_mul_i32 s{sT3}, s{sR2}, 96")
        a(f"v_add_lshl_u32 v3, v{vN}, s{sT3}, 2")
        a(f"v_mul_u32_u24 v{vO}, 5120, v2")
        a(f"v_add_u32 v{vO}, v{vO}, v3")
        a(f"s_cmp_eq_u32 s{sR2}, 6")
        a(f"s_cselect_b32 s{sT3}, {OOB}, 0")
        a(f"v_add_u32 v{vO2}, s{sT3}, v{vO}")
        a(f"s_mul_i32 s{sT4}, s{sT0}, 40960")
        a(f"s_add_u32 s{sT4}, s{sT4}, {WS_O}")
        a(f"v_lshl_add_u32 v{vF}, v1, 4, s{sT4}")
        a(f"v_bfe_u32 v3, v1, 2, 2")
        a(f"v_mul_u32_u24 v{vA0}, 320, v3")
        a(f"v_lshl_add_u32 v{vA0}, v{vHH}, 11, v{vA0}")
        a(f"v_bfe_u32 v3, v1, 4, 1")
        a(f"v_lshl_add_u32 v{vA0}, v3, 5, v{vA0}")
        a(f"v_and_b32 v3, 3, v1")
        a(f"v_lshl_add_u32 v{vA0}, v3, 3, v{vA0}")
        a(f"s_and_b32 s{sT1}, s{sC2}, 1")
        a(f"s_lshl_b32 s{sT1}, s{sT1}, 1")
        a(f"s_lshr_b32 s{sT2}, s{sW}, 1")
        a(f"s_add_u32 s{sT1}, s{sT1}, s{sT2}")
        a(f"s_lshl_b32 s{sT1}, s{sT1}, 6")
        a(f"s_lshr_b32 s{sT2}, s{sC2}, 1")
        self.poll_addr(vPA, WS_FLAG_O, sT2, 15, sT1)
        self.flag_addr(sT5, WS_FLAG_O, sC, sW, 16, sD0)
        a(f"v_mul_u32_u24 v2, 112, v{vN}")
        a(f"v_mul_u32_u24 v3, 48, v{vHH}")
        a(f"v_add_u32 v7, v2, v3")
        a(f"s_lshl_b32 s{sT1}, s{sC}, 3")
        a(f"s_lshl_b32 s{sT2}, s{sW}, 1")
        a(f"s_add_u32 s{sT1}, s{sT1}, s{sT2}")
        a(f"s_mul_i32 s{sT2}, s{sT1}, 40960")
        a(f"s_lshr_b32 s{sT3}, s{sD0}, 1")
        a(f"s_mul_i32 s{sT3}, s{sT3}, 5120")
        a(f"s_add_u32 s{sT2}, s{sT2}, s{sT3}")
        a(f"s_add_u32 s{sT2}, s{sT2}, {WS_O}")
        a(f"v_lshl_add_u32 v9, v1, 4, s{sT2}")
        a(f"s_and_b32 s{sT3}, s{sD0}, 1")
        a(f"s_lshl_b32 s{sT4}, s{sT3}, 11")
        a(f"s_lshl_b32 s{sT3}, s{sT3}, 3")
        a(f"s_add_u32 s{sT3}, s{sT3}, 4096")
        a(f"s_add_u32 s{sT1}, s{sT4}, 40960")
        a(f"s_add_u32 s{sT2}, s{sT3}, 40960")
        a("s_barrier")
        self.stamp(6)
        KF = 80
        for e in range(2):
            for k in range(3):
                r = KF + 12*e + 4*k
                a(f"ds_read_b128 v[{r}:{r+3}], v7 offset:{LA_KVI + 3584*e + 16*k}")
        a("s_waitcnt lgkmcnt(0)")
        for tt in range(2):
            for k in range(3):
                for e in range(2):
                    r = KF + 12*e + 4*k; d = DK(tt, e); p = PQ(tt, e) + 4*k
                    c = "0" if k == 0 else f"v[{d}:{d+15}]"
                    a(f"v_mfma_f32_32x32x16_bf16 v[{d}:{d+15}], v[{r}:{r+3}], v[{p}:{p+3}], {c}")
        for tt in range(2):
            OP = 104 + 12*tt
            for e in range(2):
                a(f"v_add_f32 v{DK(tt, e)+10}, 0x358637bd, v{DK(tt, e)+10}")
            for e in range(2):
                a(f"v_rcp_f32 v{DK(tt, e)+10}, v{DK(tt, e)+10}")
            for i in range(5):
                for e in range(2):
                    d = DK(tt, e)
                    a(f"v_pk_mul_f32 v[{d+2*i}:{d+2*i+1}], v[{d+2*i}:{d+2*i+1}], v[{d+10}:{d+11}] op_sel:[0,0] op_sel_hi:[1,0]")
            for e in range(2):
                for i in range(5):
                    a(f"v_cvt_pk_bf16_f32 v{OP+5*e+i}, v{DK(tt, e)+2*i}, v{DK(tt, e)+2*i+1}")
            s4, s3 = (sT4, sT3) if tt == 0 else (sT1, sT2)
            a(f"buffer_store_dwordx4 v[{OP}:{OP+3}], v9, {ws}, s{s4} offen sc1")
            a(f"buffer_store_dwordx4 v[{OP+4}:{OP+7}], v9, {ws}, s{s4} offen offset:1024 sc1")
            a(f"buffer_store_dwordx2 v[{OP+8}:{OP+9}], v9, {ws}, s{s3} offen sc1")
        AC2 = 16
        for i in range(48): a(f"v_mov_b32 v{AC2+i}, 0")
        a("s_waitcnt vmcnt(0)")
        self.flag_store(sT5, 2)
        self.stamp(7)
        self.stamp_flush(64, 0)
        a("s_barrier")
        a(f"s_cmp_eq_u32 s{sR2}, 7")
        a("s_cbranch_scc1 L_end")
        self.poll_issue(vPA, 13)
        self.poll_wait(vPA, 13)
        self.stamp(0)
        HA = 120
        def wreg(buf, t): return 64 + 12*buf + 4*t
        a(f"s_mul_i32 s{sKS}, s{sROT2}, 5120")
        def ldA(u):
            kk = u % 5
            if kk == 0: a(f"s_add_u32 s{sKSW}, s{sKS}, 4096")
            r = HA + 4*(u % 32)
            so = sKS if kk < 4 else sKSW
            a(f"buffer_load_dwordx4 v[{r}:{r+3}], v{vF}, {ws}, s{so} offen offset:{1024*(kk & 3)} sc1")
            if kk == 4: self.adv(sKS, 5120, 40960)
        vLP = [7, 9, 11]; vT2 = [2, 3, 12]
        for t in range(3):
            a(f"v_xor_b32 v{vLP[t]}, {64*t}, v{vA0}")
        for u in range(32): ldA(u)
        ds = []
        def rd_issue(u, t):
            w = wreg(u % 3, t)
            a(f"v_add_u32 v{vT2[t]}, {(R16 + 4096*u) % LDS_TOTAL}, v{vLP[t]}")
            for h in range(2):
                a(f"ds_read_b64_tr_b16 v[{w+2*h}:{w+2*h+1}], v{vT2[t]} offset:{1024*h}")
            ds.extend([(u, t)]*2)
        def rd_wait(u, t):
            idx = [i for i, l in enumerate(ds) if l == (u, t)]
            n = len(ds) - 1 - idx[-1] if idx else None
            if n is not None: del ds[:len(ds) - min(n, 15)]
            return n
        def ostore(t, r):
            a(f"s_mov_b32 s{sT4}, {(8*(r >> 2) + (r & 3))*5120}")
            a(f"buffer_store_dword v{AC2+16*t+r}, v{vO2 if t == 2 else vO}, {ro}, s{sT4} offen offset:{128*t} nt")
        order = [(s_ - SKEW*t, t) for s_ in range(40 + 2*SKEW) for t in range(3) if 0 <= s_ - SKEW*t < 40]
        for t in range(3):
            for u in range(2): rd_issue(u, t)
        nld = 32; vm_done = -1; pend = []
        lastpos = {t: max(i for i, x in enumerate(order) if x[1] == t) for t in range(3)}
        for i, (u, t) in enumerate(order):
            if t == 0 and u + 2 == 36: a("s_barrier")
            n = rd_wait(u, t)
            w = []
            if u > vm_done:
                w.append(f"vmcnt({min(63, nld - 1 - u)})"); vm_done = u
            if n is not None: w.append(f"lgkmcnt({min(n, 15)})")
            if w: a("s_waitcnt " + " ".join(w))
            h = HA + 4*(u % 32); d = AC2 + 16*t; bb = wreg(u % 3, t)
            a(f"v_mfma_f32_32x32x16_bf16 v[{d}:{d+15}], v[{h}:{h+3}], v[{bb}:{bb+3}], v[{d}:{d+15}]")
            if u + 2 < 40: rd_issue(u + 2, t)
            if t == 2 and u < 8: ldA(32 + u); nld += 1
            for tt in range(3):
                if i == lastpos[tt] + 3: pend += [(tt, r) for r in range(16)]
            for _ in range(4):
                if pend: ostore(*pend.pop(0))
            if self.prof and t == 0 and u % 10 == 9: self.stamp(3 + u // 10)
        done_t = {tt for tt in range(3) if lastpos[tt] + 3 < len(order)}
        rest = pend + [(tt, r) for tt in range(3) if tt not in done_t for r in range(16)]
        self.stamp(1)
        for x in rest: ostore(*x)
        self.bump(0, 0)
        self.finish()

    def bump(self, wg, off):
        a = self.a
        a(f"s_xor_b32 s{sT0}, s2, {wg}")
        a(f"s_or_b32 s{sT0}, s{sT0}, s{sW}")
        a(f"s_cmp_lg_u32 s{sT0}, 0")
        a(f"s_cselect_b32 s{sT1}, {OOB}, {off}")
        a(f"s_mul_i32 s{sTAG}, s{sTAG}, {pow(KMUL, -1, 1 << 32):#x}")
        self.flag_store(sT1, 2)

    def finish(self):
        a = self.a
        if self.prof: a("s_waitcnt vmcnt(0)")
        self.stamp(2)
        self.stamp_flush(230, 1)
        a("s_endpgm")

    def b_entry(self):
        a = self.a
        a.label("L_B")
        if MIX:
            a(f"s_bfe_u32 s{sT0}, s2, 0x20001")
            a(f"s_lshl_b32 s{sT0}, s{sT0}, 2")
            a(f"s_add_u32 s{sC}, s{sT0}, s{sT1}")
            a(f"s_and_b32 s{sT0}, s2, 1")
            a(f"s_lshl_b32 s{sT0}, s{sT0}, 2")
            a(f"s_add_u32 s{sG}, s{sT0}, s{sT2}")
        else:
            a(f"s_bfe_u32 s{sT0}, s2, 0x10001")
            a(f"s_lshl_b32 s{sT0}, s{sT0}, 3")
            a(f"s_add_u32 s{sC}, s{sT0}, s{sR2}")
            a(f"s_and_b32 s{sT0}, s2, 1")
            a(f"s_lshl_b32 s{sT0}, s{sT0}, 2")
            a(f"s_lshr_b32 s{sT1}, s2, 6")
            a(f"s_add_u32 s{sG}, s{sT0}, s{sT1}")
            a(f"s_mov_b32 s{sT2}, s{sR2}")
        self.rot()
        a(f"s_mul_i32 s{sROT2}, s{sR2}, 3")
        a(f"s_and_b32 s{sT0}, s{sC2}, {1 if MIX else 3}")
        a(f"s_mul_i32 s{sT0}, s{sT0}, 5")
        if not MIX: a(f"s_lshr_b32 s{sT0}, s{sT0}, 1")
        a(f"s_add_u32 s{sROT2}, s{sROT2}, s{sT0}")
        a(f"s_cmp_ge_u32 s{sROT2}, 10")
        a(f"s_cselect_b32 s{sT0}, 10, 0")
        a(f"s_sub_u32 s{sROT2}, s{sROT2}, s{sT0}")
        a(f"s_cmp_ge_u32 s{sROT2}, 10")
        a(f"s_cselect_b32 s{sT0}, 10, 0")
        a(f"s_sub_u32 s{sROT2}, s{sROT2}, s{sT0}")
        a(f"s_cmp_lt_u32 s{sW}, 4")
        a("s_cbranch_scc1 L_Bcomp")

    def b_loader(self):
        a = self.a
        vm = self.VM(a)
        SX, SB, SCc = S_R1, S_R2, S_R4
        rx = f"s[{SX}:{SX+3}]"; rb = f"s[{SB}:{SB+3}]"; rc = f"s[{SCc}:{SCc+3}]"
        self.stamp(0)
        vX = [4, 5, 6, 7]; vB = [8, 9, 10, 11, 12]; vC = [16, 17, 18, 19]
        if 'bprof' in self.opts: a("v_mov_b32 v255, 0")
        self.bstamp(32)
        self.swz()
        a(f"s_lshl_b32 s{sT0}, s{sC}, 7")
        a(f"s_lshl_b32 s{sT1}, s{sL}, 5")
        a(f"s_add_u32 s{sT0}, s{sT0}, s{sT1}")
        a(f"s_mul_i32 s{sT0}, s{sT0}, 1280")
        a(f"v_lshrrev_b32 v35, 2, v2")
        a(f"v_lshlrev_b32 v35, 3, v35")
        a(f"v_and_b32 v36, 3, v2")
        a(f"v_add_u32 v35, v35, v36")
        a(f"v_mul_u32_u24 v35, 1280, v35")
        for i in range(4):
            a(f"v_add3_u32 v{vX[i]}, v35, v{32 + (i & 1)}, s{sT0}")
            if i: a(f"v_add_u32 v{vX[i]}, {(16*(i & 1) + 4*(i >> 1))*1280 - i*1024}, v{vX[i]}")
        a(f"s_and_b32 s{sT1}, s{sL}, 1")
        a(f"s_lshl_b32 s{sT1}, s{sT1}, 6")
        a(f"v_xor_b32 v36, s{sT1}, v32")
        a(f"s_lshr_b32 s{sT2}, s{sL}, 1")
        a(f"s_lshl_b32 s{sT2}, s{sT2}, 3")
        a(f"s_mul_i32 s{sT3}, s{sG}, 80")
        a(f"s_add_u32 s{sT2}, s{sT2}, s{sT3}")
        a(f"s_mul_i32 s{sT2}, s{sT2}, 1280")
        a(f"v_add3_u32 v{vB[0]}, v34, v36, s{sT2}")
        for m in range(1, 5):
            a(f"v_add_u32 v{vB[m]}, {16*1280*m}, v{vB[0]}")
        a(f"s_lshl_b32 s{sLX}, s{sL}, 12")
        a(f"s_lshl_b32 s{sLW}, s{sL}, 10")
        a("s_waitcnt lgkmcnt(0)")
        a.srd(SX, P_BX, 2621440)
        a(f"s_cmp_eq_u32 s{sT1}, 64")
        a(f"s_cselect_b32 s{SB}, s{P_BIM}, s{P_BRE}")
        a(f"s_cselect_b32 s{SB+1}, s{P_BIM+1}, s{P_BRE+1}")
        a(f"s_and_b32 s{SB+1}, s{SB+1}, 0xffff")
        a(f"s_mov_b32 s{SB+2}, 819200")
        a(f"s_mov_b32 s{SB+3}, 0x00020000")
        def stage(S):
            sl = R16 + (S % 4) * BSLOT
            nt = 'nt' if S < NTS else ''
            a(f"s_add_u32 m0, s{sLX}, {sl}")
            for i in range(4):
                vm.issue(f"buffer_load_dwordx4 v{vX[i]}, {rx}, s{sROT} offen offset:{1024*i} {nt} lds", f'st{S}')
            for m in range(5):
                a(f"s_add_u32 m0, s{sLW}, {sl + 16384 + 4096*m}")
                vm.issue(f"buffer_load_dwordx4 v{vB[m]}, {rb}, s{sROT} offen {nt} lds", f'st{S}')
            self.adv(sROT, 128, 1280)
        stage(0); stage(1)
        a(f"s_cmp_ge_u32 s{sL}, 2")
        a(f"s_cselect_b32 s{SCc}, s{P_CIM}, s{P_CRE}")
        a(f"s_cselect_b32 s{SCc+1}, s{P_CIM+1}, s{P_CRE+1}")
        a(f"s_and_b32 s{SCc+1}, s{SCc+1}, 0xffff")
        a(f"s_mov_b32 s{SCc+2}, 819200")
        a(f"s_mov_b32 s{SCc+3}, 0x00020000")
        a(f"s_mul_i32 s{sT0}, s{sR2}, 96")
        a(f"s_and_b32 s{sT1}, s{sL}, 1")
        a(f"s_mul_i32 s{sT1}, s{sT1}, 48")
        a(f"s_add_u32 s{sT0}, s{sT0}, s{sT1}")
        a(f"s_mul_i32 s{sT0}, s{sT0}, 1280")
        for i in range(4):
            a(f"v_add3_u32 v{vC[i]}, v34, v{32 + (i & 1)}, s{sT0}")
            if i: a(f"v_add_u32 v{vC[i]}, {i*8*1280 - i*1024}, v{vC[i]}")
        a(f"s_lshl_b32 s{sROT2}, s{sROT2}, 7")
        a(f"s_mul_i32 s{sL2X}, s{sL}, 6144")
        def cst(j):
            base = R16 + CSLOT*(j % 6)
            a(f"s_add_u32 m0, s{sL2X}, {base}")
            a(f"s_add_u32 s{sKS}, s{sROT2}, {32*1280}")
            for i in range(4):
                vm.issue(f"buffer_load_dwordx4 v{vC[i]}, {rc}, s{sROT2} offen offset:{1024*i} lds", f'c{j}')
            a(f"s_add_u32 m0, s{sL2X}, {base + 4096}")
            for i in range(2):
                vm.issue(f"buffer_load_dwordx4 v{vC[i]}, {rc}, s{sKS} offen offset:{1024*i} lds", f'c{j}')
            self.adv(sROT2, 128, 1280)
        for S in range(10):
            vm.wait(f'st{S}')
            a("s_barrier")
            self.bstamp(S)
            if S == 0:
                self.stamp(1)
                stage(2); stage(3)
            elif S + 3 < 10: stage(S + 3)
        a("s_barrier")
        if 'bprof' in self.opts: a.srd(S_WS, P_WS, WS_BYTES)
        self.bstamp(10); self.bflush()
        a("s_barrier")
        a("s_barrier")
        for j in range(5): cst(j)
        a("s_barrier")
        a("s_barrier")
        a(f"s_cmp_eq_u32 s{sR2}, 7")
        a("s_cbranch_scc1 L_end")
        cst(5)
        vm.wait('c1'); a("s_barrier")
        vm.wait('c3'); a("s_barrier")
        cst(6); cst(7)
        vm.wait('c5'); a("s_barrier")
        cst(8); cst(9)
        vm.wait('c7'); a("s_barrier")
        vm.wait('c9'); a("s_barrier")
        a("s_endpgm")

    def b_compute(self):
        a = self.a; ws = self.ws
        vN, vHH, vJ, vGm = 12, 13, 14, 15
        U = 16; OPS = 96; SC = 192; TMP = 232
        vX0, vX1, vW0, vW1, vXL, vWLp = 4, 5, 6, 7, 8, 9
        self.stamp(0)
        a(f"v_and_b32 v{vJ}, 15, v1")
        a(f"v_lshrrev_b32 v{vGm}, 4, v1")
        a(f"v_and_b32 v{vN}, 31, v1")
        a(f"v_lshrrev_b32 v{vHH}, 5, v1")
        a(f"v_min_u32 v3, 39, v1")
        a(f"s_sub_u32 s{sT1}, s{sW}, 1")
        a(f"s_mul_i32 s{sT0}, s{sG}, 80")
        a(f"s_mul_i32 s{sT2}, s{sT1}, 40")
        a(f"s_add_u32 s{sT0}, s{sT0}, s{sT2}")
        a(f"s_lshl_b32 s{sT0}, s{sT0}, 1")
        a(f"v_lshlrev_b32 v3, 1, v3")
        a(f"s_cmp_lt_u32 s{sT1}, 2")
        a(f"s_cselect_b32 s{sT3}, s{sT0}, {OOB}")
        a("s_waitcnt lgkmcnt(0)")
        a.srd(S_WS, P_WS, WS_BYTES)
        a("v_mov_b32 v2, 128")
        a(f"buffer_load_dword v250, v2, {ws}, 0 offen sc1")
        vS = 130
        a.srd(S_R1, P_LRE, 1280); a.srd(S_R2, P_LIM, 1280); a.srd(S_R3, P_LDT, 1280)
        a(f"buffer_load_ushort v{vS+1}, v3, s[{S_R1}:{S_R1+3}], s{sT3} offen")
        a(f"buffer_load_ushort v{vS+2}, v3, s[{S_R2}:{S_R2+3}], s{sT3} offen")
        a(f"buffer_load_ushort v{vS+3}, v3, s[{S_R3}:{S_R3+3}], s{sT3} offen")
        self.codepf("L_pcB")
        a(f"v_lshrrev_b32 v2, 1, v{vJ}")
        a(f"v_xor_b32 v2, v2, v{vGm}")
        a(f"v_lshlrev_b32 v2, 4, v2")
        a(f"v_lshl_add_u32 v2, v{vJ}, 7, v2")
        a(f"s_lshl_b32 s{sT0}, s{sW}, 12")
        a(f"v_add_u32 v{vXL}, s{sT0}, v2")
        a(f"v_add_u32 v{vWLp}, 16384, v2")
        a(f"v_mov_b32 v{vX0}, v{vXL}")
        a(f"v_mov_b32 v{vW0}, v{vWLp}")
        a(f"v_xor_b32 v{vX1}, 64, v{vX0}")
        a(f"v_xor_b32 v{vW1}, 64, v{vW0}")
        a("s_waitcnt vmcnt(1)")
        self.tag_from(250)
        a(f"s_cmp_ge_u32 s{sT1}, 2")
        a("s_cbranch_scc1 LB_nossm")
        self.ssm_job(vS, sT1)
        a.label("LB_nossm")
        for i in range(80): a(f"v_mov_b32 v{U+i}, 0")
        a(f"s_mov_b32 s{sSLOT}, 0")
        a(f"s_mov_b32 s{sIT}, 0")
        a("s_barrier")
        self.stamp(1)
        def rd(st, kx, kw):
            b = OPS + 48*st
            return ([f"ds_read_b128 v[{b+4*tr}:{b+4*tr+3}], v{kx} offset:{R16 + 2048*tr}" for tr in range(2)] +
                    [f"ds_read_b128 v[{b+8+4*tc}:{b+8+4*tc+3}], v{kw} offset:{R16 + 2048*tc}" for tc in range(10)])
        def mm(st):
            b = OPS + 48*st
            return [f"v_mfma_f32_16x16x32_bf16 v[{U+8*tc+4*tr}:{U+8*tc+4*tr+3}], v[{b+4*tr}:{b+4*tr+3}], v[{b+8+4*tc}:{b+8+4*tc+3}], v[{U+8*tc+4*tr}:{U+8*tc+4*tr+3}]"
                    for tc in range(10) for tr in range(2)]
        for x in rd(0, vX0, vW0): a(x)
        a("s_waitcnt lgkmcnt(0)")
        a.label("LB_loop")
        self.adv(sSLOT, BSLOT, 4*BSLOT)
        m0 = mm(0)
        self.inter(m0[:13], rd(1, vX1, vW1), 1)
        self.inter(m0[13:], [f"v_add_u32 v{vX0}, s{sSLOT}, v{vXL}", f"v_add_u32 v{vW0}, s{sSLOT}, v{vWLp}",
                             f"v_xor_b32 v{vX1}, 64, v{vX0}", f"v_xor_b32 v{vW1}, 64, v{vW0}"], 1)
        a("s_waitcnt lgkmcnt(0)")
        m1 = mm(1)
        for m in m1[:3]: a(m)
        a("s_barrier")
        self.inter(m1[3:], rd(0, vX0, vW0), 1)
        a(f"s_add_u32 s{sIT}, s{sIT}, 1")
        a(f"s_cmp_lt_u32 s{sIT}, 10")
        a("s_waitcnt lgkmcnt(0)")
        a("s_cbranch_scc1 LB_loop")
        self.stamp(2)
        a(f"v_lshlrev_b32 v2, 5, v{vJ}")
        for tc in range(10):
            a(f"ds_read_b128 v[{SC+4*tc}:{SC+4*tc+3}], v2 offset:{LB_TAB + 512*tc}")
        vSEG = 4
        a(f"v_mul_u32_u24 v{vSEG}, 80, v{vJ}")
        a(f"v_lshl_add_u32 v{vSEG}, v{vGm}, 2, v{vSEG}")
        a(f"s_lshl_b32 s{sT0}, s{sW}, 4")
        a(f"s_add_u32 s{sT0}, s{sT0}, {LB_SEG}")
        a(f"v_add_u32 v{vSEG}, s{sT0}, v{vSEG}")
        vQ, vSA = 5, 6
        a(f"s_lshl_b32 s{sT0}, s{sW}, 6")
        a(f"v_add_u32 v{vQ}, s{sT0}, v1")
        a(f"v_add_u32 v3, 128, v{vN}")
        a(f"v_cmp_lt_u32 vcc, 127, v{vQ}")
        a(f"v_cndmask_b32 v{vQ}, v{vQ}, v3, vcc")
        a(f"v_mul_u32_u24 v{vSA}, 80, v{vQ}")
        a(f"v_add_u32 v{vSA}, {LB_SEG}, v{vSA}")
        a("s_waitcnt lgkmcnt(0)")
        def ureg(tc, tt): return U + 8*tc + tt
        A0, A1 = TMP, TMP + 10
        prev = [ureg(tc, 0) for tc in range(10)]
        for tt in range(1, 8):
            cur = A0 if tt % 2 else A1
            for tc in range(10):
                a(f"v_fma_f32 v{cur+tc}, v{SC+4*tc}, v{prev[tc]}, v{ureg(tc, tt)}")
            for tc in range(10):
                a(f"v_fmac_f32_dpp v{cur+tc}, v{prev[tc]}, v{SC+4*tc+1} {DPP}")
            prev = [cur + tc for tc in range(10)]
        for tc in range(10):
            a(f"ds_write_b32 v{vSEG}, v{prev[tc]} offset:{1280*tc}")
        a("s_waitcnt lgkmcnt(0)")
        a("s_barrier")
        SG, TB, AG, SS = 96, 112, 116, 132
        for m in range(4):
            a(f"ds_read_b128 v[{SG+4*m}:{SG+4*m+3}], v{vSA} offset:{16*m}")
        a(f"v_lshlrev_b32 v2, 5, v{vQ}")
        a(f"ds_read_b128 v[{TB}:{TB+3}], v2 offset:{LB_TAB + 16}")
        a(f"s_mul_i32 s{sT0}, s{sG}, {16*AGP}")
        a(f"s_add_u32 s{sT0}, s{sT0}, {WS_AGG}")
        a(f"v_lshl_add_u32 v7, v{vQ}, 2, s{sT0}")
        a(f"s_mul_i32 s{sT5}, s{sC}, {AGP}")
        a(f"s_cmp_eq_u32 s{sW}, 3")
        a(f"s_cselect_b32 s{sT5}, {OOB}, s{sT5}")
        a(f"v_mov_b32 v2, 0xfff")
        a("s_waitcnt lgkmcnt(0)")
        prev = SG
        for sg in range(1, 16):
            cur = 148 + (sg & 1)
            a(f"v_fma_f32 v{cur}, v{TB}, v{prev}, v{SG+sg}")
            a(f"v_fmac_f32_dpp v{cur}, v{prev}, v{TB+1} {DPP}")
            prev = cur
        a(f"v_bfi_b32 v{prev}, v2, s{sTAG}, v{prev}")
        a(f"buffer_store_dword v{prev}, v7, {ws}, s{sT5} offen sc1")
        a("s_barrier")
        self.stamp(3)
        SO, SXB = S_R1, S_R2
        ro = f"s[{SO}:{SO+3}]"; rxb = f"s[{SXB}:{SXB+3}]"
        a.srd(SO, P_OUT, 2048*1280*4)
        a.srd(SXB, P_BX, 2621440)
        a.srd(S_R3, P_DSK, 1280)
        vF, vO, vA0, vO2, vPA, vXS, vDS = 240, 241, 242, 243, 244, 245, 246
        vHW, vHR, vHS = 247, 248, 249
        a(f"s_lshl_b32 s{sT0}, s{sC2}, 2")
        a(f"s_add_u32 s{sT0}, s{sT0}, s{sW}")
        a(f"s_lshl_b32 s{sT2}, s{sT0}, 5")
        a(f"v_lshl_add_u32 v2, v{vHH}, 2, s{sT2}")
        a(f"s_mul_i32 s{sT3}, s{sR2}, 96")
        a(f"v_add_lshl_u32 v{vDS}, v{vN}, s{sT3}, 1")
        a(f"v_mul_u32_u24 v{vXS}, 1280, v2")
        a(f"v_add_u32 v{vXS}, v{vXS}, v{vDS}")
        a(f"v_mul_u32_u24 v{vO}, 5120, v2")
        a(f"v_lshl_add_u32 v{vO}, v{vDS}, 1, v{vO}")
        a(f"v_add_u32 v{vO}, 2560, v{vO}")
        a(f"s_cmp_eq_u32 s{sR2}, 6")
        a(f"s_cselect_b32 s{sT3}, {OOB}, 0")
        a(f"v_add_u32 v{vO2}, s{sT3}, v{vO}")
        a(f"s_mul_i32 s{sT4}, s{sT0}, 81920")
        a(f"s_add_u32 s{sT4}, s{sT4}, {WS_H}")
        a(f"v_lshl_add_u32 v{vF}, v1, 4, s{sT4}")
        a(f"v_bfe_u32 v{vA0}, v1, 1, 3")
        a(f"v_lshlrev_b32 v{vA0}, 4, v{vA0}")
        a(f"v_lshl_add_u32 v{vA0}, v{vN}, 7, v{vA0}")
        a(f"v_mul_u32_u24 v3, 12288, v{vHH}")
        a(f"v_add_u32 v{vA0}, v{vA0}, v3")
        a(f"s_lshl_b32 s{sT1}, s{sW}, 6")
        self.poll_addr(vPA, WS_FLAG_H, sC2, 7, sT1)
        self.flag_addr(sM2, WS_FLAG_H, sC, sW, 16, sG)
        a(f"s_lshl_b32 s{sT0}, s{sW}, 11")
        a(f"s_add_u32 s{sT0}, s{sT0}, {LB_HT}")
        a(f"v_lshlrev_b32 v{vHW}, 6, v{vJ}")
        a(f"v_lshl_add_u32 v{vHW}, v{vGm}, 4, v{vHW}")
        a(f"v_add_u32 v{vHW}, s{sT0}, v{vHW}")
        a(f"v_bfe_u32 v{vHR}, v1, 2, 2")
        a(f"v_lshl_add_u32 v{vHR}, v{vHH}, 3, v{vHR}")
        a(f"v_lshlrev_b32 v{vHR}, 6, v{vHR}")
        a(f"v_bfe_u32 v2, v1, 4, 1")
        a(f"v_lshl_add_u32 v{vHR}, v2, 5, v{vHR}")
        a(f"v_and_b32 v2, 3, v1")
        a(f"v_lshl_add_u32 v{vHR}, v2, 3, v{vHR}")
        a(f"v_add_u32 v{vHR}, s{sT0}, v{vHR}")
        a(f"s_lshl_b32 s{sT1}, s{sC}, 2")
        a(f"s_add_u32 s{sT1}, s{sT1}, s{sW}")
        a(f"s_mul_i32 s{sT2}, s{sT1}, 81920")
        a(f"s_mul_i32 s{sT3}, s{sG}, 10240")
        a(f"s_add_u32 s{sT2}, s{sT2}, s{sT3}")
        a(f"s_add_u32 s{sT2}, s{sT2}, {WS_H}")
        a(f"v_lshl_add_u32 v{vHS}, v1, 4, s{sT2}")
        a(f"s_mov_b32 s{sT7}, 0")
        a.label("LB_ag")
        for m in range(15):
            a(f"s_sub_u32 s{sT1}, s{sC}, {15 - m}")
            a(f"s_mul_i32 s{sT2}, s{sT1}, {AGP}")
            a(f"s_cmp_lt_i32 s{sT1}, 0")
            a(f"s_cselect_b32 s{sT2}, {OOB}, s{sT2}")
            a(f"buffer_load_dword v{AG+m}, v7, {ws}, s{sT2} offen sc1")
        a("v_mov_b32 v150, 0")
        a(f"s_add_u32 s{sT7}, s{sT7}, 1")
        a("s_waitcnt vmcnt(0)")
        for m in range(15):
            a(f"s_cmp_ge_u32 s{sC}, {15 - m}")
            a(f"s_cselect_b32 s{sT0}, 0xfff, 0")
            a(f"v_xor_b32 v151, s{sTAG}, v{AG+m}")
            a(f"v_and_or_b32 v150, v151, s{sT0}, v150")
        a(f"v_cmp_ne_u32 vcc, 0, v150")
        a(f"s_cmp_ge_u32 s{sT7}, 0x40000")
        a("s_cbranch_scc1 LB_agok")
        a(f"s_cmp_lg_u64 vcc, 0")
        a("s_cbranch_scc1 LB_ag")
        a.label("LB_agok")
        prev = AG
        for m in range(1, 15):
            cur = 148 + (m & 1) if m < 14 else SS
            a(f"v_fma_f32 v{cur}, v{TB+2}, v{prev}, v{AG+m}")
            a(f"v_fmac_f32_dpp v{cur}, v{prev}, v{TB+3} {DPP}")
            prev = cur
        for sg in range(15):
            a(f"v_fma_f32 v{SS+sg+1}, v{TB}, v{SS+sg}, v{SG+sg}")
            a(f"v_fmac_f32_dpp v{SS+sg+1}, v{SS+sg}, v{TB+1} {DPP}")
        for m in range(4):
            a(f"ds_write_b128 v{vSA}, v[{SS+4*m}:{SS+4*m+3}] offset:{16*m}")
        a("s_waitcnt lgkmcnt(0)")
        a("s_barrier")
        self.stamp(4)
        SV = 96
        for tc in range(10):
            a(f"ds_read_b32 v{SV+tc}, v{vSEG} offset:{1280*tc}")
        a("s_waitcnt lgkmcnt(0)")
        prev = [SV + tc for tc in range(10)]
        for tt in range(8):
            for tc in range(10):
                u = ureg(tc, tt)
                a(f"v_fma_f32 v{u}, v{SC+4*tc}, v{prev[tc]}, v{u}")
            for tc in range(10):
                u = ureg(tc, tt)
                a(f"v_fmac_f32_dpp v{u}, v{prev[tc]}, v{SC+4*tc+1} {DPP}")
            prev = [ureg(tc, tt) for tc in range(10)]
        OTm = [108, 116]; HPm = [124, 128]; HFm = [132, 136]
        def hst(tc):
            hf = HFm[tc & 1]
            a(f"s_movk_i32 s{sT0}, {4096*(tc >> 2)}")
            a("s_waitcnt lgkmcnt(0)")
            a(f"buffer_store_dwordx4 v[{hf}:{hf+3}], v{vHS}, {ws}, s{sT0} offen offset:{1024*(tc & 3)} sc1")
        for tc in range(10):
            o = OTm[tc & 1]; hp = HPm[tc & 1]; hf = HFm[tc & 1]
            for tt in range(8):
                a(f"v_mul_f32 v{o+tt}, v{SC+4*tc+2}, v{ureg(tc, tt)}")
            for tt in range(8):
                a(f"v_fmac_f32_dpp v{o+tt}, v{ureg(tc, tt)}, v{SC+4*tc+3} {DPP}")
            if tc: hst(tc - 1)
            for i in range(4):
                a(f"v_cvt_pk_bf16_f32 v{hp+i}, v{o+2*i}, v{o+2*i+1}")
            a(f"ds_write_b128 v{vHW}, v[{hp}:{hp+3}] offset:{1024*(tc & 1)}")
            for h in range(2):
                a(f"ds_read_b64_tr_b16 v[{hf+2*h}:{hf+2*h+1}], v{vHR} offset:{1024*(tc & 1) + 256*h}")
        hst(9)
        self.stamp(5)
        AC2, SK, HR, WB = 16, 64, 112, 176
        for i in range(96): a(f"v_mov_b32 v{AC2+i}, 0")
        a("s_waitcnt vmcnt(0)")
        self.flag_store(sM2, 2)
        self.stamp(6)
        a("s_barrier")
        a(f"s_cmp_eq_u32 s{sR2}, 7")
        a("s_cbranch_scc1 LB_idle")
        for t in range(3):
            a(f"buffer_load_ushort v{8+t}, v{vDS}, s[{S_R3}:{S_R3+3}], 0 offen offset:{64*t}")
        for r in range(16):
            a(f"s_mov_b32 s{sT6}, {(8*(r >> 2) + (r & 3))*1280}")
            for t in range(3):
                a(f"buffer_load_short_d16_hi v{SK+16*t+r}, v{vXS}, {rxb}, s{sT6} offen offset:{64*t}")
        self.poll_issue(vPA, 13)
        a("s_waitcnt vmcnt(1)")
        for t in range(3):
            a(f"v_lshlrev_b32 v{8+t}, 16, v{8+t}")
            for r in range(0, 16, 2):
                x = SK + 16*t + r; y = AC2 + 16*t + r
                a(f"v_mul_f32 v{x}, v{x}, v{8+t}")
                a(f"v_mul_f32 v{x+1}, v{x+1}, v{8+t}")
                a(f"v_cvt_pk_bf16_f32 v{x+1}, v{x}, v{x+1}")
                a(f"v_lshlrev_b32 v{y}, 16, v{x+1}")
                a(f"v_and_b32 v{y+1}, 0xffff0000, v{x+1}")
        self.poll_wait(vPA, 13)
        self.stamp(7)
        self.stamp_flush(64, 0)
        self.stamp(0)
        a(f"s_lshl_b32 s{sKS}, s{sROT2}, 13")
        def ld(slot, kk):
            r = HR + 4*slot
            so = sKS if kk < 4 else sKSW
            return f"buffer_load_dwordx4 v[{r}:{r+3}], v{vF}, {ws}, s{so} offen offset:{1024*(kk & 3)} sc1"
        def adv(step, lim):
            a(f"s_add_u32 s{sKS}, s{sKS}, {step}")
            a(f"s_cmp_eq_u32 s{sKS}, {lim}")
            a(f"s_cselect_b32 s{sKS}, 0, s{sKS}")
        vAD = [4, 5, 6]
        def lds_adv():
            a(f"v_add_u32 v{vAD[0]}, s{sSLOT}, v{vA0}")
            a(f"s_add_u32 s{sSLOT}, s{sSLOT}, {CSLOT}")
            a(f"s_cmp_ge_u32 s{sSLOT}, {LDS_TOTAL}")
            a(f"s_cselect_b32 s{sSLOT}, {R16}, s{sSLOT}")
        for st in range(2):
            a(f"s_add_u32 s{sKSW}, s{sKS}, 4096")
            for kk in range(8): a(ld(8*st + kk, kk))
            adv(8192, 81920)
        a(f"s_mov_b32 s{sIT}, 0")
        a(f"s_mov_b32 s{sSLOT}, {R16}")
        def rdB(rho):
            b = WB + 12*(rho & 3)
            return [f"v_xor_b32 v{vAD[1 + (rho & 1)]}, {16*(rho & 7)}, v{vAD[0]}"] + \
                   [f"ds_read_b128 v[{b+4*t}:{b+4*t+3}], v{vAD[1 + (rho & 1)]} offset:{4096*t}" for t in range(3)]
        a("s_barrier")
        lds_adv()
        for rho in range(2):
            for x in rdB(rho): a(x)
        a.label("LP2B_loop")
        a(f"s_cmp_ge_u32 s{sIT}, 4")
        a(f"s_cselect_b32 s{sKS}, {OOB}, s{sKS}")
        for sidx in range(16):
            kk = sidx & 7
            rho = sidx + 2
            if kk == 0: a(f"s_add_u32 s{sKSW}, s{sKS}, 4096")
            if rho == 16:
                a(f"s_cmp_ge_u32 s{sIT}, 4")
                a("s_cbranch_scc1 LP2B_nb")
                a("s_waitcnt lgkmcnt(0)")
                a("s_barrier")
                a.label("LP2B_nb")
            if rho in (8, 16): lds_adv()
            rr = rdB(rho)
            a(rr[0])
            a(f"s_waitcnt vmcnt(15) lgkmcnt(3)")
            b = WB + 12*(sidx & 3); h = HR + 4*sidx
            for t in range(3):
                d = AC2 + 16*t
                a(f"v_mfma_f32_32x32x16_bf16 v[{d}:{d+15}], v[{h}:{h+3}], v[{b+4*t}:{b+4*t+3}], v[{d}:{d+15}]")
                a(rr[1+t])
            a(ld(sidx, kk))
            if kk == 7: adv(8192, 81920)
        self.itstamp()
        a(f"s_add_u32 s{sIT}, s{sIT}, 1")
        a(f"s_cmp_lt_u32 s{sIT}, 5")
        a("s_cbranch_scc1 LP2B_loop")
        self.stamp(1)
        for r in range(16):
            a(f"s_mov_b32 s{sT4}, {(8*(r >> 2) + (r & 3))*5120}")
            for t in range(3):
                a(f"buffer_store_dword v{AC2+16*t+r}, v{vO2 if t == 2 else vO}, {ro}, s{sT4} offen offset:{128*t} nt")
        self.bump(143 if MIX else 8*24 + 7, 128)
        self.finish()
        a.label("LB_idle")
        self.stamp_flush(64, 0)
        a("s_endpgm")

    def ssm_job(self, vS, sH):
        a = self.a
        n0 = len(a.items)
        G.L_TAB = 0
        self.side_jobs(vS)
        from asm2 import Ins
        items = a.items[n0:]
        del a.items[n0:]
        start = next(i for i, it in enumerate(items) if isinstance(it, Ins) and it.text.startswith("v_lshlrev_b32 v64, 16"))
        end = next(i for i, it in enumerate(items) if isinstance(it, Ins) and it.op == 's_branch')
        body = items[start:end]
        a(f"s_mul_i32 s{sT0}, s{sH}, 2560")
        for it in body:
            if it.text.startswith("v_lshlrev_b32 v67, 5, v67"):
                a(f"v_lshl_add_u32 v67, v67, 5, s{sT0}")
            else:
                a.items.append(it)
        a("s_waitcnt lgkmcnt(0)")

    def build(self):
        a = self.a
        a.kernel_begin(KNAME, 256, 512, LDS_TOTAL)
        if 'single' in self.opts: a.launch = [f"; @launch grid=(256,1,1) block=(512,1,1) lds={LDS_TOTAL}"]
        self.prologue()
        self.a_loader()
        a.label("L_Acomp")
        self.a_compute()
        self.b_entry()
        self.b_loader()
        a.label("L_Bcomp")
        self.b_compute()
        a.label("L_end")
        a("s_endpgm")
        a.kernel_end(KNAME, 256)
        return a

if __name__ == "__main__":
    for o in sys.argv[2:]:
        if '=' in o:
            kk, vv = o.split('='); globals()[kk] = int(vv)
    k = K2(prof='prof' in sys.argv, opts=sys.argv[2:])
    a = k.build()
    hdr = "".join(open("concat_heads__linear_kernel_hedgehog__ssm_conv_s5__prompt.s.ref").read().splitlines(True)[:17]) if 'final' in sys.argv else ""
    open(sys.argv[1], "w").write(a.text(hdr))
```

```python
import sys
import gen as G
from gen import *

R16 = 16384
LA_WPH = 0; LA_KVI = 5632; LA_DUM = 12800 + 64; ASLOT = 49152
LA_IMG = LDS_TOTAL - 67600
LB_TAB = 0; BSLOT = 36864; LB_SEG = LDS_TOTAL - 24576; LB_HT = LB_SEG + 12800; CSLOT = 24576
AGP = 640
NTS = 0
OST = 1
UX2 = 36
CPRE = 5
PRIO = 0
SKEW = 2
MIX = 1
TICKET = 0
sSLOT = sLW

class K2(K):
    def inter(self, ms, rs, per=None):
        a = self.a
        if per is None: per = -(-len(rs) // max(1, len(ms) - 1)) if rs else 0
        ri = 0
        for m in ms:
            a(m)
            for _ in range(per):
                if ri < len(rs): a(rs[ri]); ri += 1
        while ri < len(rs): a(rs[ri]); ri += 1

    def prologue(self):
        a = self.a
        a("s_cmp_ge_u32 s2, 256")
        a("s_cbranch_scc1 L_end")
        a("s_load_dwordx16 s[4:19], s[0:1], 0")
        a("s_load_dwordx16 s[20:35], s[0:1], 64")
        a("v_lshrrev_b32 v2, 6, v0")
        a("v_and_b32 v1, 63, v0")
        a(f"v_readfirstlane_b32 s{sW}, v2")
        if TICKET:
            a(f"s_getreg_b32 s{sT0}, hwreg(HW_REG_XCC_ID)")
            a(f"s_and_b32 s{sT0}, s{sT0}, 7")
            a("v_mov_b32 v4, 16320")
            a(f"s_cmp_lg_u32 s{sW}, 0")
            a("s_cbranch_scc1 L_tkw")
            a("s_waitcnt lgkmcnt(0)")
            a.srd(S_R1, P_DBG, 256)
            a(f"s_mov_b32 s{sT2}, 0")
            a("s_mov_b64 exec, 1")
            a.label("L_tk")
            a(f"s_lshl_b32 s{sT1}, s{sT0}, 5")
            a(f"v_mov_b32 v2, s{sT1}")
            a("v_mov_b32 v3, 1")
            a(f"buffer_atomic_add v3, v2, s[{S_R1}:{S_R1+3}], 0 offen sc0 sc1")
            a(f"s_add_u32 s{sT2}, s{sT2}, 1")
            a("s_waitcnt vmcnt(0)")
            a(f"v_readfirstlane_b32 s{sT1}, v3")
            a(f"s_cmp_lt_u32 s{sT1}, 32")
            a("s_cbranch_scc1 L_tko")
            a(f"s_add_u32 s{sT0}, s{sT0}, 1")
            a(f"s_and_b32 s{sT0}, s{sT0}, 7")
            a(f"s_cmp_lt_u32 s{sT2}, 8")
            a("s_cbranch_scc1 L_tk")
            a.label("L_tko")
            a(f"s_lshl_b32 s{sT1}, s{sT1}, 3")
            a(f"s_add_u32 s{sT1}, s{sT1}, s{sT0}")
            a(f"s_and_b32 s{sT1}, s{sT1}, 255")
            a(f"v_mov_b32 v3, s{sT1}")
            a("ds_write_b32 v4, v3")
            a("s_mov_b64 exec, -1")
            a("s_waitcnt lgkmcnt(0)")
            a.label("L_tkw")
            a("s_barrier")
            a("ds_read_b32 v3, v4")
            a("s_waitcnt lgkmcnt(0)")
            a("v_readfirstlane_b32 s2, v3")
            a("s_and_b32 s2, s2, 255")
        if MIX:
            a(f"s_and_b32 s{sC2}, s2, 7")
            a(f"s_lshl_b32 s{sC2}, s{sC2}, 1")
            a(f"s_lshr_b32 s{sT0}, s2, 7")
            a(f"s_add_u32 s{sC2}, s{sC2}, s{sT0}")
            a(f"s_bfe_u32 s{sR2}, s2, 0x30004")
            a(f"s_mov_b32 s{sLOG2E}, 0x3fb8aa3b")
            a(f"s_mov_b32 s{sLOG2E+1}, 0x3fb8aa3b")
            a(f"s_sub_u32 s{sL}, s{sW}, 4")
            a(f"s_bfe_u32 s{sT1}, s2, 0x20004")
            a(f"s_lshr_b32 s{sT2}, s2, 6")
            a("s_bitcmp1_b32 s2, 3")
            a("s_cbranch_scc1 L_B")
            a(f"s_and_b32 s{sT0}, s2, 4")
            a(f"s_add_u32 s{sC}, s{sT0}, s{sT1}")
            a(f"s_and_b32 s{sT0}, s2, 3")
            a(f"s_lshl_b32 s{sT0}, s{sT0}, 2")
            a(f"s_add_u32 s{sG}, s{sT0}, s{sT2}")
            a(f"s_xor_b32 s{sD0}, s{sG}, 1")
            a(f"s_and_b32 s{sROT2}, s{sC2}, 1")
            a(f"s_lshl_b32 s{sROT2}, s{sROT2}, 2")
            a(f"s_add_u32 s{sROT2}, s{sROT2}, s{sR2}")
            a(f"s_and_b32 s{sROT2}, s{sROT2}, 7")
        else:
            a(f"s_and_b32 s{sC2}, s2, 3")
            a(f"s_lshl_b32 s{sC2}, s{sC2}, 2")
            a(f"s_lshr_b32 s{sT0}, s2, 6")
            a(f"s_add_u32 s{sC2}, s{sC2}, s{sT0}")
            a(f"s_bfe_u32 s{sR2}, s2, 0x30003")
            a(f"s_mov_b32 s{sLOG2E}, 0x3fb8aa3b")
            a(f"s_mov_b32 s{sLOG2E+1}, 0x3fb8aa3b")
            a(f"s_sub_u32 s{sL}, s{sW}, 4")
            a("s_bitcmp1_b32 s2, 2")
            a("s_cbranch_scc1 L_B")
            a(f"s_bfe_u32 s{sT0}, s2, 0x10001")
            a(f"s_lshl_b32 s{sT0}, s{sT0}, 2")
            a(f"s_bfe_u32 s{sT1}, s2, 0x20003")
            a(f"s_add_u32 s{sC}, s{sT0}, s{sT1}")
            a(f"s_and_b32 s{sT0}, s2, 1")
            a(f"s_lshl_b32 s{sT0}, s{sT0}, 3")
            a(f"s_lshr_b32 s{sT2}, s2, 5")
            a(f"s_add_u32 s{sG}, s{sT0}, s{sT2}")
            a(f"s_xor_b32 s{sD0}, s{sG}, 1")
            a(f"s_and_b32 s{sROT2}, s{sC2}, 3")
            a(f"s_lshl_b32 s{sROT2}, s{sROT2}, 1")
            a(f"s_add_u32 s{sROT2}, s{sROT2}, s{sR2}")
            a(f"s_and_b32 s{sROT2}, s{sROT2}, 7")
        self.rot()
        a(f"s_cmp_lt_u32 s{sW}, 4")
        a("s_cbranch_scc1 L_Acomp")

    def rot(self):
        a = self.a
        a(f"s_mul_i32 s{sT1}, s{sT1}, 3")
        a(f"s_add_u32 s{sROT}, s{sT1}, s{sT2}")
        a(f"s_cmp_ge_u32 s{sROT}, 10")
        a(f"s_cselect_b32 s{sT0}, 10, 0")
        a(f"s_sub_u32 s{sROT}, s{sROT}, s{sT0}")
        a(f"s_lshl_b32 s{sROT}, s{sROT}, 7")

    def codepf(self, lab):
        a = self.a
        a(f"s_getpc_b64 s[{sM}:{sM+1}]")
        a.label(lab)
        a(f"s_lshr_b32 s{sT0}, s2, 3")
        a(f"s_lshl_b32 s{sT0}, s{sT0}, 2")
        a(f"s_add_u32 s{sT0}, s{sT0}, s{sW}")
        a(f"s_mul_i32 s{sT0}, s{sT0}, 384")
        a(f"v_min_u32 v2, 2, v1")
        a(f"v_lshl_add_u32 v2, v2, 7, s{sT0}")
        a(f"s_sub_u32 s{sM}, s{sM}, {lab}-{KNAME}")
        a(f"s_subb_u32 s{sM+1}, s{sM+1}, 0")
        a(f"v_min_u32 v2, L_end-{KNAME}, v2")
        a(f"global_load_dword v255, v2, s[{sM}:{sM+1}]")

    class VM:
        def __init__(s, a): s.a = a; s.out = []
        def issue(s, t, lab): s.a(t); s.out.append(lab)
        def wait(s, lab):
            idx = max(i for i, l in enumerate(s.out) if l == lab)
            n = len(s.out) - 1 - idx
            assert n <= 63
            s.a(f"s_waitcnt vmcnt({n})")
            del s.out[:idx+1]

    def adv(self, reg, step, lim):
        a = self.a
        a(f"s_add_u32 s{reg}, s{reg}, {step}")
        a(f"s_cmp_ge_u32 s{reg}, {lim}")
        a(f"s_cselect_b32 s{reg}, 0, s{reg}")

    def swz(self):
        a = self.a
        a(f"v_lshrrev_b32 v2, 3, v1")
        a(f"v_and_b32 v3, 7, v1")
        a(f"v_lshrrev_b32 v34, 1, v2")
        a(f"v_xor_b32 v32, v3, v34")
        a(f"v_xor_b32 v33, 4, v32")
        a(f"v_lshlrev_b32 v32, 4, v32")
        a(f"v_lshlrev_b32 v33, 4, v33")
        a(f"v_mul_u32_u24 v34, 1280, v2")

    def a_loader(self):
        a = self.a; ws = self.ws
        vm = self.VM(a)
        SX, SQ, SO_ = S_R1, S_R2, S_R4
        rx = f"s[{SX}:{SX+3}]"; rq = f"s[{SQ}:{SQ+3}]"; rw = f"s[{SO_}:{SO_+3}]"
        self.stamp(0)
        vX = [4, 5, 6, 7]; vWq = [8, 9, 10, 11]
        if 'bprof' in self.opts: a("v_mov_b32 v255, 0")
        self.bstamp(32)
        self.swz()
        a(f"s_lshl_b32 s{sT0}, s{sC}, 8")
        a(f"s_lshl_b32 s{sT1}, s{sL}, 6")
        a(f"s_add_u32 s{sT0}, s{sT0}, s{sT1}")
        a(f"s_mul_i32 s{sT0}, s{sT0}, 1280")
        for i in range(4):
            a(f"v_add3_u32 v{vX[i]}, v34, v{32 + (i & 1)}, s{sT0}")
            if i: a(f"v_add_u32 v{vX[i]}, {i*8*1280 - i*1024}, v{vX[i]}")
        a(f"v_lshrrev_b32 v2, 4, v1")
        a(f"v_lshlrev_b32 v3, 2, v2")
        a(f"v_sub_u32 v3, v1, v3")
        a(f"v_and_b32 v3, 15, v3")
        a(f"v_min_u32 v3, 14, v3")
        a(f"v_mul_u32_u24 v12, 52, v3")
        a(f"v_lshrrev_b32 v12, 8, v12")
        a(f"v_mul_u32_u24 v12, 1200, v12")
        a(f"v_lshl_add_u32 v12, v3, 4, v12")
        a(f"v_mul_u32_u24 v2, 3840, v2")
        a(f"s_mul_i32 s{sT0}, s{sG}, 80")
        a(f"s_mul_i32 s{sT1}, s{sD0}, 80")
        a(f"v_mov_b32 v13, s{sT0}")
        a(f"v_mov_b32 v14, s{sT1}")
        a(f"v_cmp_gt_u32 vcc, 5, v3")
        a(f"v_cndmask_b32 v13, v13, v14, vcc")
        a(f"s_mul_i32 s{sT0}, s{sL}, {16*3840}")
        a(f"v_add3_u32 v12, v12, v2, v13")
        a(f"v_add_u32 v{vWq[0]}, s{sT0}, v12")
        for i in range(1, 4):
            a(f"v_add_u32 v{vWq[i]}, {i*(4*3840 - 1024)}, v{vWq[0]}")
        a(f"s_lshl_b32 s{sLX}, s{sL}, 13")
        a(f"s_lshl_b32 s{sLW}, s{sL}, 12")
        a("s_waitcnt lgkmcnt(0)")
        a.srd(SX, P_AX, 2621440)
        a.srd(SQ, P_WQKV, 2457600)
        if 'now' in self.opts: a(f"s_mov_b32 s{SQ+2}, 0")
        if 'nox' in self.opts: a(f"s_mov_b32 s{SX+2}, 0")
        def stage(S):
            sl = R16 + (S % 3) * ASLOT
            nt = 'nt' if S < NTS else ''
            a(f"s_add_u32 m0, s{sLW}, {sl + 32768}")
            a(f"s_mul_i32 s{sKSW}, s{sROT}, 1920")
            for i in range(4):
                vm.issue(f"buffer_load_dwordx4 v{vWq[i]}, {rq}, s{sKSW} offen offset:{1024*i} {nt} lds", f'st{S}')
            a(f"s_add_u32 m0, s{sLX}, {sl}")
            a(f"s_add_u32 s{sKS}, s{sROT}, {32*1280}")
            for i in range(4):
                vm.issue(f"buffer_load_dwordx4 v{vX[i]}, {rx}, s{sROT} offen offset:{1024*i} {nt} lds", f'st{S}')
            a(f"s_add_u32 m0, s{sLX}, {sl + 4096}")
            for i in range(4):
                vm.issue(f"buffer_load_dwordx4 v{vX[i]}, {rx}, s{sKS} offen offset:{1024*i} {nt} lds", f'st{S}')
            self.adv(sROT, 128, 1280)
        stage(0)
        a.srd(S_WS, P_WS, WS_BYTES)
        a("v_mov_b32 v2, 0")
        vm.issue(f"buffer_load_dword v26, v2, {ws}, 0 offen sc1", 'ep')
        G.L_KVI = 0
        sv = (self.__dict__.get('_'),)
        a(f"s_mov_b32 s{sM2}, s{sG}")
        a(f"s_mov_b32 s{sG}, s{sD0}")
        self.reduce_addrs8()
        a(f"s_mov_b32 s{sG}, s{sM2}")
        a.srd(SO_, P_WO, 819200)
        a(f"v_lshrrev_b32 v110, 4, v1")
        a(f"v_bfe_u32 v111, v1, 2, 2")
        a(f"v_xor_b32 v111, v111, v110")
        a(f"v_min_u32 v111, 2, v111")
        a(f"v_lshlrev_b32 v111, 6, v111")
        a(f"v_and_b32 v2, 3, v1")
        a(f"v_lshl_add_u32 v111, v2, 4, v111")
        a(f"s_mul_i32 s{sT0}, s{sR2}, 192")
        a(f"v_add_u32 v111, s{sT0}, v111")
        a(f"s_lshr_b32 s{sT0}, s{sL}, 1")
        a(f"s_mul_i32 s{sT0}, s{sT0}, 10")
        a(f"s_and_b32 s{sT1}, s{sL}, 1")
        a(f"s_lshl_b32 s{sT2}, s{sT1}, 2")
        a(f"v_add_u32 v108, s{sT2}, v110")
        for st in range(4):
            a(f"v_add_u32 v109, {8*(st & 1)}, v108")
            a(f"v_add_u32 v2, 10, v109")
            a(f"v_cmp_lt_u32 vcc, 9, v109")
            a(f"v_cndmask_b32 v109, v109, v2, vcc")
            a(f"s_add_u32 s{sT3}, s{sT0}, {40*(st >> 1)}")
            a(f"v_add_u32 v109, s{sT3}, v109")
            a(f"v_mul_u32_u24 v109, 1280, v109")
            a(f"v_add_u32 v{100+st}, v109, v111")
        a(f"s_mul_i32 s{sT3}, s{sT1}, 40")
        a(f"s_add_u32 s{sT3}, s{sT3}, s{sT0}")
        a(f"s_add_u32 s{sT3}, s{sT3}, 26")
        a(f"v_add_u32 v109, s{sT3}, v110")
        a(f"v_mul_u32_u24 v109, 1280, v109")
        a(f"v_add_u32 v104, v109, v111")
        a(f"s_mul_i32 s{sROT2}, s{sROT2}, {80*1280}")
        a(f"s_lshl_b32 s{sL2X}, s{sL}, 10")
        a(f"v_mov_b32 v60, 0")
        a(f"v_mov_b32 v61, 0")
        a(f"v_mul_u32_u24 v2, 112, v1")
        a(f"ds_write_b64 v2, v[60:61] offset:{LA_KVI+40}")
        a(f"ds_write_b64 v2, v[60:61] offset:{LA_KVI+88}")
        stage(1)
        def units(lo, hi):
            for u in range(lo, hi):
                a(f"s_add_u32 m0, s{sL2X}, {(R16 + 4096*u) % LDS_TOTAL}")
                vm.issue(f"buffer_load_dwordx4 v{100 + u % 5}, {rw}, s{sROT2} offen lds", f'u{u}')
                if u % 5 == 4: self.adv(sROT2, 80*1280, 640*1280)
        for S in range(10):
            vm.wait(f'st{S}')
            if S == 0: a("s_waitcnt lgkmcnt(0)")
            a("s_barrier")
            self.bstamp(S)
            if S == 0: self.stamp(1)
            if S + 2 < 10: stage(S + 2)
            if S == 1: self.tag_from(26)
        a("s_barrier")
        self.bstamp(10); self.bflush()
        self.stamp(2)
        units(0, 19)
        a("s_barrier")
        a("s_barrier")
        self.stamp(3)
        units(19, UX2)
        LA = [112 + 4*i for i in range(8)]
        vLA, vDA, vDA2, vDB, vDB2, vPR = 16, 18, 19, 20, 21, 23
        sP0, sP1, sCR = sT4, sT5, sM + 1
        self.tagpat(sP0, sP1)
        a(f"s_mov_b32 s{sT7}, 0")
        a(f"s_and_b32 s{sCR}, s{sC}, 3")
        a(f"s_mul_i32 s{sCR}, s{sCR}, {2*KVPITCH}")
        def chk(r):
            for i in range(4):
                a(f"v_xor_b32 v{64+i}, s{sP0 if i % 2 == 0 else sP1}, v{r+i}")
            a(f"v_or3_b32 v72, v72, v64, v65")
            a(f"v_or3_b32 v72, v72, v66, v67")
        a.label("LAl_probe")
        a(f"buffer_load_dwordx4 v[76:79], v{vPR}, {ws}, 0 offen sc1")
        a(f"s_add_u32 s{sT7}, s{sT7}, 1")
        a(f"s_cmp_ge_u32 s{sT7}, 0x40000")
        a("s_cbranch_scc1 LAl_sum")
        a("v_mov_b32 v72, 0")
        a("s_waitcnt vmcnt(0)")
        chk(76)
        a(f"v_and_b32 v72, 0x10001, v72")
        a(f"v_cmp_ne_u32 vcc, 0, v72")
        a(f"s_cmp_lg_u64 vcc, 0")
        a("s_cbranch_scc1 LAl_probe")
        self.stamp(4)
        a(f"s_mov_b32 s{sT0}, s{sCR}")
        for cc in range(8):
            a(f"buffer_load_dwordx4 v[{LA[cc]}:{LA[cc]+3}], v{vLA}, {ws}, s{sT0} offen sc1")
            if cc < 7:
                a(f"s_add_u32 s{sT0}, s{sT0}, {KVPITCH}")
                if cc % 2 == 1:
                    a(f"s_cmp_eq_u32 s{sT0}, {8*KVPITCH}")
                    a(f"s_cselect_b32 s{sT0}, 0, s{sT0}")
        AC, TP = 80, 88
        for cc in range(8):
            a(f"s_waitcnt vmcnt({7-cc})")
            chk(LA[cc])
            d = AC if cc == 0 else TP
            for i in range(4):
                a(f"v_lshlrev_b32 v{d+2*i}, 16, v{LA[cc]+i}")
                a(f"v_and_b32 v{d+2*i+1}, 0xffff0000, v{LA[cc]+i}")
            if cc:
                for i in range(4):
                    a(f"v_pk_add_f32 v[{AC+2*i}:{AC+2*i+1}], v[{AC+2*i}:{AC+2*i+1}], v[{TP+2*i}:{TP+2*i+1}]")
        a(f"v_and_b32 v72, v24, v72")
        a(f"v_cmp_ne_u32 vcc, 0, v72")
        a(f"s_cmp_lg_u64 vcc, 0")
        a("s_cbranch_scc1 LAl_probe")
        a.label("LAl_sum")
        for i in range(4):
            a(f"v_cvt_pk_bf16_f32 v{TP+i}, v{AC+2*i}, v{AC+2*i+1}")
        a(f"ds_write_b64 v{vDA}, v[{TP}:{TP+1}] offset:{LA_KVI}")
        a(f"ds_write_b64 v{vDA2}, v[{TP}:{TP+1}] offset:{LA_KVI}")
        a(f"ds_write_b64 v{vDB}, v[{TP+2}:{TP+3}] offset:{LA_KVI}")
        a(f"ds_write_b64 v{vDB2}, v[{TP+2}:{TP+3}] offset:{LA_KVI}")
        a("s_waitcnt lgkmcnt(0)")
        self.stamp(5)
        a("s_barrier")
        self.stamp_flush(112, 0)
        a("s_barrier")
        a(f"s_cmp_eq_u32 s{sR2}, 7")
        a("s_cbranch_scc1 L_end")
        vm.out[:] = []
        units(UX2, 40)
        if UX2 < 36:
            vm.wait('u%d' % min(39, UX2 + 7)); a("s_barrier")
        a("s_waitcnt vmcnt(0)")
        a("s_barrier")
        a("s_endpgm")

    def reduce_addrs8(self):
        a = self.a
        G.L_DUM = LA_DUM - LA_KVI
        globals()['L_DUM'] = LA_DUM - LA_KVI
        n0 = len(a.items)
        self.reduce_addrs(0); self.reduce_addrs(1)
        from asm2 import Ins
        for i in range(n0, len(a.items)):
            it = a.items[i]
            if isinstance(it, Ins):
                t = it.text.replace(f", {16*KVPITCH}", f", {8*KVPITCH}").replace("v_and_b32 v23, 15, v1", "v_and_b32 v23, 7, v1")
                if t != it.text: a.items[i] = Ins(t)

    def a_compute(self):
        a = self.a; ws = self.ws
        vN, vHH, vJ, vGm = 12, 13, 14, 15
        ACC = 16; OPS = 144; vXL = 240; vWL = [241, 242, 243, 244]
        vX = [4, 5, 6, 7]; vWr = [8, 9, 10, 11]
        self.stamp(0)
        a(f"v_and_b32 v{vJ}, 15, v1")
        a(f"v_lshrrev_b32 v{vGm}, 4, v1")
        a(f"v_and_b32 v{vN}, 31, v1")
        a(f"v_lshrrev_b32 v{vHH}, 5, v1")
        a(f"v_min_u32 v3, 39, v1")
        a(f"v_mul_u32_u24 v3, 40, v3")
        a(f"s_cmp_eq_u32 s{sW}, 1")
        a(f"s_cselect_b32 s{sT0}, s{sG}, s{sD0}")
        a(f"s_mul_i32 s{sT0}, s{sT0}, 1600")
        a(f"s_sub_u32 s{sT1}, s{sW}, 1")
        a(f"s_cmp_lt_u32 s{sT1}, 2")
        a(f"s_cselect_b32 s{sT3}, s{sT0}, {OOB}")
        a("s_waitcnt lgkmcnt(0)")
        a.srd(S_WS, P_WS, WS_BYTES)
        a("v_mov_b32 v2, 0")
        a(f"buffer_load_dword v250, v2, {ws}, 0 offen sc1")
        a.srd(S_R4, P_WPHI, 25600)
        vS = 150
        for i in range(5):
            a(f"buffer_load_dwordx2 v[{vS+2*i}:{vS+1+2*i}], v3, s[{S_R4}:{S_R4+3}], s{sT3} offen offset:{8*i}")
        self.codepf("L_pcA")
        a(f"v_bfe_u32 v2, v1, 1, 3")
        a(f"v_xor_b32 v2, v2, v{vHH}")
        a(f"v_lshlrev_b32 v2, 4, v2")
        a(f"v_lshl_add_u32 v2, v{vN}, 7, v2")
        a(f"s_lshl_b32 s{sT0}, s{sW}, 13")
        a(f"v_add_u32 v{vXL}, s{sT0}, v2")
        t = 170
        a(f"v_bfe_u32 v{t}, v1, 2, 2")
        a(f"v_lshl_add_u32 v{t+1}, v{vHH}, 3, v{t}")
        a(f"v_lshlrev_b32 v{t+1}, 8, v{t+1}")
        a(f"v_and_b32 v{t+2}, 3, v1")
        a(f"v_lshl_add_u32 v{t+1}, v{t+2}, 3, v{t+1}")
        a(f"v_bfe_u32 v{t+2}, v1, 4, 1")
        a(f"v_lshl_add_u32 v{t+1}, v{t+2}, 5, v{t+1}")
        a(f"v_add_u32 v{t+1}, 32768, v{t+1}")
        for f in range(4):
            a(f"v_add_u32 v{t+2}, {f}, v{t}")
            a(f"v_and_b32 v{t+2}, 3, v{t+2}")
            a(f"v_lshl_add_u32 v{vWL[f]}, v{t+2}, 6, v{t+1}")
        for k in range(4):
            a(f"v_xor_b32 v{vX[k]}, {32*k}, v{vXL}")
            a(f"v_mov_b32 v{vWr[k]}, v{vWL[k]}")
        a("s_waitcnt vmcnt(1)")
        self.tag_from(250)
        a(f"s_cmp_ge_u32 s{sT1}, 2")
        a("s_cbranch_scc1 LA_nowp")
        a(f"s_mul_i32 s{sT0}, s{sT1}, 2688")
        for i in range(4): a(f"v_mov_b32 v{64+i}, 0")
        a(f"v_lshl_add_u32 v68, v1, 4, s{sT0}")
        a(f"ds_write_b128 v68, v[64:67] offset:{LA_WPH}")
        a(f"ds_write_b128 v68, v[64:67] offset:{LA_WPH+1024}")
        a(f"v_min_u32 v69, 39, v1")
        a(f"v_lshl_add_u32 v68, v69, 4, s{sT0}")
        a(f"ds_write_b128 v68, v[64:67] offset:{LA_WPH+2048}")
        a(f"v_add_u32 v65, 1, v69")
        a(f"v_cmp_lt_u32 vcc, 19, v69")
        a(f"v_cndmask_b32 v64, v69, v65, vcc")
        a(f"v_lshl_add_u32 v64, v64, 6, s{sT0}")
        for i, (o0, o1) in enumerate([(0, 1), (4, 5), (8, 2), (3, 6), (7, 10)]):
            a(f"ds_write2_b32 v64, v{vS+2*i}, v{vS+1+2*i} offset0:{o0} offset1:{o1}")
        a("s_waitcnt lgkmcnt(0)")
        a.label("LA_nowp")
        for i in range(128): a(f"v_mov_b32 v{ACC+i}, 0")
        a(f"s_mov_b32 s{sSLOT}, 0")
        a(f"s_mov_b32 s{sIT}, 0")
        a("s_barrier")
        self.stamp(1)
        def rd(k):
            b = OPS + 24*(k & 1)
            r = [f"ds_read_b128 v[{b+4*tt}:{b+4*tt+3}], v{vX[k]} offset:{R16 + 4096*tt}" for tt in range(2)]
            for f in range(4):
                for h in range(2):
                    r.append(f"ds_read_b64_tr_b16 v[{b+8+4*f+2*h}:{b+9+4*f+2*h}], v{vWr[f]} offset:{R16 + (16*k + 4*h)*256}")
            return r
        def mm(k):
            b = OPS + 24*(k & 1)
            return [f"v_mfma_f32_32x32x16_bf16 v[{ACC+64*tt+16*f}:{ACC+64*tt+16*f+15}], v[{b+8+4*f}:{b+11+4*f}], v[{b+4*tt}:{b+4*tt+3}], v[{ACC+64*tt+16*f}:{ACC+64*tt+16*f+15}]"
                    for f in range(4) for tt in range(2)] if 'nomm' not in self.opts else ["s_nop 0"]*8
        for x in rd(0): a(x)
        a.label("LA_loop")
        for k in range(2):
            a("s_waitcnt lgkmcnt(0)")
            self.inter(mm(k), rd(k + 1), 2)
        a("s_waitcnt lgkmcnt(0)")
        self.adv(sSLOT, ASLOT, 3*ASLOT)
        upd = [f"v_add_u32 v{vX[0]}, s{sSLOT}, v{vXL}"] + [f"v_xor_b32 v{vX[k]}, {32*k}, v{vX[0]}" for k in range(1, 4)] + \
              [f"v_add_u32 v{vWr[f]}, s{sSLOT}, v{vWL[f]}" for f in range(4)]
        m2 = mm(2)
        self.inter(m2[:5], rd(3), 2)
        self.inter(m2[5:], upd, 3)
        a("s_waitcnt lgkmcnt(0)")
        m3 = mm(3)
        a(m3[0]); a(m3[1])
        a("s_barrier")
        self.inter(m3[2:], rd(0), 2)
        a(f"s_add_u32 s{sIT}, s{sIT}, 1")
        a(f"s_cmp_lt_u32 s{sIT}, 10")
        a("s_cbranch_scc1 LA_loop")
        self.stamp(2)
        PK = 144; WF = 208
        def pk(tt, e): return PK + 32*tt + 16*e
        v1a, v3a, v5a = 4, 5, 6
        a(f"v_bfe_u32 v7, v1, 2, 2")
        a(f"v_and_b32 v8, 3, v1")
        a(f"v_lshlrev_b32 v8, 3, v8")
        a(f"v_bfe_u32 v9, v1, 4, 1")
        a(f"v_lshl_add_u32 v8, v9, 5, v8")
        a(f"v_lshl_add_u32 v{v1a}, v{vHH}, 2, v7")
        a(f"v_lshl_add_u32 v{v1a}, v{v1a}, 6, v8")
        a(f"v_add_u32 v9, 16, v7")
        a(f"v_mov_b32 v2, 20")
        a(f"v_cmp_lt_u32 vcc, 31, v1")
        a(f"v_cndmask_b32 v{v3a}, v9, v2, vcc")
        a(f"v_cndmask_b32 v{v5a}, v2, v7, vcc")
        a(f"v_lshl_add_u32 v{v3a}, v{v3a}, 6, v8")
        a(f"v_lshl_add_u32 v{v5a}, v{v5a}, 6, v8")
        a("s_waitcnt lgkmcnt(0)")
        for qk in range(2):
            for e in range(2):
                w = WF + 16*qk + 8*e; o = LA_WPH + 2688*qk + 1344*e
                if e == 0:
                    a(f"ds_read_b64_tr_b16 v[{w}:{w+1}], v{v1a} offset:{o}")
                    a(f"ds_read_b64_tr_b16 v[{w+2}:{w+3}], v{v1a} offset:{o+512}")
                    a(f"ds_read_b64_tr_b16 v[{w+4}:{w+5}], v{v3a} offset:{o}")
                else:
                    a(f"ds_read_b64_tr_b16 v[{w}:{w+1}], v{v5a} offset:{o}")
                    a(f"ds_read_b64_tr_b16 v[{w+2}:{w+3}], v{v1a} offset:{o+256}")
                    a(f"ds_read_b64_tr_b16 v[{w+4}:{w+5}], v{v1a} offset:{o+768}")
                for z in (6, 7): a(f"v_mov_b32 v{w+z}, 0")
        vIP, vIV, vIV2, vIV3 = 7, 8, 10, 11
        a(f"v_mul_u32_u24 v{vIP}, {IMGP}, v{vN}")
        a(f"s_mul_i32 s{sT0}, s{sW}, {64*IMGP}")
        a(f"s_add_u32 s{sT0}, s{sT0}, {LA_IMG}")
        a(f"v_add_u32 v{vIP}, s{sT0}, v{vIP}")
        a(f"v_lshl_add_u32 v{vIV}, v{vHH}, 3, v{vIP}")
        a(f"v_lshl_add_u32 v{vIV2}, v{vHH}, 4, v{vIP}")
        a(f"v_mul_u32_u24 v2, 48, v{vHH}")
        a(f"v_add_u32 v{vIV3}, v{vIP}, v2")
        a(f"v_mul_u32_u24 v2, 40, v{vHH}")
        a(f"v_add_u32 v{vIP}, v{vIP}, v2")
        for tt in range(2):
            for i in range(30):
                s_ = ACC + 64*tt + 2*i
                a(f"v_cvt_pk_bf16_f32 v{PK+32*tt+i}, v{s_}, v{s_+1}")
            a(f"v_mov_b32 v{PK+32*tt+30}, 0x3f80")
            a(f"v_mov_b32 v{PK+32*tt+31}, 0")
        def DK(tt, e): return 16 + 32*tt + 16*e
        def DQ(tt, e): return 80 + 32*tt + 16*e
        a("s_waitcnt lgkmcnt(0)")
        TE = [(tt, e) for tt in range(2) for e in range(2)]
        for qk, D in ((0, DK), (1, DQ)):
            for st in range(2):
                for tt, e in TE:
                    w = WF + 16*qk + 8*e + 4*st; d = D(tt, e)
                    p = PK + 32*tt + (10 if qk == 0 else 0) + 4*e + 4*st
                    c = "0" if st == 0 else f"v[{d}:{d+15}]"
                    a(f"v_mfma_f32_32x32x16_bf16 v[{d}:{d+15}], v[{w}:{w+3}], v[{p}:{p+3}], {c}")
                    if qk == 1 and e == 1:
                        for U_, va, off in ([(10, vIV, 0), (11, vIV, 16), (12, vIV2, 32)] if st == 0 else [(13, vIV, 56), (14, vIV, 72), (15, vIV3, 40)]):
                            r = PK + 32*tt + 2*U_
                            a(f"ds_write_b64 v{va}, v[{r}:{r+1}] offset:{32*IMGP*tt + 160 + off}")
        a("s_waitcnt lgkmcnt(0)")
        E = [208, 228]; T = [248, 252]
        for tt in range(2):
            self.softmax2([DK(tt, 0), DK(tt, 1)], [pk(tt, 0), pk(tt, 1)], E, T)
            for e in range(2):
                for m in range(5):
                    a(f"ds_write_b64 v{vIP}, v[{pk(tt, e)+2*m}:{pk(tt, e)+2*m+1}] offset:{32*IMGP*tt + 80*e + 8*m}")
        a(f"v_and_b32 v2, 1, v{vGm}")
        a(f"v_lshlrev_b32 v2, 4, v2")
        a(f"v_bfe_u32 v3, v1, 2, 2")
        a(f"v_lshl_add_u32 v2, v3, 2, v2")
        a(f"v_lshl_add_u32 v2, v{vHH}, 1, v2")
        a(f"v_mul_u32_u24 v2, {IMGP}, v2")
        a(f"v_and_b32 v3, 3, v1")
        a(f"v_lshl_add_u32 v2, v3, 3, v2")
        a(f"s_lshr_b32 s{sT0}, s{sW}, 1")
        a(f"s_and_b32 s{sT1}, s{sW}, 1")
        a(f"s_mul_i32 s{sT2}, s{sT0}, 80")
        a(f"s_add_u32 s{sT2}, s{sT2}, {LA_IMG}")
        vKA, vKB, vKS, vKS2 = 6, 4, 5, 9
        a(f"v_add_u32 v{vKA}, s{sT2}, v2")
        a(f"s_mul_i32 s{sT2}, s{sT0}, 48")
        a(f"s_lshl_b32 s{sT3}, s{sT1}, 5")
        a(f"s_add_u32 s{sT2}, s{sT2}, s{sT3}")
        a(f"s_add_u32 s{sT2}, s{sT2}, {LA_IMG + 160}")
        a(f"v_add_u32 v{vKB}, s{sT2}, v2")
        a(f"s_lshl_b32 s{sT2}, s{sG}, 3")
        a(f"s_add_u32 s{sT2}, s{sT2}, s{sC}")
        a(f"s_mul_i32 s{sT2}, s{sT2}, {KVPITCH}")
        a(f"s_mul_i32 s{sT3}, s{sT0}, 1680")
        a(f"s_add_u32 s{sT2}, s{sT2}, s{sT3}")
        a(f"s_add_u32 s{sT2}, s{sT2}, {WS_KVP}")
        a(f"s_lshl_b32 s{sT3}, s{sT1}, 4")
        a(f"v_add_u32 v2, s{sT3}, v{vJ}")
        a(f"v_mul_u32_u24 v3, 21, v{vGm}")
        a(f"v_add_u32 v3, v3, v2")
        a(f"v_lshl_add_u32 v{vKS}, v3, 3, s{sT2}")
        a(f"v_mov_b32 v3, {OOB}")
        a(f"v_cmp_lt_u32 vcc, 20, v2")
        a(f"v_cndmask_b32 v{vKS}, v{vKS}, v3, vcc")
        a(f"v_cmp_lt_u32 vcc, 31, v1")
        a(f"v_cndmask_b32 v{vKS2}, v{vKS}, v3, vcc")
        self.tagpat(sT0, sT1)
        a("s_waitcnt lgkmcnt(0)")
        a("s_barrier")
        self.stamp(3)
        BK = [16, 144]; DKV = 208
        def kvr(k):
            b = BK[k >> 2] + 16*(k & 3)
            r = [f"ds_read_b64_tr_b16 v[{b+2*h}:{b+2*h+1}], v{vKB} offset:{k*32*IMGP + h*IMGP}" for h in range(2)]
            for ft in range(3):
                for h in range(2):
                    r.append(f"ds_read_b64_tr_b16 v[{b+4+4*ft+2*h}:{b+5+4*ft+2*h}], v{vKA} offset:{k*32*IMGP + h*IMGP + 32*ft}")
            return r
        for x in kvr(0): a(x)
        for k in range(8):
            if k < 7:
                for x in kvr(k + 1): a(x)
            a(f"s_waitcnt lgkmcnt({8 if k < 7 else 0})")
            b = BK[k >> 2] + 16*(k & 3)
            for ft in range(3):
                d = DKV + 4*ft
                c = "0" if k == 0 else f"v[{d}:{d+3}]"
                a(f"v_mfma_f32_16x16x32_bf16 v[{d}:{d+3}], v[{b+4+4*ft}:{b+7+4*ft}], v[{b}:{b+3}], {c}")
        a(f"v_mov_b32 v2, 0x10001")
        for i in range(6):
            a(f"v_cvt_pk_bf16_f32 v{DKV+12+i}, v{DKV+2*i}, v{DKV+2*i+1}")
        for i in range(6):
            a(f"v_bfi_b32 v{DKV+12+i}, v2, s{sT0 + (i & 1)}, v{DKV+12+i}")
        for ft in range(3):
            d = DKV + 12 + 2*ft
            a(f"buffer_store_dwordx2 v[{d}:{d+1}], v{vKS2 if ft == 2 else vKS}, {ws}, 0 offen offset:{672*ft} sc1")
        a("s_barrier")
        self.stamp(4)
        def PQ(tt, e): return 144 + 24*tt + 12*e
        E = [16, 36]; T = [56, 60]
        for tt in range(2):
            self.softmax2([DQ(tt, 0), DQ(tt, 1)], [PQ(tt, 0), PQ(tt, 1)], E, T)
            for e in range(2):
                a(f"v_mov_b32 v{PQ(tt, e)+10}, 0")
                a(f"v_mov_b32 v{PQ(tt, e)+11}, 0")
        self.stamp(5)
        SO = S_R1; ro = f"s[{SO}:{SO+3}]"
        a.srd(SO, P_OUT, 2048*1280*4)
        vF, vO, vA0, vO2, vPA = 4, 5, 6, 8, 10
        a(f"s_lshl_b32 s{sT0}, s{sC2}, 2")
        a(f"s_add_u32 s{sT0}, s{sT0}, s{sW}")
        a(f"s_lshl_b32 s{sT2}, s{sT0}, 5")
        a(f"v_lshl_add_u32 v2, v{vHH}, 2, s{sT2}")
        a(f"s_mul_i32 s{sT3}, s{sR2}, 96")
        a(f"v_add_lshl_u32 v3, v{vN}, s{sT3}, 2")
        a(f"v_mul_u32_u24 v{vO}, 5120, v2")
        a(f"v_add_u32 v{vO}, v{vO}, v3")
        a(f"s_cmp_eq_u32 s{sR2}, 6")
        a(f"s_cselect_b32 s{sT3}, {OOB}, 0")
        a(f"v_add_u32 v{vO2}, s{sT3}, v{vO}")
        a(f"s_mul_i32 s{sT4}, s{sT0}, 40960")
        a(f"s_add_u32 s{sT4}, s{sT4}, {WS_O}")
        a(f"v_lshl_add_u32 v{vF}, v1, 4, s{sT4}")
        a(f"v_bfe_u32 v3, v1, 2, 2")
        a(f"v_mul_u32_u24 v{vA0}, 320, v3")
        a(f"v_lshl_add_u32 v{vA0}, v{vHH}, 11, v{vA0}")
        a(f"v_bfe_u32 v3, v1, 4, 1")
        a(f"v_lshl_add_u32 v{vA0}, v3, 5, v{vA0}")
        a(f"v_and_b32 v3, 3, v1")
        a(f"v_lshl_add_u32 v{vA0}, v3, 3, v{vA0}")
        a(f"s_and_b32 s{sT1}, s{sC2}, 1")
        a(f"s_lshl_b32 s{sT1}, s{sT1}, 1")
        a(f"s_lshr_b32 s{sT2}, s{sW}, 1")
        a(f"s_add_u32 s{sT1}, s{sT1}, s{sT2}")
        a(f"s_lshl_b32 s{sT1}, s{sT1}, 6")
        a(f"s_lshr_b32 s{sT2}, s{sC2}, 1")
        self.poll_addr(vPA, WS_FLAG_O, sT2, 15, sT1)
        self.flag_addr(sT5, WS_FLAG_O, sC, sW, 16, sD0)
        a(f"v_mul_u32_u24 v2, 112, v{vN}")
        a(f"v_mul_u32_u24 v3, 48, v{vHH}")
        a(f"v_add_u32 v7, v2, v3")
        a(f"s_lshl_b32 s{sT1}, s{sC}, 3")
        a(f"s_lshl_b32 s{sT2}, s{sW}, 1")
        a(f"s_add_u32 s{sT1}, s{sT1}, s{sT2}")
        a(f"s_mul_i32 s{sT2}, s{sT1}, 40960")
        a(f"s_lshr_b32 s{sT3}, s{sD0}, 1")
        a(f"s_mul_i32 s{sT3}, s{sT3}, 5120")
        a(f"s_add_u32 s{sT2}, s{sT2}, s{sT3}")
        a(f"s_add_u32 s{sT2}, s{sT2}, {WS_O}")
        a(f"v_lshl_add_u32 v9, v1, 4, s{sT2}")
        a(f"s_and_b32 s{sT3}, s{sD0}, 1")
        a(f"s_lshl_b32 s{sT4}, s{sT3}, 11")
        a(f"s_lshl_b32 s{sT3}, s{sT3}, 3")
        a(f"s_add_u32 s{sT3}, s{sT3}, 4096")
        a(f"s_add_u32 s{sT1}, s{sT4}, 40960")
        a(f"s_add_u32 s{sT2}, s{sT3}, 40960")
        a("s_barrier")
        self.stamp(6)
        KF = 80
        for e in range(2):
            for k in range(3):
                r = KF + 12*e + 4*k
                a(f"ds_read_b128 v[{r}:{r+3}], v7 offset:{LA_KVI + 3584*e + 16*k}")
        a("s_waitcnt lgkmcnt(0)")
        for tt in range(2):
            for k in range(3):
                for e in range(2):
                    r = KF + 12*e + 4*k; d = DK(tt, e); p = PQ(tt, e) + 4*k
                    c = "0" if k == 0 else f"v[{d}:{d+15}]"
                    a(f"v_mfma_f32_32x32x16_bf16 v[{d}:{d+15}], v[{r}:{r+3}], v[{p}:{p+3}], {c}")
        for tt in range(2):
            OP = 104 + 12*tt
            for e in range(2):
                a(f"v_add_f32 v{DK(tt, e)+10}, 0x358637bd, v{DK(tt, e)+10}")
            for e in range(2):
                a(f"v_rcp_f32 v{DK(tt, e)+10}, v{DK(tt, e)+10}")
            for i in range(5):
                for e in range(2):
                    d = DK(tt, e)
                    a(f"v_pk_mul_f32 v[{d+2*i}:{d+2*i+1}], v[{d+2*i}:{d+2*i+1}], v[{d+10}:{d+11}] op_sel:[0,0] op_sel_hi:[1,0]")
            for e in range(2):
                for i in range(5):
                    a(f"v_cvt_pk_bf16_f32 v{OP+5*e+i}, v{DK(tt, e)+2*i}, v{DK(tt, e)+2*i+1}")
            s4, s3 = (sT4, sT3) if tt == 0 else (sT1, sT2)
            a(f"buffer_store_dwordx4 v[{OP}:{OP+3}], v9, {ws}, s{s4} offen sc1")
            a(f"buffer_store_dwordx4 v[{OP+4}:{OP+7}], v9, {ws}, s{s4} offen offset:1024 sc1")
            a(f"buffer_store_dwordx2 v[{OP+8}:{OP+9}], v9, {ws}, s{s3} offen sc1")
        AC2 = 16
        for i in range(48): a(f"v_mov_b32 v{AC2+i}, 0")
        a("s_waitcnt vmcnt(0)")
        self.flag_store(sT5, 2)
        self.stamp(7)
        self.stamp_flush(64, 0)
        a("s_barrier")
        a(f"s_cmp_eq_u32 s{sR2}, 7")
        a("s_cbranch_scc1 L_end")
        self.poll_issue(vPA, 13)
        self.poll_wait(vPA, 13)
        self.stamp(0)
        HA = 120
        def wreg(buf, t): return 64 + 12*buf + 4*t
        a(f"s_mul_i32 s{sKS}, s{sROT2}, 5120")
        def ldA(u):
            kk = u % 5
            if kk == 0: a(f"s_add_u32 s{sKSW}, s{sKS}, 4096")
            r = HA + 4*(u % 32)
            so = sKS if kk < 4 else sKSW
            a(f"buffer_load_dwordx4 v[{r}:{r+3}], v{vF}, {ws}, s{so} offen offset:{1024*(kk & 3)} sc1")
            if kk == 4: self.adv(sKS, 5120, 40960)
        vLP = [7, 9, 11]; vT2 = [2, 3, 12]
        for t in range(3):
            a(f"v_xor_b32 v{vLP[t]}, {64*t}, v{vA0}")
        for u in range(32): ldA(u)
        ds = []
        def rd_issue(u, t):
            w = wreg(u % 3, t)
            a(f"v_add_u32 v{vT2[t]}, {(R16 + 4096*u) % LDS_TOTAL}, v{vLP[t]}")
            for h in range(2):
                a(f"ds_read_b64_tr_b16 v[{w+2*h}:{w+2*h+1}], v{vT2[t]} offset:{1024*h}")
            ds.extend([(u, t)]*2)
        def rd_wait(u, t):
            idx = [i for i, l in enumerate(ds) if l == (u, t)]
            n = len(ds) - 1 - idx[-1] if idx else None
            if n is not None: del ds[:len(ds) - min(n, 15)]
            return n
        def ostore(t, r):
            a(f"s_mov_b32 s{sT4}, {(8*(r >> 2) + (r & 3))*5120}")
            a(f"buffer_store_dword v{AC2+16*t+r}, v{vO2 if t == 2 else vO}, {ro}, s{sT4} offen offset:{128*t} {['', 'nt', 'sc1'][OST]}")
        order = [(s_ - SKEW*t, t) for s_ in range(40 + 2*SKEW) for t in range(3) if 0 <= s_ - SKEW*t < 40]
        for t in range(3):
            for u in range(2): rd_issue(u, t)
        nld = 32; vm_done = -1; pend = []
        lastpos = {t: max(i for i, x in enumerate(order) if x[1] == t) for t in range(3)}
        for i, (u, t) in enumerate(order):
            if t == 0 and u + 2 in ((36,) if UX2 == 36 else (UX2, min(39, UX2 + 7) + 1)): a("s_barrier")
            n = rd_wait(u, t)
            w = []
            if u > vm_done:
                w.append(f"vmcnt({min(63, nld - 1 - u)})"); vm_done = u
            if n is not None: w.append(f"lgkmcnt({min(n, 15)})")
            if w: a("s_waitcnt " + " ".join(w))
            h = HA + 4*(u % 32); d = AC2 + 16*t; bb = wreg(u % 3, t)
            a(f"v_mfma_f32_32x32x16_bf16 v[{d}:{d+15}], v[{h}:{h+3}], v[{bb}:{bb+3}], v[{d}:{d+15}]")
            if u + 2 < 40: rd_issue(u + 2, t)
            if t == 2 and u < 8: ldA(32 + u); nld += 1
            for tt in range(3):
                if i == lastpos[tt] + 3: pend += [(tt, r) for r in range(16)]
            for _ in range(4):
                if pend: ostore(*pend.pop(0))
            if self.prof and t == 0 and u % 10 == 9: self.stamp(3 + u // 10)
        done_t = {tt for tt in range(3) if lastpos[tt] + 3 < len(order)}
        rest = pend + [(tt, r) for tt in range(3) if tt not in done_t for r in range(16)]
        self.stamp(1)
        for x in rest: ostore(*x)
        self.bump(0, 0)
        self.finish()

    def bump(self, wg, off):
        a = self.a
        a(f"s_xor_b32 s{sT0}, s2, {wg}")
        a(f"s_or_b32 s{sT0}, s{sT0}, s{sW}")
        a(f"s_cmp_lg_u32 s{sT0}, 0")
        a(f"s_cselect_b32 s{sT1}, {OOB}, {off}")
        a(f"s_mul_i32 s{sTAG}, s{sTAG}, {pow(KMUL, -1, 1 << 32):#x}")
        self.flag_store(sT1, 2)

    def finish(self):
        a = self.a
        if self.prof: a("s_waitcnt vmcnt(0)")
        self.stamp(2)
        self.stamp_flush(230, 1)
        a("s_endpgm")

    def b_entry(self):
        a = self.a
        a.label("L_B")
        if MIX:
            a(f"s_bfe_u32 s{sT0}, s2, 0x20001")
            a(f"s_lshl_b32 s{sT0}, s{sT0}, 2")
            a(f"s_add_u32 s{sC}, s{sT0}, s{sT1}")
            a(f"s_and_b32 s{sT0}, s2, 1")
            a(f"s_lshl_b32 s{sT0}, s{sT0}, 2")
            a(f"s_add_u32 s{sG}, s{sT0}, s{sT2}")
        else:
            a(f"s_bfe_u32 s{sT0}, s2, 0x10001")
            a(f"s_lshl_b32 s{sT0}, s{sT0}, 3")
            a(f"s_add_u32 s{sC}, s{sT0}, s{sR2}")
            a(f"s_and_b32 s{sT0}, s2, 1")
            a(f"s_lshl_b32 s{sT0}, s{sT0}, 2")
            a(f"s_lshr_b32 s{sT1}, s2, 6")
            a(f"s_add_u32 s{sG}, s{sT0}, s{sT1}")
            a(f"s_mov_b32 s{sT2}, s{sR2}")
        self.rot()
        a(f"s_mul_i32 s{sROT2}, s{sR2}, 3")
        a(f"s_and_b32 s{sT0}, s{sC2}, {1 if MIX else 3}")
        a(f"s_mul_i32 s{sT0}, s{sT0}, 5")
        if not MIX: a(f"s_lshr_b32 s{sT0}, s{sT0}, 1")
        a(f"s_add_u32 s{sROT2}, s{sROT2}, s{sT0}")
        a(f"s_cmp_ge_u32 s{sROT2}, 10")
        a(f"s_cselect_b32 s{sT0}, 10, 0")
        a(f"s_sub_u32 s{sROT2}, s{sROT2}, s{sT0}")
        a(f"s_cmp_ge_u32 s{sROT2}, 10")
        a(f"s_cselect_b32 s{sT0}, 10, 0")
        a(f"s_sub_u32 s{sROT2}, s{sROT2}, s{sT0}")
        a(f"s_cmp_lt_u32 s{sW}, 4")
        a("s_cbranch_scc1 L_Bcomp")

    def b_loader(self):
        a = self.a
        vm = self.VM(a)
        SX, SB, SCc = S_R1, S_R2, S_R4
        rx = f"s[{SX}:{SX+3}]"; rb = f"s[{SB}:{SB+3}]"; rc = f"s[{SCc}:{SCc+3}]"
        self.stamp(0)
        vX = [4, 5, 6, 7]; vB = [8, 9, 10, 11, 12]; vC = [16, 17, 18, 19]
        if 'bprof' in self.opts: a("v_mov_b32 v255, 0")
        self.bstamp(32)
        self.swz()
        a(f"s_lshl_b32 s{sT0}, s{sC}, 7")
        a(f"s_lshl_b32 s{sT1}, s{sL}, 5")
        a(f"s_add_u32 s{sT0}, s{sT0}, s{sT1}")
        a(f"s_mul_i32 s{sT0}, s{sT0}, 1280")
        a(f"v_lshrrev_b32 v35, 2, v2")
        a(f"v_lshlrev_b32 v35, 3, v35")
        a(f"v_and_b32 v36, 3, v2")
        a(f"v_add_u32 v35, v35, v36")
        a(f"v_mul_u32_u24 v35, 1280, v35")
        for i in range(4):
            a(f"v_add3_u32 v{vX[i]}, v35, v{32 + (i & 1)}, s{sT0}")
            if i: a(f"v_add_u32 v{vX[i]}, {(16*(i & 1) + 4*(i >> 1))*1280 - i*1024}, v{vX[i]}")
        a(f"s_and_b32 s{sT1}, s{sL}, 1")
        a(f"s_lshl_b32 s{sT1}, s{sT1}, 6")
        a(f"v_xor_b32 v36, s{sT1}, v32")
        a(f"s_lshr_b32 s{sT2}, s{sL}, 1")
        a(f"s_lshl_b32 s{sT2}, s{sT2}, 3")
        a(f"s_mul_i32 s{sT3}, s{sG}, 80")
        a(f"s_add_u32 s{sT2}, s{sT2}, s{sT3}")
        a(f"s_mul_i32 s{sT2}, s{sT2}, 1280")
        a(f"v_add3_u32 v{vB[0]}, v34, v36, s{sT2}")
        for m in range(1, 5):
            a(f"v_add_u32 v{vB[m]}, {16*1280*m}, v{vB[0]}")
        a(f"s_lshl_b32 s{sLX}, s{sL}, 12")
        a(f"s_lshl_b32 s{sLW}, s{sL}, 10")
        a("s_waitcnt lgkmcnt(0)")
        a.srd(SX, P_BX, 2621440)
        a(f"s_cmp_eq_u32 s{sT1}, 64")
        a(f"s_cselect_b32 s{SB}, s{P_BIM}, s{P_BRE}")
        a(f"s_cselect_b32 s{SB+1}, s{P_BIM+1}, s{P_BRE+1}")
        a(f"s_and_b32 s{SB+1}, s{SB+1}, 0xffff")
        a(f"s_mov_b32 s{SB+2}, 819200")
        a(f"s_mov_b32 s{SB+3}, 0x00020000")
        def stage(S):
            sl = R16 + (S % 4) * BSLOT
            nt = 'nt' if S < NTS else ''
            a(f"s_add_u32 m0, s{sLX}, {sl}")
            for i in range(4):
                vm.issue(f"buffer_load_dwordx4 v{vX[i]}, {rx}, s{sROT} offen offset:{1024*i} {nt} lds", f'st{S}')
            for m in range(5):
                a(f"s_add_u32 m0, s{sLW}, {sl + 16384 + 4096*m}")
                vm.issue(f"buffer_load_dwordx4 v{vB[m]}, {rb}, s{sROT} offen {nt} lds", f'st{S}')
            self.adv(sROT, 128, 1280)
        stage(0); stage(1)
        a(f"s_cmp_ge_u32 s{sL}, 2")
        a(f"s_cselect_b32 s{SCc}, s{P_CIM}, s{P_CRE}")
        a(f"s_cselect_b32 s{SCc+1}, s{P_CIM+1}, s{P_CRE+1}")
        a(f"s_and_b32 s{SCc+1}, s{SCc+1}, 0xffff")
        a(f"s_mov_b32 s{SCc+2}, 819200")
        a(f"s_mov_b32 s{SCc+3}, 0x00020000")
        a(f"s_mul_i32 s{sT0}, s{sR2}, 96")
        a(f"s_and_b32 s{sT1}, s{sL}, 1")
        a(f"s_mul_i32 s{sT1}, s{sT1}, 48")
        a(f"s_add_u32 s{sT0}, s{sT0}, s{sT1}")
        a(f"s_mul_i32 s{sT0}, s{sT0}, 1280")
        for i in range(4):
            a(f"v_add3_u32 v{vC[i]}, v34, v{32 + (i & 1)}, s{sT0}")
            if i: a(f"v_add_u32 v{vC[i]}, {i*8*1280 - i*1024}, v{vC[i]}")
        a(f"s_lshl_b32 s{sROT2}, s{sROT2}, 7")
        a(f"s_mul_i32 s{sL2X}, s{sL}, 6144")
        def cst(j):
            base = R16 + CSLOT*(j % 6)
            a(f"s_add_u32 m0, s{sL2X}, {base}")
            a(f"s_add_u32 s{sKS}, s{sROT2}, {32*1280}")
            for i in range(4):
                vm.issue(f"buffer_load_dwordx4 v{vC[i]}, {rc}, s{sROT2} offen offset:{1024*i} lds", f'c{j}')
            a(f"s_add_u32 m0, s{sL2X}, {base + 4096}")
            for i in range(2):
                vm.issue(f"buffer_load_dwordx4 v{vC[i]}, {rc}, s{sKS} offen offset:{1024*i} lds", f'c{j}')
            self.adv(sROT2, 128, 1280)
        for S in range(10):
            vm.wait(f'st{S}')
            a("s_barrier")
            self.bstamp(S)
            if S == 0:
                self.stamp(1)
                stage(2); stage(3)
            elif S + 3 < 10: stage(S + 3)
        a("s_barrier")
        if 'bprof' in self.opts: a.srd(S_WS, P_WS, WS_BYTES)
        self.bstamp(10); self.bflush()
        a("s_barrier")
        a("s_barrier")
        for j in range(CPRE): cst(j)
        a("s_barrier")
        for j in range(CPRE, 5): cst(j)
        a("s_barrier")
        a(f"s_cmp_eq_u32 s{sR2}, 7")
        a("s_cbranch_scc1 L_end")
        cst(5)
        vm.wait('c1'); a("s_barrier")
        vm.wait('c3'); a("s_barrier")
        cst(6); cst(7)
        vm.wait('c5'); a("s_barrier")
        cst(8); cst(9)
        vm.wait('c7'); a("s_barrier")
        vm.wait('c9'); a("s_barrier")
        a("s_endpgm")

    def b_compute(self):
        a = self.a; ws = self.ws
        vN, vHH, vJ, vGm = 12, 13, 14, 15
        U = 16; OPS = 96; SC = 192; TMP = 232
        vX0, vX1, vW0, vW1, vXL, vWLp = 4, 5, 6, 7, 8, 9
        self.stamp(0)
        a(f"v_and_b32 v{vJ}, 15, v1")
        a(f"v_lshrrev_b32 v{vGm}, 4, v1")
        a(f"v_and_b32 v{vN}, 31, v1")
        a(f"v_lshrrev_b32 v{vHH}, 5, v1")
        a(f"v_min_u32 v3, 39, v1")
        a(f"s_sub_u32 s{sT1}, s{sW}, 1")
        a(f"s_mul_i32 s{sT0}, s{sG}, 80")
        a(f"s_mul_i32 s{sT2}, s{sT1}, 40")
        a(f"s_add_u32 s{sT0}, s{sT0}, s{sT2}")
        a(f"s_lshl_b32 s{sT0}, s{sT0}, 1")
        a(f"v_lshlrev_b32 v3, 1, v3")
        a(f"s_cmp_lt_u32 s{sT1}, 2")
        a(f"s_cselect_b32 s{sT3}, s{sT0}, {OOB}")
        a("s_waitcnt lgkmcnt(0)")
        a.srd(S_WS, P_WS, WS_BYTES)
        a("v_mov_b32 v2, 128")
        a(f"buffer_load_dword v250, v2, {ws}, 0 offen sc1")
        vS = 130
        a.srd(S_R1, P_LRE, 1280); a.srd(S_R2, P_LIM, 1280); a.srd(S_R3, P_LDT, 1280)
        a(f"buffer_load_ushort v{vS+1}, v3, s[{S_R1}:{S_R1+3}], s{sT3} offen")
        a(f"buffer_load_ushort v{vS+2}, v3, s[{S_R2}:{S_R2+3}], s{sT3} offen")
        a(f"buffer_load_ushort v{vS+3}, v3, s[{S_R3}:{S_R3+3}], s{sT3} offen")
        self.codepf("L_pcB")
        a(f"v_lshrrev_b32 v2, 1, v{vJ}")
        a(f"v_xor_b32 v2, v2, v{vGm}")
        a(f"v_lshlrev_b32 v2, 4, v2")
        a(f"v_lshl_add_u32 v2, v{vJ}, 7, v2")
        a(f"s_lshl_b32 s{sT0}, s{sW}, 12")
        a(f"v_add_u32 v{vXL}, s{sT0}, v2")
        a(f"v_add_u32 v{vWLp}, 16384, v2")
        a(f"v_mov_b32 v{vX0}, v{vXL}")
        a(f"v_mov_b32 v{vW0}, v{vWLp}")
        a(f"v_xor_b32 v{vX1}, 64, v{vX0}")
        a(f"v_xor_b32 v{vW1}, 64, v{vW0}")
        a("s_waitcnt vmcnt(1)")
        self.tag_from(250)
        a(f"s_cmp_ge_u32 s{sT1}, 2")
        a("s_cbranch_scc1 LB_nossm")
        self.ssm_job(vS, sT1)
        a.label("LB_nossm")
        for i in range(80): a(f"v_mov_b32 v{U+i}, 0")
        a(f"s_mov_b32 s{sSLOT}, 0")
        a(f"s_mov_b32 s{sIT}, 0")
        a("s_barrier")
        self.stamp(1)
        def rd(st, kx, kw):
            b = OPS + 48*st
            return ([f"ds_read_b128 v[{b+4*tr}:{b+4*tr+3}], v{kx} offset:{R16 + 2048*tr}" for tr in range(2)] +
                    [f"ds_read_b128 v[{b+8+4*tc}:{b+8+4*tc+3}], v{kw} offset:{R16 + 2048*tc}" for tc in range(10)])
        def mm(st):
            b = OPS + 48*st
            return [f"v_mfma_f32_16x16x32_bf16 v[{U+8*tc+4*tr}:{U+8*tc+4*tr+3}], v[{b+4*tr}:{b+4*tr+3}], v[{b+8+4*tc}:{b+8+4*tc+3}], v[{U+8*tc+4*tr}:{U+8*tc+4*tr+3}]"
                    for tc in range(10) for tr in range(2)]
        for x in rd(0, vX0, vW0): a(x)
        a("s_waitcnt lgkmcnt(0)")
        a.label("LB_loop")
        self.adv(sSLOT, BSLOT, 4*BSLOT)
        m0 = mm(0)
        self.inter(m0[:13], rd(1, vX1, vW1), 1)
        self.inter(m0[13:], [f"v_add_u32 v{vX0}, s{sSLOT}, v{vXL}", f"v_add_u32 v{vW0}, s{sSLOT}, v{vWLp}",
                             f"v_xor_b32 v{vX1}, 64, v{vX0}", f"v_xor_b32 v{vW1}, 64, v{vW0}"], 1)
        a("s_waitcnt lgkmcnt(0)")
        m1 = mm(1)
        for m in m1[:3]: a(m)
        a("s_barrier")
        self.inter(m1[3:], rd(0, vX0, vW0), 1)
        a(f"s_add_u32 s{sIT}, s{sIT}, 1")
        a(f"s_cmp_lt_u32 s{sIT}, 10")
        a("s_waitcnt lgkmcnt(0)")
        a("s_cbranch_scc1 LB_loop")
        self.stamp(2)
        a(f"v_lshlrev_b32 v2, 5, v{vJ}")
        for tc in range(10):
            a(f"ds_read_b128 v[{SC+4*tc}:{SC+4*tc+3}], v2 offset:{LB_TAB + 512*tc}")
        vSEG = 4
        a(f"v_mul_u32_u24 v{vSEG}, 80, v{vJ}")
        a(f"v_lshl_add_u32 v{vSEG}, v{vGm}, 2, v{vSEG}")
        a(f"s_lshl_b32 s{sT0}, s{sW}, 4")
        a(f"s_add_u32 s{sT0}, s{sT0}, {LB_SEG}")
        a(f"v_add_u32 v{vSEG}, s{sT0}, v{vSEG}")
        vQ, vSA = 5, 6
        a(f"s_lshl_b32 s{sT0}, s{sW}, 6")
        a(f"v_add_u32 v{vQ}, s{sT0}, v1")
        a(f"v_add_u32 v3, 128, v{vN}")
        a(f"v_cmp_lt_u32 vcc, 127, v{vQ}")
        a(f"v_cndmask_b32 v{vQ}, v{vQ}, v3, vcc")
        a(f"v_mul_u32_u24 v{vSA}, 80, v{vQ}")
        a(f"v_add_u32 v{vSA}, {LB_SEG}, v{vSA}")
        a("s_waitcnt lgkmcnt(0)")
        def ureg(tc, tt): return U + 8*tc + tt
        A0, A1 = TMP, TMP + 10
        prev = [ureg(tc, 0) for tc in range(10)]
        for tt in range(1, 8):
            cur = A0 if tt % 2 else A1
            for tc in range(10):
                a(f"v_fma_f32 v{cur+tc}, v{SC+4*tc}, v{prev[tc]}, v{ureg(tc, tt)}")
            for tc in range(10):
                a(f"v_fmac_f32_dpp v{cur+tc}, v{prev[tc]}, v{SC+4*tc+1} {DPP}")
            prev = [cur + tc for tc in range(10)]
        for tc in range(10):
            a(f"ds_write_b32 v{vSEG}, v{prev[tc]} offset:{1280*tc}")
        a("s_waitcnt lgkmcnt(0)")
        a("s_barrier")
        SG, TB, AG, SS = 96, 112, 116, 132
        for m in range(4):
            a(f"ds_read_b128 v[{SG+4*m}:{SG+4*m+3}], v{vSA} offset:{16*m}")
        a(f"v_lshlrev_b32 v2, 5, v{vQ}")
        a(f"ds_read_b128 v[{TB}:{TB+3}], v2 offset:{LB_TAB + 16}")
        a(f"s_mul_i32 s{sT0}, s{sG}, {16*AGP}")
        a(f"s_add_u32 s{sT0}, s{sT0}, {WS_AGG}")
        a(f"v_lshl_add_u32 v7, v{vQ}, 2, s{sT0}")
        a(f"s_mul_i32 s{sT5}, s{sC}, {AGP}")
        a(f"s_cmp_eq_u32 s{sW}, 3")
        a(f"s_cselect_b32 s{sT5}, {OOB}, s{sT5}")
        a(f"v_mov_b32 v2, 0xfff")
        a("s_waitcnt lgkmcnt(0)")
        prev = SG
        for sg in range(1, 16):
            cur = 148 + (sg & 1)
            a(f"v_fma_f32 v{cur}, v{TB}, v{prev}, v{SG+sg}")
            a(f"v_fmac_f32_dpp v{cur}, v{prev}, v{TB+1} {DPP}")
            prev = cur
        a(f"v_bfi_b32 v{prev}, v2, s{sTAG}, v{prev}")
        a(f"buffer_store_dword v{prev}, v7, {ws}, s{sT5} offen sc1")
        a("s_barrier")
        self.stamp(3)
        SO, SXB = S_R1, S_R2
        ro = f"s[{SO}:{SO+3}]"; rxb = f"s[{SXB}:{SXB+3}]"
        a.srd(SO, P_OUT, 2048*1280*4)
        a.srd(SXB, P_BX, 2621440)
        a.srd(S_R3, P_DSK, 1280)
        vF, vO, vA0, vO2, vPA, vXS, vDS = 240, 241, 242, 243, 244, 245, 246
        vHW, vHR, vHS = 247, 248, 249
        a(f"s_lshl_b32 s{sT0}, s{sC2}, 2")
        a(f"s_add_u32 s{sT0}, s{sT0}, s{sW}")
        a(f"s_lshl_b32 s{sT2}, s{sT0}, 5")
        a(f"v_lshl_add_u32 v2, v{vHH}, 2, s{sT2}")
        a(f"s_mul_i32 s{sT3}, s{sR2}, 96")
        a(f"v_add_lshl_u32 v{vDS}, v{vN}, s{sT3}, 1")
        a(f"v_mul_u32_u24 v{vXS}, 1280, v2")
        a(f"v_add_u32 v{vXS}, v{vXS}, v{vDS}")
        a(f"v_mul_u32_u24 v{vO}, 5120, v2")
        a(f"v_lshl_add_u32 v{vO}, v{vDS}, 1, v{vO}")
        a(f"v_add_u32 v{vO}, 2560, v{vO}")
        a(f"s_cmp_eq_u32 s{sR2}, 6")
        a(f"s_cselect_b32 s{sT3}, {OOB}, 0")
        a(f"v_add_u32 v{vO2}, s{sT3}, v{vO}")
        a(f"s_mul_i32 s{sT4}, s{sT0}, 81920")
        a(f"s_add_u32 s{sT4}, s{sT4}, {WS_H}")
        a(f"v_lshl_add_u32 v{vF}, v1, 4, s{sT4}")
        a(f"v_bfe_u32 v{vA0}, v1, 1, 3")
        a(f"v_lshlrev_b32 v{vA0}, 4, v{vA0}")
        a(f"v_lshl_add_u32 v{vA0}, v{vN}, 7, v{vA0}")
        a(f"v_mul_u32_u24 v3, 12288, v{vHH}")
        a(f"v_add_u32 v{vA0}, v{vA0}, v3")
        a(f"s_lshl_b32 s{sT1}, s{sW}, 6")
        self.poll_addr(vPA, WS_FLAG_H, sC2, 7, sT1)
        self.flag_addr(sM2, WS_FLAG_H, sC, sW, 16, sG)
        a(f"s_lshl_b32 s{sT0}, s{sW}, 11")
        a(f"s_add_u32 s{sT0}, s{sT0}, {LB_HT}")
        a(f"v_lshlrev_b32 v{vHW}, 6, v{vJ}")
        a(f"v_lshl_add_u32 v{vHW}, v{vGm}, 4, v{vHW}")
        a(f"v_add_u32 v{vHW}, s{sT0}, v{vHW}")
        a(f"v_bfe_u32 v{vHR}, v1, 2, 2")
        a(f"v_lshl_add_u32 v{vHR}, v{vHH}, 3, v{vHR}")
        a(f"v_lshlrev_b32 v{vHR}, 6, v{vHR}")
        a(f"v_bfe_u32 v2, v1, 4, 1")
        a(f"v_lshl_add_u32 v{vHR}, v2, 5, v{vHR}")
        a(f"v_and_b32 v2, 3, v1")
        a(f"v_lshl_add_u32 v{vHR}, v2, 3, v{vHR}")
        a(f"v_add_u32 v{vHR}, s{sT0}, v{vHR}")
        a(f"s_lshl_b32 s{sT1}, s{sC}, 2")
        a(f"s_add_u32 s{sT1}, s{sT1}, s{sW}")
        a(f"s_mul_i32 s{sT2}, s{sT1}, 81920")
        a(f"s_mul_i32 s{sT3}, s{sG}, 10240")
        a(f"s_add_u32 s{sT2}, s{sT2}, s{sT3}")
        a(f"s_add_u32 s{sT2}, s{sT2}, {WS_H}")
        a(f"v_lshl_add_u32 v{vHS}, v1, 4, s{sT2}")
        a(f"s_mov_b32 s{sT7}, 0")
        a.label("LB_ag")
        for m in range(15):
            a(f"s_sub_u32 s{sT1}, s{sC}, {15 - m}")
            a(f"s_mul_i32 s{sT2}, s{sT1}, {AGP}")
            a(f"s_cmp_lt_i32 s{sT1}, 0")
            a(f"s_cselect_b32 s{sT2}, {OOB}, s{sT2}")
            a(f"buffer_load_dword v{AG+m}, v7, {ws}, s{sT2} offen sc1")
        a("v_mov_b32 v150, 0")
        a(f"s_add_u32 s{sT7}, s{sT7}, 1")
        a("s_waitcnt vmcnt(0)")
        for m in range(15):
            a(f"s_cmp_ge_u32 s{sC}, {15 - m}")
            a(f"s_cselect_b32 s{sT0}, 0xfff, 0")
            a(f"v_xor_b32 v151, s{sTAG}, v{AG+m}")
            a(f"v_and_or_b32 v150, v151, s{sT0}, v150")
        a(f"v_cmp_ne_u32 vcc, 0, v150")
        a(f"s_cmp_ge_u32 s{sT7}, 0x40000")
        a("s_cbranch_scc1 LB_agok")
        a(f"s_cmp_lg_u64 vcc, 0")
        a("s_cbranch_scc1 LB_ag")
        a.label("LB_agok")
        prev = AG
        for m in range(1, 15):
            cur = 148 + (m & 1) if m < 14 else SS
            a(f"v_fma_f32 v{cur}, v{TB+2}, v{prev}, v{AG+m}")
            a(f"v_fmac_f32_dpp v{cur}, v{prev}, v{TB+3} {DPP}")
            prev = cur
        for sg in range(15):
            a(f"v_fma_f32 v{SS+sg+1}, v{TB}, v{SS+sg}, v{SG+sg}")
            a(f"v_fmac_f32_dpp v{SS+sg+1}, v{SS+sg}, v{TB+1} {DPP}")
        for m in range(4):
            a(f"ds_write_b128 v{vSA}, v[{SS+4*m}:{SS+4*m+3}] offset:{16*m}")
        a("s_waitcnt lgkmcnt(0)")
        a("s_barrier")
        self.stamp(4)
        SV = 96
        for tc in range(10):
            a(f"ds_read_b32 v{SV+tc}, v{vSEG} offset:{1280*tc}")
        a("s_waitcnt lgkmcnt(0)")
        prev = [SV + tc for tc in range(10)]
        for tt in range(8):
            for tc in range(10):
                u = ureg(tc, tt)
                a(f"v_fma_f32 v{u}, v{SC+4*tc}, v{prev[tc]}, v{u}")
            for tc in range(10):
                u = ureg(tc, tt)
                a(f"v_fmac_f32_dpp v{u}, v{prev[tc]}, v{SC+4*tc+1} {DPP}")
            prev = [ureg(tc, tt) for tc in range(10)]
        OTm = [108, 116]; HPm = [124, 128]; HFm = [132, 136]
        def hst(tc):
            hf = HFm[tc & 1]
            a(f"s_movk_i32 s{sT0}, {4096*(tc >> 2)}")
            a("s_waitcnt lgkmcnt(0)")
            a(f"buffer_store_dwordx4 v[{hf}:{hf+3}], v{vHS}, {ws}, s{sT0} offen offset:{1024*(tc & 3)} sc1")
        for tc in range(10):
            o = OTm[tc & 1]; hp = HPm[tc & 1]; hf = HFm[tc & 1]
            for tt in range(8):
                a(f"v_mul_f32 v{o+tt}, v{SC+4*tc+2}, v{ureg(tc, tt)}")
            for tt in range(8):
                a(f"v_fmac_f32_dpp v{o+tt}, v{ureg(tc, tt)}, v{SC+4*tc+3} {DPP}")
            if tc: hst(tc - 1)
            for i in range(4):
                a(f"v_cvt_pk_bf16_f32 v{hp+i}, v{o+2*i}, v{o+2*i+1}")
            a(f"ds_write_b128 v{vHW}, v[{hp}:{hp+3}] offset:{1024*(tc & 1)}")
            for h in range(2):
                a(f"ds_read_b64_tr_b16 v[{hf+2*h}:{hf+2*h+1}], v{vHR} offset:{1024*(tc & 1) + 256*h}")
        hst(9)
        self.stamp(5)
        AC2, SK, HR, WB = 16, 64, 112, 176
        for i in range(96): a(f"v_mov_b32 v{AC2+i}, 0")
        a("s_waitcnt vmcnt(0)")
        self.flag_store(sM2, 2)
        self.stamp(6)
        a("s_barrier")
        a(f"s_cmp_eq_u32 s{sR2}, 7")
        a("s_cbranch_scc1 LB_idle")
        for t in range(3):
            a(f"buffer_load_ushort v{8+t}, v{vDS}, s[{S_R3}:{S_R3+3}], 0 offen offset:{64*t}")
        for r in range(16):
            a(f"s_mov_b32 s{sT6}, {(8*(r >> 2) + (r & 3))*1280}")
            for t in range(3):
                a(f"buffer_load_short_d16_hi v{SK+16*t+r}, v{vXS}, {rxb}, s{sT6} offen offset:{64*t}")
        self.poll_issue(vPA, 13)
        a("s_waitcnt vmcnt(1)")
        for t in range(3):
            a(f"v_lshlrev_b32 v{8+t}, 16, v{8+t}")
            for r in range(0, 16, 2):
                x = SK + 16*t + r; y = AC2 + 16*t + r
                a(f"v_mul_f32 v{x}, v{x}, v{8+t}")
                a(f"v_mul_f32 v{x+1}, v{x+1}, v{8+t}")
                a(f"v_cvt_pk_bf16_f32 v{x+1}, v{x}, v{x+1}")
                a(f"v_lshlrev_b32 v{y}, 16, v{x+1}")
                a(f"v_and_b32 v{y+1}, 0xffff0000, v{x+1}")
        self.poll_wait(vPA, 13)
        self.stamp(7)
        self.stamp_flush(64, 0)
        self.stamp(0)
        a(f"s_lshl_b32 s{sKS}, s{sROT2}, 13")
        def ld(slot, kk):
            r = HR + 4*slot
            so = sKS if kk < 4 else sKSW
            return f"buffer_load_dwordx4 v[{r}:{r+3}], v{vF}, {ws}, s{so} offen offset:{1024*(kk & 3)} sc1"
        def adv(step, lim):
            a(f"s_add_u32 s{sKS}, s{sKS}, {step}")
            a(f"s_cmp_eq_u32 s{sKS}, {lim}")
            a(f"s_cselect_b32 s{sKS}, 0, s{sKS}")
        vAD = [4, 5, 6]
        def lds_adv():
            a(f"v_add_u32 v{vAD[0]}, s{sSLOT}, v{vA0}")
            a(f"s_add_u32 s{sSLOT}, s{sSLOT}, {CSLOT}")
            a(f"s_cmp_ge_u32 s{sSLOT}, {LDS_TOTAL}")
            a(f"s_cselect_b32 s{sSLOT}, {R16}, s{sSLOT}")
        for st in range(2):
            a(f"s_add_u32 s{sKSW}, s{sKS}, 4096")
            for kk in range(8): a(ld(8*st + kk, kk))
            adv(8192, 81920)
        a(f"s_mov_b32 s{sIT}, 0")
        a(f"s_mov_b32 s{sSLOT}, {R16}")
        def rdB(rho):
            b = WB + 12*(rho & 3)
            return [f"v_xor_b32 v{vAD[1 + (rho & 1)]}, {16*(rho & 7)}, v{vAD[0]}"] + \
                   [f"ds_read_b128 v[{b+4*t}:{b+4*t+3}], v{vAD[1 + (rho & 1)]} offset:{4096*t}" for t in range(3)]
        a("s_barrier")
        lds_adv()
        for rho in range(2):
            for x in rdB(rho): a(x)
        a.label("LP2B_loop")
        a(f"s_cmp_ge_u32 s{sIT}, 4")
        a(f"s_cselect_b32 s{sKS}, {OOB}, s{sKS}")
        for sidx in range(16):
            kk = sidx & 7
            rho = sidx + 2
            if kk == 0: a(f"s_add_u32 s{sKSW}, s{sKS}, 4096")
            if rho == 16:
                a(f"s_cmp_ge_u32 s{sIT}, 4")
                a("s_cbranch_scc1 LP2B_nb")
                a("s_waitcnt lgkmcnt(0)")
                a("s_barrier")
                a.label("LP2B_nb")
            if rho in (8, 16): lds_adv()
            rr = rdB(rho)
            a(rr[0])
            a(f"s_waitcnt vmcnt(15) lgkmcnt(3)")
            b = WB + 12*(sidx & 3); h = HR + 4*sidx
            for t in range(3):
                d = AC2 + 16*t
                a(f"v_mfma_f32_32x32x16_bf16 v[{d}:{d+15}], v[{h}:{h+3}], v[{b+4*t}:{b+4*t+3}], v[{d}:{d+15}]")
                a(rr[1+t])
            a(ld(sidx, kk))
            if kk == 7: adv(8192, 81920)
        self.itstamp()
        a(f"s_add_u32 s{sIT}, s{sIT}, 1")
        a(f"s_cmp_lt_u32 s{sIT}, 5")
        a("s_cbranch_scc1 LP2B_loop")
        self.stamp(1)
        for r in range(16):
            a(f"s_mov_b32 s{sT4}, {(8*(r >> 2) + (r & 3))*5120}")
            for t in range(3):
                a(f"buffer_store_dword v{AC2+16*t+r}, v{vO2 if t == 2 else vO}, {ro}, s{sT4} offen offset:{128*t} {['', 'nt', 'sc1'][OST]}")
        self.bump(143 if MIX else 8*24 + 7, 128)
        self.finish()
        a.label("LB_idle")
        self.stamp_flush(64, 0)
        a("s_endpgm")

    def ssm_job(self, vS, sH):
        a = self.a
        n0 = len(a.items)
        G.L_TAB = 0
        self.side_jobs(vS)
        from asm2 import Ins
        items = a.items[n0:]
        del a.items[n0:]
        start = next(i for i, it in enumerate(items) if isinstance(it, Ins) and it.text.startswith("v_lshlrev_b32 v64, 16"))
        end = next(i for i, it in enumerate(items) if isinstance(it, Ins) and it.op == 's_branch')
        body = items[start:end]
        a(f"s_mul_i32 s{sT0}, s{sH}, 2560")
        for it in body:
            if it.text.startswith("v_lshlrev_b32 v67, 5, v67"):
                a(f"v_lshl_add_u32 v67, v67, 5, s{sT0}")
            else:
                a.items.append(it)
        a("s_waitcnt lgkmcnt(0)")

    def build(self):
        a = self.a
        a.kernel_begin(KNAME, 256, 512, LDS_TOTAL)
        if 'single' in self.opts: a.launch = [f"; @launch grid=(256,1,1) block=(512,1,1) lds={LDS_TOTAL}"]
        self.prologue()
        self.a_loader()
        a.label("L_Acomp")
        if PRIO: a(f"s_setprio {PRIO}")
        self.a_compute()
        self.b_entry()
        self.b_loader()
        a.label("L_Bcomp")
        if PRIO: a(f"s_setprio {PRIO}")
        self.b_compute()
        a.label("L_end")
        a("s_endpgm")
        a.kernel_end(KNAME, 256)
        return a

if __name__ == "__main__":
    for o in sys.argv[2:]:
        if '=' in o:
            kk, vv = o.split('='); globals()[kk] = int(vv)
    k = K2(prof='prof' in sys.argv, opts=sys.argv[2:])
    a = k.build()
    hdr = "".join(open("concat_heads__linear_kernel_hedgehog__ssm_conv_s5__prompt.s.ref").read().splitlines(True)[:17]) if 'final' in sys.argv else ""
    open(sys.argv[1], "w").write(a.text(hdr))
```

```python
import sys
import gen as G
from gen import *

R16 = 16384
LA_WPH = 0; LA_KVI = 5632; LA_DUM = 12800 + 64; ASLOT = 49152
LA_IMG = LDS_TOTAL - 67600
LB_TAB = 0; BSLOT = 36864; LB_SEG = LDS_TOTAL - 24576; LB_HT = LB_SEG + 12800; CSLOT = 24576
AGP = 640
NTS = 0
OST = 1
UX2 = 36
CPRE = 5
PRIO = 2
SEQ = 1
SKEW = 2
MIX = 1
TICKET = 0
sSLOT = sLW

class K2(K):
    def inter(self, ms, rs, per=None):
        a = self.a
        if per is None: per = -(-len(rs) // max(1, len(ms) - 1)) if rs else 0
        ri = 0
        for m in ms:
            a(m)
            for _ in range(per):
                if ri < len(rs): a(rs[ri]); ri += 1
        while ri < len(rs): a(rs[ri]); ri += 1

    def prologue(self):
        a = self.a
        a("s_cmp_ge_u32 s2, 256")
        a("s_cbranch_scc1 L_end")
        a("s_load_dwordx16 s[4:19], s[0:1], 0")
        a("s_load_dwordx16 s[20:35], s[0:1], 64")
        a("v_lshrrev_b32 v2, 6, v0")
        a("v_and_b32 v1, 63, v0")
        a(f"v_readfirstlane_b32 s{sW}, v2")
        if TICKET:
            a(f"s_getreg_b32 s{sT0}, hwreg(HW_REG_XCC_ID)")
            a(f"s_and_b32 s{sT0}, s{sT0}, 7")
            a("v_mov_b32 v4, 16320")
            a(f"s_cmp_lg_u32 s{sW}, 0")
            a("s_cbranch_scc1 L_tkw")
            a("s_waitcnt lgkmcnt(0)")
            a.srd(S_R1, P_DBG, 256)
            a(f"s_mov_b32 s{sT2}, 0")
            a("s_mov_b64 exec, 1")
            a.label("L_tk")
            a(f"s_lshl_b32 s{sT1}, s{sT0}, 5")
            a(f"v_mov_b32 v2, s{sT1}")
            a("v_mov_b32 v3, 1")
            a(f"buffer_atomic_add v3, v2, s[{S_R1}:{S_R1+3}], 0 offen sc0 sc1")
            a(f"s_add_u32 s{sT2}, s{sT2}, 1")
            a("s_waitcnt vmcnt(0)")
            a(f"v_readfirstlane_b32 s{sT1}, v3")
            a(f"s_cmp_lt_u32 s{sT1}, 32")
            a("s_cbranch_scc1 L_tko")
            a(f"s_add_u32 s{sT0}, s{sT0}, 1")
            a(f"s_and_b32 s{sT0}, s{sT0}, 7")
            a(f"s_cmp_lt_u32 s{sT2}, 8")
            a("s_cbranch_scc1 L_tk")
            a.label("L_tko")
            a(f"s_lshl_b32 s{sT1}, s{sT1}, 3")
            a(f"s_add_u32 s{sT1}, s{sT1}, s{sT0}")
            a(f"s_and_b32 s{sT1}, s{sT1}, 255")
            a(f"v_mov_b32 v3, s{sT1}")
            a("ds_write_b32 v4, v3")
            a("s_mov_b64 exec, -1")
            a("s_waitcnt lgkmcnt(0)")
            a.label("L_tkw")
            a("s_barrier")
            a("ds_read_b32 v3, v4")
            a("s_waitcnt lgkmcnt(0)")
            a("v_readfirstlane_b32 s2, v3")
            a("s_and_b32 s2, s2, 255")
        if MIX:
            a(f"s_and_b32 s{sC2}, s2, 7")
            a(f"s_lshl_b32 s{sC2}, s{sC2}, 1")
            a(f"s_lshr_b32 s{sT0}, s2, 7")
            a(f"s_add_u32 s{sC2}, s{sC2}, s{sT0}")
            a(f"s_bfe_u32 s{sR2}, s2, 0x30004")
            a(f"s_mov_b32 s{sLOG2E}, 0x3fb8aa3b")
            a(f"s_mov_b32 s{sLOG2E+1}, 0x3fb8aa3b")
            a(f"s_sub_u32 s{sL}, s{sW}, 4")
            a(f"s_bfe_u32 s{sT1}, s2, 0x20004")
            a(f"s_lshr_b32 s{sT2}, s2, 6")
            a("s_bitcmp1_b32 s2, 3")
            a("s_cbranch_scc1 L_B")
            a(f"s_and_b32 s{sT0}, s2, 4")
            a(f"s_add_u32 s{sC}, s{sT0}, s{sT1}")
            a(f"s_and_b32 s{sT0}, s2, 3")
            a(f"s_lshl_b32 s{sT0}, s{sT0}, 2")
            a(f"s_add_u32 s{sG}, s{sT0}, s{sT2}")
            a(f"s_xor_b32 s{sD0}, s{sG}, 1")
            a(f"s_and_b32 s{sROT2}, s{sC2}, 1")
            a(f"s_lshl_b32 s{sROT2}, s{sROT2}, 2")
            a(f"s_add_u32 s{sROT2}, s{sROT2}, s{sR2}")
            a(f"s_and_b32 s{sROT2}, s{sROT2}, 7")
        else:
            a(f"s_and_b32 s{sC2}, s2, 3")
            a(f"s_lshl_b32 s{sC2}, s{sC2}, 2")
            a(f"s_lshr_b32 s{sT0}, s2, 6")
            a(f"s_add_u32 s{sC2}, s{sC2}, s{sT0}")
            a(f"s_bfe_u32 s{sR2}, s2, 0x30003")
            a(f"s_mov_b32 s{sLOG2E}, 0x3fb8aa3b")
            a(f"s_mov_b32 s{sLOG2E+1}, 0x3fb8aa3b")
            a(f"s_sub_u32 s{sL}, s{sW}, 4")
            a("s_bitcmp1_b32 s2, 2")
            a("s_cbranch_scc1 L_B")
            a(f"s_bfe_u32 s{sT0}, s2, 0x10001")
            a(f"s_lshl_b32 s{sT0}, s{sT0}, 2")
            a(f"s_bfe_u32 s{sT1}, s2, 0x20003")
            a(f"s_add_u32 s{sC}, s{sT0}, s{sT1}")
            a(f"s_and_b32 s{sT0}, s2, 1")
            a(f"s_lshl_b32 s{sT0}, s{sT0}, 3")
            a(f"s_lshr_b32 s{sT2}, s2, 5")
            a(f"s_add_u32 s{sG}, s{sT0}, s{sT2}")
            a(f"s_xor_b32 s{sD0}, s{sG}, 1")
            a(f"s_and_b32 s{sROT2}, s{sC2}, 3")
            a(f"s_lshl_b32 s{sROT2}, s{sROT2}, 1")
            a(f"s_add_u32 s{sROT2}, s{sROT2}, s{sR2}")
            a(f"s_and_b32 s{sROT2}, s{sROT2}, 7")
        self.rot()
        a(f"s_cmp_lt_u32 s{sW}, 4")
        a("s_cbranch_scc1 L_Acomp")

    def rot(self):
        a = self.a
        a(f"s_mul_i32 s{sT1}, s{sT1}, 3")
        a(f"s_add_u32 s{sROT}, s{sT1}, s{sT2}")
        a(f"s_cmp_ge_u32 s{sROT}, 10")
        a(f"s_cselect_b32 s{sT0}, 10, 0")
        a(f"s_sub_u32 s{sROT}, s{sROT}, s{sT0}")
        a(f"s_lshl_b32 s{sROT}, s{sROT}, 7")

    def codepf(self, lab):
        a = self.a
        a(f"s_getpc_b64 s[{sM}:{sM+1}]")
        a.label(lab)
        a(f"s_lshr_b32 s{sT0}, s2, 3")
        a(f"s_lshl_b32 s{sT0}, s{sT0}, 2")
        a(f"s_add_u32 s{sT0}, s{sT0}, s{sW}")
        a(f"s_mul_i32 s{sT0}, s{sT0}, 384")
        a(f"v_min_u32 v2, 2, v1")
        a(f"v_lshl_add_u32 v2, v2, 7, s{sT0}")
        a(f"s_sub_u32 s{sM}, s{sM}, {lab}-{KNAME}")
        a(f"s_subb_u32 s{sM+1}, s{sM+1}, 0")
        a(f"v_min_u32 v2, L_end-{KNAME}, v2")
        a(f"global_load_dword v255, v2, s[{sM}:{sM+1}]")

    class VM:
        def __init__(s, a): s.a = a; s.out = []
        def issue(s, t, lab): s.a(t); s.out.append(lab)
        def wait(s, lab):
            idx = max(i for i, l in enumerate(s.out) if l == lab)
            n = len(s.out) - 1 - idx
            assert n <= 63
            s.a(f"s_waitcnt vmcnt({n})")
            del s.out[:idx+1]

    def adv(self, reg, step, lim):
        a = self.a
        a(f"s_add_u32 s{reg}, s{reg}, {step}")
        a(f"s_cmp_ge_u32 s{reg}, {lim}")
        a(f"s_cselect_b32 s{reg}, 0, s{reg}")

    def swz(self):
        a = self.a
        a(f"v_lshrrev_b32 v2, 3, v1")
        a(f"v_and_b32 v3, 7, v1")
        a(f"v_lshrrev_b32 v34, 1, v2")
        a(f"v_xor_b32 v32, v3, v34")
        a(f"v_xor_b32 v33, 4, v32")
        a(f"v_lshlrev_b32 v32, 4, v32")
        a(f"v_lshlrev_b32 v33, 4, v33")
        a(f"v_mul_u32_u24 v34, 1280, v2")

    def a_loader(self):
        a = self.a; ws = self.ws
        vm = self.VM(a)
        SX, SQ, SO_ = S_R1, S_R2, S_R4
        rx = f"s[{SX}:{SX+3}]"; rq = f"s[{SQ}:{SQ+3}]"; rw = f"s[{SO_}:{SO_+3}]"
        self.stamp(0)
        vX = [4, 5, 6, 7]; vWq = [8, 9, 10, 11]
        if 'bprof' in self.opts: a("v_mov_b32 v255, 0")
        self.bstamp(32)
        self.swz()
        a(f"s_lshl_b32 s{sT0}, s{sC}, 8")
        a(f"s_lshl_b32 s{sT1}, s{sL}, 6")
        a(f"s_add_u32 s{sT0}, s{sT0}, s{sT1}")
        a(f"s_mul_i32 s{sT0}, s{sT0}, 1280")
        for i in range(4):
            a(f"v_add3_u32 v{vX[i]}, v34, v{32 + (i & 1)}, s{sT0}")
            if i: a(f"v_add_u32 v{vX[i]}, {i*8*1280 - i*1024}, v{vX[i]}")
        a(f"v_lshrrev_b32 v2, 4, v1")
        a(f"v_lshlrev_b32 v3, 2, v2")
        a(f"v_sub_u32 v3, v1, v3")
        a(f"v_and_b32 v3, 15, v3")
        a(f"v_min_u32 v3, 14, v3")
        a(f"v_mul_u32_u24 v12, 52, v3")
        a(f"v_lshrrev_b32 v12, 8, v12")
        a(f"v_mul_u32_u24 v12, 1200, v12")
        a(f"v_lshl_add_u32 v12, v3, 4, v12")
        a(f"v_mul_u32_u24 v2, 3840, v2")
        a(f"s_mul_i32 s{sT0}, s{sG}, 80")
        a(f"s_mul_i32 s{sT1}, s{sD0}, 80")
        a(f"v_mov_b32 v13, s{sT0}")
        a(f"v_mov_b32 v14, s{sT1}")
        a(f"v_cmp_gt_u32 vcc, 5, v3")
        a(f"v_cndmask_b32 v13, v13, v14, vcc")
        a(f"s_mul_i32 s{sT0}, s{sL}, {16*3840}")
        a(f"v_add3_u32 v12, v12, v2, v13")
        a(f"v_add_u32 v{vWq[0]}, s{sT0}, v12")
        for i in range(1, 4):
            a(f"v_add_u32 v{vWq[i]}, {i*(4*3840 - 1024)}, v{vWq[0]}")
        a(f"s_lshl_b32 s{sLX}, s{sL}, 13")
        a(f"s_lshl_b32 s{sLW}, s{sL}, 12")
        a("s_waitcnt lgkmcnt(0)")
        a.srd(SX, P_AX, 2621440)
        a.srd(SQ, P_WQKV, 2457600)
        if 'now' in self.opts: a(f"s_mov_b32 s{SQ+2}, 0")
        if 'nox' in self.opts: a(f"s_mov_b32 s{SX+2}, 0")
        def stage(S):
            sl = R16 + (S % 3) * ASLOT
            nt = 'nt' if S < NTS else ''
            a(f"s_add_u32 m0, s{sLW}, {sl + 32768}")
            a(f"s_mul_i32 s{sKSW}, s{sROT}, 1920")
            for i in range(4):
                vm.issue(f"buffer_load_dwordx4 v{vWq[i]}, {rq}, s{sKSW} offen offset:{1024*i} {nt} lds", f'st{S}')
            a(f"s_add_u32 m0, s{sLX}, {sl}")
            a(f"s_add_u32 s{sKS}, s{sROT}, {32*1280}")
            for i in range(4):
                vm.issue(f"buffer_load_dwordx4 v{vX[i]}, {rx}, s{sROT} offen offset:{1024*i} {nt} lds", f'st{S}')
            a(f"s_add_u32 m0, s{sLX}, {sl + 4096}")
            for i in range(4):
                vm.issue(f"buffer_load_dwordx4 v{vX[i]}, {rx}, s{sKS} offen offset:{1024*i} {nt} lds", f'st{S}')
            self.adv(sROT, 128, 1280)
        stage(0)
        a.srd(S_WS, P_WS, WS_BYTES)
        a("v_mov_b32 v2, 0")
        vm.issue(f"buffer_load_dword v26, v2, {ws}, 0 offen sc1", 'ep')
        G.L_KVI = 0
        sv = (self.__dict__.get('_'),)
        a(f"s_mov_b32 s{sM2}, s{sG}")
        a(f"s_mov_b32 s{sG}, s{sD0}")
        self.reduce_addrs8()
        a(f"s_mov_b32 s{sG}, s{sM2}")
        a.srd(SO_, P_WO, 819200)
        a(f"v_lshrrev_b32 v110, 4, v1")
        a(f"v_bfe_u32 v111, v1, 2, 2")
        a(f"v_xor_b32 v111, v111, v110")
        a(f"v_min_u32 v111, 2, v111")
        a(f"v_lshlrev_b32 v111, 6, v111")
        a(f"v_and_b32 v2, 3, v1")
        a(f"v_lshl_add_u32 v111, v2, 4, v111")
        a(f"s_mul_i32 s{sT0}, s{sR2}, 192")
        a(f"v_add_u32 v111, s{sT0}, v111")
        a(f"s_lshr_b32 s{sT0}, s{sL}, 1")
        a(f"s_mul_i32 s{sT0}, s{sT0}, 10")
        a(f"s_and_b32 s{sT1}, s{sL}, 1")
        a(f"s_lshl_b32 s{sT2}, s{sT1}, 2")
        a(f"v_add_u32 v108, s{sT2}, v110")
        for st in range(4):
            a(f"v_add_u32 v109, {8*(st & 1)}, v108")
            a(f"v_add_u32 v2, 10, v109")
            a(f"v_cmp_lt_u32 vcc, 9, v109")
            a(f"v_cndmask_b32 v109, v109, v2, vcc")
            a(f"s_add_u32 s{sT3}, s{sT0}, {40*(st >> 1)}")
            a(f"v_add_u32 v109, s{sT3}, v109")
            a(f"v_mul_u32_u24 v109, 1280, v109")
            a(f"v_add_u32 v{100+st}, v109, v111")
        a(f"s_mul_i32 s{sT3}, s{sT1}, 40")
        a(f"s_add_u32 s{sT3}, s{sT3}, s{sT0}")
        a(f"s_add_u32 s{sT3}, s{sT3}, 26")
        a(f"v_add_u32 v109, s{sT3}, v110")
        a(f"v_mul_u32_u24 v109, 1280, v109")
        a(f"v_add_u32 v104, v109, v111")
        a(f"s_mul_i32 s{sROT2}, s{sROT2}, {80*1280}")
        a(f"s_lshl_b32 s{sL2X}, s{sL}, 10")
        a(f"v_mov_b32 v60, 0")
        a(f"v_mov_b32 v61, 0")
        a(f"v_mul_u32_u24 v2, 112, v1")
        a(f"ds_write_b64 v2, v[60:61] offset:{LA_KVI+40}")
        a(f"ds_write_b64 v2, v[60:61] offset:{LA_KVI+88}")
        stage(1)
        def units(lo, hi):
            for u in range(lo, hi):
                a(f"s_add_u32 m0, s{sL2X}, {(R16 + 4096*u) % LDS_TOTAL}")
                vm.issue(f"buffer_load_dwordx4 v{100 + u % 5}, {rw}, s{sROT2} offen lds", f'u{u}')
                if u % 5 == 4: self.adv(sROT2, 80*1280, 640*1280)
        for S in range(10):
            vm.wait(f'st{S}')
            if S == 0: a("s_waitcnt lgkmcnt(0)")
            a("s_barrier")
            self.bstamp(S)
            if S == 0: self.stamp(1)
            if S + 2 < 10: stage(S + 2)
            if S == 1: self.tag_from(26)
        a("s_barrier")
        self.bstamp(10); self.bflush()
        self.stamp(2)
        units(0, 19)
        a("s_barrier")
        a("s_barrier")
        self.stamp(3)
        units(19, UX2)
        LA = [112 + 4*i for i in range(8)]
        vLA, vDA, vDA2, vDB, vDB2, vPR = 16, 18, 19, 20, 21, 23
        sP0, sP1, sCR = sT4, sT5, sM + 1
        self.tagpat(sP0, sP1)
        a(f"s_mov_b32 s{sT7}, 0")
        a(f"s_and_b32 s{sCR}, s{sC}, 3")
        a(f"s_mul_i32 s{sCR}, s{sCR}, {2*KVPITCH}")
        def chk(r):
            for i in range(4):
                a(f"v_xor_b32 v{64+i}, s{sP0 if i % 2 == 0 else sP1}, v{r+i}")
            a(f"v_or3_b32 v72, v72, v64, v65")
            a(f"v_or3_b32 v72, v72, v66, v67")
        a.label("LAl_probe")
        a(f"buffer_load_dwordx4 v[76:79], v{vPR}, {ws}, 0 offen sc1")
        a(f"s_add_u32 s{sT7}, s{sT7}, 1")
        a(f"s_cmp_ge_u32 s{sT7}, 0x40000")
        a("s_cbranch_scc1 LAl_sum")
        a("v_mov_b32 v72, 0")
        a("s_waitcnt vmcnt(0)")
        chk(76)
        a(f"v_and_b32 v72, 0x10001, v72")
        a(f"v_cmp_ne_u32 vcc, 0, v72")
        a(f"s_cmp_lg_u64 vcc, 0")
        a("s_cbranch_scc1 LAl_probe")
        self.stamp(4)
        a(f"s_mov_b32 s{sT0}, s{sCR}")
        for cc in range(8):
            a(f"buffer_load_dwordx4 v[{LA[cc]}:{LA[cc]+3}], v{vLA}, {ws}, s{sT0} offen sc1")
            if cc < 7:
                a(f"s_add_u32 s{sT0}, s{sT0}, {KVPITCH}")
                if cc % 2 == 1:
                    a(f"s_cmp_eq_u32 s{sT0}, {8*KVPITCH}")
                    a(f"s_cselect_b32 s{sT0}, 0, s{sT0}")
        AC, TP = 80, 88
        for cc in range(8):
            a(f"s_waitcnt vmcnt({7-cc})")
            chk(LA[cc])
            d = AC if cc == 0 else TP
            for i in range(4):
                a(f"v_lshlrev_b32 v{d+2*i}, 16, v{LA[cc]+i}")
                a(f"v_and_b32 v{d+2*i+1}, 0xffff0000, v{LA[cc]+i}")
            if cc:
                for i in range(4):
                    a(f"v_pk_add_f32 v[{AC+2*i}:{AC+2*i+1}], v[{AC+2*i}:{AC+2*i+1}], v[{TP+2*i}:{TP+2*i+1}]")
        a(f"v_and_b32 v72, v24, v72")
        a(f"v_cmp_ne_u32 vcc, 0, v72")
        a(f"s_cmp_lg_u64 vcc, 0")
        a("s_cbranch_scc1 LAl_probe")
        a.label("LAl_sum")
        for i in range(4):
            a(f"v_cvt_pk_bf16_f32 v{TP+i}, v{AC+2*i}, v{AC+2*i+1}")
        a(f"ds_write_b64 v{vDA}, v[{TP}:{TP+1}] offset:{LA_KVI}")
        a(f"ds_write_b64 v{vDA2}, v[{TP}:{TP+1}] offset:{LA_KVI}")
        a(f"ds_write_b64 v{vDB}, v[{TP+2}:{TP+3}] offset:{LA_KVI}")
        a(f"ds_write_b64 v{vDB2}, v[{TP+2}:{TP+3}] offset:{LA_KVI}")
        a("s_waitcnt lgkmcnt(0)")
        self.stamp(5)
        a("s_barrier")
        self.stamp_flush(112, 0)
        a("s_barrier")
        a(f"s_cmp_eq_u32 s{sR2}, 7")
        a("s_cbranch_scc1 L_end")
        vm.out[:] = []
        units(UX2, 40)
        if UX2 < 36:
            vm.wait('u%d' % min(39, UX2 + 7)); a("s_barrier")
        a("s_waitcnt vmcnt(0)")
        a("s_barrier")
        a("s_endpgm")

    def reduce_addrs8(self):
        a = self.a
        G.L_DUM = LA_DUM - LA_KVI
        globals()['L_DUM'] = LA_DUM - LA_KVI
        n0 = len(a.items)
        self.reduce_addrs(0); self.reduce_addrs(1)
        from asm2 import Ins
        for i in range(n0, len(a.items)):
            it = a.items[i]
            if isinstance(it, Ins):
                t = it.text.replace(f", {16*KVPITCH}", f", {8*KVPITCH}").replace("v_and_b32 v23, 15, v1", "v_and_b32 v23, 7, v1")
                if t != it.text: a.items[i] = Ins(t)

    def a_compute(self):
        a = self.a; ws = self.ws
        vN, vHH, vJ, vGm = 12, 13, 14, 15
        ACC = 16; OPS = 144; vXL = 240; vWL = [241, 242, 243, 244]
        vX = [4, 5, 6, 7]; vWr = [8, 9, 10, 11]
        self.stamp(0)
        a(f"v_and_b32 v{vJ}, 15, v1")
        a(f"v_lshrrev_b32 v{vGm}, 4, v1")
        a(f"v_and_b32 v{vN}, 31, v1")
        a(f"v_lshrrev_b32 v{vHH}, 5, v1")
        a(f"v_min_u32 v3, 39, v1")
        a(f"v_mul_u32_u24 v3, 40, v3")
        a(f"s_cmp_eq_u32 s{sW}, 1")
        a(f"s_cselect_b32 s{sT0}, s{sG}, s{sD0}")
        a(f"s_mul_i32 s{sT0}, s{sT0}, 1600")
        a(f"s_sub_u32 s{sT1}, s{sW}, 1")
        a(f"s_cmp_lt_u32 s{sT1}, 2")
        a(f"s_cselect_b32 s{sT3}, s{sT0}, {OOB}")
        a("s_waitcnt lgkmcnt(0)")
        a.srd(S_WS, P_WS, WS_BYTES)
        a("v_mov_b32 v2, 0")
        a(f"buffer_load_dword v250, v2, {ws}, 0 offen sc1")
        a.srd(S_R4, P_WPHI, 25600)
        vS = 150
        for i in range(5):
            a(f"buffer_load_dwordx2 v[{vS+2*i}:{vS+1+2*i}], v3, s[{S_R4}:{S_R4+3}], s{sT3} offen offset:{8*i}")
        self.codepf("L_pcA")
        a(f"v_bfe_u32 v2, v1, 1, 3")
        a(f"v_xor_b32 v2, v2, v{vHH}")
        a(f"v_lshlrev_b32 v2, 4, v2")
        a(f"v_lshl_add_u32 v2, v{vN}, 7, v2")
        a(f"s_lshl_b32 s{sT0}, s{sW}, 13")
        a(f"v_add_u32 v{vXL}, s{sT0}, v2")
        t = 170
        a(f"v_bfe_u32 v{t}, v1, 2, 2")
        a(f"v_lshl_add_u32 v{t+1}, v{vHH}, 3, v{t}")
        a(f"v_lshlrev_b32 v{t+1}, 8, v{t+1}")
        a(f"v_and_b32 v{t+2}, 3, v1")
        a(f"v_lshl_add_u32 v{t+1}, v{t+2}, 3, v{t+1}")
        a(f"v_bfe_u32 v{t+2}, v1, 4, 1")
        a(f"v_lshl_add_u32 v{t+1}, v{t+2}, 5, v{t+1}")
        a(f"v_add_u32 v{t+1}, 32768, v{t+1}")
        for f in range(4):
            a(f"v_add_u32 v{t+2}, {f}, v{t}")
            a(f"v_and_b32 v{t+2}, 3, v{t+2}")
            a(f"v_lshl_add_u32 v{vWL[f]}, v{t+2}, 6, v{t+1}")
        for k in range(4):
            a(f"v_xor_b32 v{vX[k]}, {32*k}, v{vXL}")
            a(f"v_mov_b32 v{vWr[k]}, v{vWL[k]}")
        a("s_waitcnt vmcnt(1)")
        self.tag_from(250)
        a(f"s_cmp_ge_u32 s{sT1}, 2")
        a("s_cbranch_scc1 LA_nowp")
        a(f"s_mul_i32 s{sT0}, s{sT1}, 2688")
        for i in range(4): a(f"v_mov_b32 v{64+i}, 0")
        a(f"v_lshl_add_u32 v68, v1, 4, s{sT0}")
        a(f"ds_write_b128 v68, v[64:67] offset:{LA_WPH}")
        a(f"ds_write_b128 v68, v[64:67] offset:{LA_WPH+1024}")
        a(f"v_min_u32 v69, 39, v1")
        a(f"v_lshl_add_u32 v68, v69, 4, s{sT0}")
        a(f"ds_write_b128 v68, v[64:67] offset:{LA_WPH+2048}")
        a(f"v_add_u32 v65, 1, v69")
        a(f"v_cmp_lt_u32 vcc, 19, v69")
        a(f"v_cndmask_b32 v64, v69, v65, vcc")
        a(f"v_lshl_add_u32 v64, v64, 6, s{sT0}")
        for i, (o0, o1) in enumerate([(0, 1), (4, 5), (8, 2), (3, 6), (7, 10)]):
            a(f"ds_write2_b32 v64, v{vS+2*i}, v{vS+1+2*i} offset0:{o0} offset1:{o1}")
        a("s_waitcnt lgkmcnt(0)")
        a.label("LA_nowp")
        for i in range(128): a(f"v_mov_b32 v{ACC+i}, 0")
        a(f"s_mov_b32 s{sSLOT}, 0")
        a(f"s_mov_b32 s{sIT}, 0")
        a("s_barrier")
        self.stamp(1)
        def rd(k):
            b = OPS + 24*(k & 1)
            r = [f"ds_read_b128 v[{b+4*tt}:{b+4*tt+3}], v{vX[k]} offset:{R16 + 4096*tt}" for tt in range(2)]
            for f in range(4):
                for h in range(2):
                    r.append(f"ds_read_b64_tr_b16 v[{b+8+4*f+2*h}:{b+9+4*f+2*h}], v{vWr[f]} offset:{R16 + (16*k + 4*h)*256}")
            return r
        def mm(k):
            b = OPS + 24*(k & 1)
            return [f"v_mfma_f32_32x32x16_bf16 v[{ACC+64*tt+16*f}:{ACC+64*tt+16*f+15}], v[{b+8+4*f}:{b+11+4*f}], v[{b+4*tt}:{b+4*tt+3}], v[{ACC+64*tt+16*f}:{ACC+64*tt+16*f+15}]"
                    for f in range(4) for tt in range(2)] if 'nomm' not in self.opts else ["s_nop 0"]*8
        for x in rd(0): a(x)
        a.label("LA_loop")
        for k in range(2):
            a("s_waitcnt lgkmcnt(0)")
            self.inter(mm(k), rd(k + 1), 2)
        a("s_waitcnt lgkmcnt(0)")
        self.adv(sSLOT, ASLOT, 3*ASLOT)
        upd = [f"v_add_u32 v{vX[0]}, s{sSLOT}, v{vXL}"] + [f"v_xor_b32 v{vX[k]}, {32*k}, v{vX[0]}" for k in range(1, 4)] + \
              [f"v_add_u32 v{vWr[f]}, s{sSLOT}, v{vWL[f]}" for f in range(4)]
        m2 = mm(2)
        self.inter(m2[:5], rd(3), 2)
        self.inter(m2[5:], upd, 3)
        a("s_waitcnt lgkmcnt(0)")
        m3 = mm(3)
        a(m3[0]); a(m3[1])
        a("s_barrier")
        self.inter(m3[2:], rd(0), 2)
        a(f"s_add_u32 s{sIT}, s{sIT}, 1")
        a(f"s_cmp_lt_u32 s{sIT}, 10")
        a("s_cbranch_scc1 LA_loop")
        self.stamp(2)
        PK = 144; WF = 208
        def pk(tt, e): return PK + 32*tt + 16*e
        v1a, v3a, v5a = 4, 5, 6
        a(f"v_bfe_u32 v7, v1, 2, 2")
        a(f"v_and_b32 v8, 3, v1")
        a(f"v_lshlrev_b32 v8, 3, v8")
        a(f"v_bfe_u32 v9, v1, 4, 1")
        a(f"v_lshl_add_u32 v8, v9, 5, v8")
        a(f"v_lshl_add_u32 v{v1a}, v{vHH}, 2, v7")
        a(f"v_lshl_add_u32 v{v1a}, v{v1a}, 6, v8")
        a(f"v_add_u32 v9, 16, v7")
        a(f"v_mov_b32 v2, 20")
        a(f"v_cmp_lt_u32 vcc, 31, v1")
        a(f"v_cndmask_b32 v{v3a}, v9, v2, vcc")
        a(f"v_cndmask_b32 v{v5a}, v2, v7, vcc")
        a(f"v_lshl_add_u32 v{v3a}, v{v3a}, 6, v8")
        a(f"v_lshl_add_u32 v{v5a}, v{v5a}, 6, v8")
        a("s_waitcnt lgkmcnt(0)")
        for qk in range(2):
            for e in range(2):
                w = WF + 16*qk + 8*e; o = LA_WPH + 2688*qk + 1344*e
                if e == 0:
                    a(f"ds_read_b64_tr_b16 v[{w}:{w+1}], v{v1a} offset:{o}")
                    a(f"ds_read_b64_tr_b16 v[{w+2}:{w+3}], v{v1a} offset:{o+512}")
                    a(f"ds_read_b64_tr_b16 v[{w+4}:{w+5}], v{v3a} offset:{o}")
                else:
                    a(f"ds_read_b64_tr_b16 v[{w}:{w+1}], v{v5a} offset:{o}")
                    a(f"ds_read_b64_tr_b16 v[{w+2}:{w+3}], v{v1a} offset:{o+256}")
                    a(f"ds_read_b64_tr_b16 v[{w+4}:{w+5}], v{v1a} offset:{o+768}")
                for z in (6, 7): a(f"v_mov_b32 v{w+z}, 0")
        vIP, vIV, vIV2, vIV3 = 7, 8, 10, 11
        a(f"v_mul_u32_u24 v{vIP}, {IMGP}, v{vN}")
        a(f"s_mul_i32 s{sT0}, s{sW}, {64*IMGP}")
        a(f"s_add_u32 s{sT0}, s{sT0}, {LA_IMG}")
        a(f"v_add_u32 v{vIP}, s{sT0}, v{vIP}")
        a(f"v_lshl_add_u32 v{vIV}, v{vHH}, 3, v{vIP}")
        a(f"v_lshl_add_u32 v{vIV2}, v{vHH}, 4, v{vIP}")
        a(f"v_mul_u32_u24 v2, 48, v{vHH}")
        a(f"v_add_u32 v{vIV3}, v{vIP}, v2")
        a(f"v_mul_u32_u24 v2, 40, v{vHH}")
        a(f"v_add_u32 v{vIP}, v{vIP}, v2")
        for tt in range(2):
            for i in range(30):
                s_ = ACC + 64*tt + 2*i
                a(f"v_cvt_pk_bf16_f32 v{PK+32*tt+i}, v{s_}, v{s_+1}")
            a(f"v_mov_b32 v{PK+32*tt+30}, 0x3f80")
            a(f"v_mov_b32 v{PK+32*tt+31}, 0")
        def DK(tt, e): return 16 + 32*tt + 16*e
        def DQ(tt, e): return 80 + 32*tt + 16*e
        a("s_waitcnt lgkmcnt(0)")
        TE = [(tt, e) for tt in range(2) for e in range(2)]
        for qk, D in ((0, DK), (1, DQ)):
            for st in range(2):
                for tt, e in TE:
                    w = WF + 16*qk + 8*e + 4*st; d = D(tt, e)
                    p = PK + 32*tt + (10 if qk == 0 else 0) + 4*e + 4*st
                    c = "0" if st == 0 else f"v[{d}:{d+15}]"
                    a(f"v_mfma_f32_32x32x16_bf16 v[{d}:{d+15}], v[{w}:{w+3}], v[{p}:{p+3}], {c}")
                    if qk == 1 and e == 1:
                        for U_, va, off in ([(10, vIV, 0), (11, vIV, 16), (12, vIV2, 32)] if st == 0 else [(13, vIV, 56), (14, vIV, 72), (15, vIV3, 40)]):
                            r = PK + 32*tt + 2*U_
                            a(f"ds_write_b64 v{va}, v[{r}:{r+1}] offset:{32*IMGP*tt + 160 + off}")
        a("s_waitcnt lgkmcnt(0)")
        E = [208, 228]; T = [248, 252]
        for tt in range(2):
            self.softmax2([DK(tt, 0), DK(tt, 1)], [pk(tt, 0), pk(tt, 1)], E, T)
            for e in range(2):
                for m in range(5):
                    a(f"ds_write_b64 v{vIP}, v[{pk(tt, e)+2*m}:{pk(tt, e)+2*m+1}] offset:{32*IMGP*tt + 80*e + 8*m}")
        a(f"v_and_b32 v2, 1, v{vGm}")
        a(f"v_lshlrev_b32 v2, 4, v2")
        a(f"v_bfe_u32 v3, v1, 2, 2")
        a(f"v_lshl_add_u32 v2, v3, 2, v2")
        a(f"v_lshl_add_u32 v2, v{vHH}, 1, v2")
        a(f"v_mul_u32_u24 v2, {IMGP}, v2")
        a(f"v_and_b32 v3, 3, v1")
        a(f"v_lshl_add_u32 v2, v3, 3, v2")
        a(f"s_lshr_b32 s{sT0}, s{sW}, 1")
        a(f"s_and_b32 s{sT1}, s{sW}, 1")
        a(f"s_mul_i32 s{sT2}, s{sT0}, 80")
        a(f"s_add_u32 s{sT2}, s{sT2}, {LA_IMG}")
        vKA, vKB, vKS, vKS2 = 6, 4, 5, 9
        a(f"v_add_u32 v{vKA}, s{sT2}, v2")
        a(f"s_mul_i32 s{sT2}, s{sT0}, 48")
        a(f"s_lshl_b32 s{sT3}, s{sT1}, 5")
        a(f"s_add_u32 s{sT2}, s{sT2}, s{sT3}")
        a(f"s_add_u32 s{sT2}, s{sT2}, {LA_IMG + 160}")
        a(f"v_add_u32 v{vKB}, s{sT2}, v2")
        a(f"s_lshl_b32 s{sT2}, s{sG}, 3")
        a(f"s_add_u32 s{sT2}, s{sT2}, s{sC}")
        a(f"s_mul_i32 s{sT2}, s{sT2}, {KVPITCH}")
        a(f"s_mul_i32 s{sT3}, s{sT0}, 1680")
        a(f"s_add_u32 s{sT2}, s{sT2}, s{sT3}")
        a(f"s_add_u32 s{sT2}, s{sT2}, {WS_KVP}")
        a(f"s_lshl_b32 s{sT3}, s{sT1}, 4")
        a(f"v_add_u32 v2, s{sT3}, v{vJ}")
        a(f"v_mul_u32_u24 v3, 21, v{vGm}")
        a(f"v_add_u32 v3, v3, v2")
        a(f"v_lshl_add_u32 v{vKS}, v3, 3, s{sT2}")
        a(f"v_mov_b32 v3, {OOB}")
        a(f"v_cmp_lt_u32 vcc, 20, v2")
        a(f"v_cndmask_b32 v{vKS}, v{vKS}, v3, vcc")
        a(f"v_cmp_lt_u32 vcc, 31, v1")
        a(f"v_cndmask_b32 v{vKS2}, v{vKS}, v3, vcc")
        self.tagpat(sT0, sT1)
        a("s_waitcnt lgkmcnt(0)")
        a("s_barrier")
        self.stamp(3)
        BK = [16, 144]; DKV = 208
        def kvr(k):
            b = BK[k >> 2] + 16*(k & 3)
            r = [f"ds_read_b64_tr_b16 v[{b+2*h}:{b+2*h+1}], v{vKB} offset:{k*32*IMGP + h*IMGP}" for h in range(2)]
            for ft in range(3):
                for h in range(2):
                    r.append(f"ds_read_b64_tr_b16 v[{b+4+4*ft+2*h}:{b+5+4*ft+2*h}], v{vKA} offset:{k*32*IMGP + h*IMGP + 32*ft}")
            return r
        for x in kvr(0): a(x)
        for k in range(8):
            if k < 7:
                for x in kvr(k + 1): a(x)
            a(f"s_waitcnt lgkmcnt({8 if k < 7 else 0})")
            b = BK[k >> 2] + 16*(k & 3)
            for ft in range(3):
                d = DKV + 4*ft
                c = "0" if k == 0 else f"v[{d}:{d+3}]"
                a(f"v_mfma_f32_16x16x32_bf16 v[{d}:{d+3}], v[{b+4+4*ft}:{b+7+4*ft}], v[{b}:{b+3}], {c}")
        a(f"v_mov_b32 v2, 0x10001")
        for i in range(6):
            a(f"v_cvt_pk_bf16_f32 v{DKV+12+i}, v{DKV+2*i}, v{DKV+2*i+1}")
        for i in range(6):
            a(f"v_bfi_b32 v{DKV+12+i}, v2, s{sT0 + (i & 1)}, v{DKV+12+i}")
        for ft in range(3):
            d = DKV + 12 + 2*ft
            a(f"buffer_store_dwordx2 v[{d}:{d+1}], v{vKS2 if ft == 2 else vKS}, {ws}, 0 offen offset:{672*ft} sc1")
        a("s_barrier")
        self.stamp(4)
        def PQ(tt, e): return 144 + 24*tt + 12*e
        E = [16, 36]; T = [56, 60]
        for tt in range(2):
            self.softmax2([DQ(tt, 0), DQ(tt, 1)], [PQ(tt, 0), PQ(tt, 1)], E, T)
            for e in range(2):
                a(f"v_mov_b32 v{PQ(tt, e)+10}, 0")
                a(f"v_mov_b32 v{PQ(tt, e)+11}, 0")
        self.stamp(5)
        SO = S_R1; ro = f"s[{SO}:{SO+3}]"
        a.srd(SO, P_OUT, 2048*1280*4)
        vF, vO, vA0, vO2, vPA = 4, 5, 6, 8, 10
        a(f"s_lshl_b32 s{sT0}, s{sC2}, 2")
        a(f"s_add_u32 s{sT0}, s{sT0}, s{sW}")
        a(f"s_lshl_b32 s{sT2}, s{sT0}, 5")
        a(f"v_lshl_add_u32 v2, v{vHH}, 2, s{sT2}")
        a(f"s_mul_i32 s{sT3}, s{sR2}, 96")
        a(f"v_add_lshl_u32 v3, v{vN}, s{sT3}, 2")
        a(f"v_mul_u32_u24 v{vO}, 5120, v2")
        a(f"v_add_u32 v{vO}, v{vO}, v3")
        a(f"s_cmp_eq_u32 s{sR2}, 6")
        a(f"s_cselect_b32 s{sT3}, {OOB}, 0")
        a(f"v_add_u32 v{vO2}, s{sT3}, v{vO}")
        a(f"s_mul_i32 s{sT4}, s{sT0}, 40960")
        a(f"s_add_u32 s{sT4}, s{sT4}, {WS_O}")
        a(f"v_lshl_add_u32 v{vF}, v1, 4, s{sT4}")
        a(f"v_bfe_u32 v3, v1, 2, 2")
        a(f"v_mul_u32_u24 v{vA0}, 320, v3")
        a(f"v_lshl_add_u32 v{vA0}, v{vHH}, 11, v{vA0}")
        a(f"v_bfe_u32 v3, v1, 4, 1")
        a(f"v_lshl_add_u32 v{vA0}, v3, 5, v{vA0}")
        a(f"v_and_b32 v3, 3, v1")
        a(f"v_lshl_add_u32 v{vA0}, v3, 3, v{vA0}")
        a(f"s_and_b32 s{sT1}, s{sC2}, 1")
        a(f"s_lshl_b32 s{sT1}, s{sT1}, 1")
        a(f"s_lshr_b32 s{sT2}, s{sW}, 1")
        a(f"s_add_u32 s{sT1}, s{sT1}, s{sT2}")
        a(f"s_lshl_b32 s{sT1}, s{sT1}, 6")
        a(f"s_lshr_b32 s{sT2}, s{sC2}, 1")
        self.poll_addr(vPA, WS_FLAG_O, sT2, 15, sT1)
        self.flag_addr(sT5, WS_FLAG_O, sC, sW, 16, sD0)
        a(f"v_mul_u32_u24 v2, 112, v{vN}")
        a(f"v_mul_u32_u24 v3, 48, v{vHH}")
        a(f"v_add_u32 v7, v2, v3")
        a(f"s_lshl_b32 s{sT1}, s{sC}, 3")
        a(f"s_lshl_b32 s{sT2}, s{sW}, 1")
        a(f"s_add_u32 s{sT1}, s{sT1}, s{sT2}")
        a(f"s_mul_i32 s{sT2}, s{sT1}, 40960")
        a(f"s_lshr_b32 s{sT3}, s{sD0}, 1")
        a(f"s_mul_i32 s{sT3}, s{sT3}, 5120")
        a(f"s_add_u32 s{sT2}, s{sT2}, s{sT3}")
        a(f"s_add_u32 s{sT2}, s{sT2}, {WS_O}")
        a(f"v_lshl_add_u32 v9, v1, 4, s{sT2}")
        a(f"s_and_b32 s{sT3}, s{sD0}, 1")
        a(f"s_lshl_b32 s{sT4}, s{sT3}, 11")
        a(f"s_lshl_b32 s{sT3}, s{sT3}, 3")
        a(f"s_add_u32 s{sT3}, s{sT3}, 4096")
        a(f"s_add_u32 s{sT1}, s{sT4}, 40960")
        a(f"s_add_u32 s{sT2}, s{sT3}, 40960")
        a("s_barrier")
        self.stamp(6)
        KF = 80
        for e in range(2):
            for k in range(3):
                r = KF + 12*e + 4*k
                a(f"ds_read_b128 v[{r}:{r+3}], v7 offset:{LA_KVI + 3584*e + 16*k}")
        a("s_waitcnt lgkmcnt(0)")
        for tt in range(2):
            for k in range(3):
                for e in range(2):
                    r = KF + 12*e + 4*k; d = DK(tt, e); p = PQ(tt, e) + 4*k
                    c = "0" if k == 0 else f"v[{d}:{d+15}]"
                    a(f"v_mfma_f32_32x32x16_bf16 v[{d}:{d+15}], v[{r}:{r+3}], v[{p}:{p+3}], {c}")
        for tt in range(2):
            OP = 104 + 12*tt
            for e in range(2):
                a(f"v_add_f32 v{DK(tt, e)+10}, 0x358637bd, v{DK(tt, e)+10}")
            for e in range(2):
                a(f"v_rcp_f32 v{DK(tt, e)+10}, v{DK(tt, e)+10}")
            for i in range(5):
                for e in range(2):
                    d = DK(tt, e)
                    a(f"v_pk_mul_f32 v[{d+2*i}:{d+2*i+1}], v[{d+2*i}:{d+2*i+1}], v[{d+10}:{d+11}] op_sel:[0,0] op_sel_hi:[1,0]")
            for e in range(2):
                for i in range(5):
                    a(f"v_cvt_pk_bf16_f32 v{OP+5*e+i}, v{DK(tt, e)+2*i}, v{DK(tt, e)+2*i+1}")
            s4, s3 = (sT4, sT3) if tt == 0 else (sT1, sT2)
            a(f"buffer_store_dwordx4 v[{OP}:{OP+3}], v9, {ws}, s{s4} offen sc1")
            a(f"buffer_store_dwordx4 v[{OP+4}:{OP+7}], v9, {ws}, s{s4} offen offset:1024 sc1")
            a(f"buffer_store_dwordx2 v[{OP+8}:{OP+9}], v9, {ws}, s{s3} offen sc1")
        AC2 = 16
        for i in range(48): a(f"v_mov_b32 v{AC2+i}, 0")
        a("s_waitcnt vmcnt(0)")
        self.flag_store(sT5, 2)
        self.stamp(7)
        self.stamp_flush(64, 0)
        a("s_barrier")
        a(f"s_cmp_eq_u32 s{sR2}, 7")
        a("s_cbranch_scc1 L_end")
        self.poll_issue(vPA, 13)
        self.poll_wait(vPA, 13)
        self.stamp(0)
        def ostore(t, r):
            a(f"s_mov_b32 s{sT4}, {(8*(r >> 2) + (r & 3))*5120}")
            a(f"buffer_store_dword v{AC2+16*t+r}, v{vO2 if t == 2 else vO}, {ro}, s{sT4} offen offset:{128*t} {['', 'nt', 'sc1'][OST]}")
        if SEQ:
            HA = 96; NB = 6; DIST = 5
            a(f"s_mul_i32 s{sKS}, s{sROT2}, 5120")
            for u in range(40):
                kk = u % 5
                if kk == 0: a(f"s_add_u32 s{sKSW}, s{sKS}, 4096")
                so = sKS if kk < 4 else sKSW
                a(f"buffer_load_dwordx4 v[{HA+4*u}:{HA+4*u+3}], v{vF}, {ws}, s{so} offen offset:{1024*(kk & 3)} sc1")
                if kk == 4: self.adv(sKS, 5120, 40960)
            order = [(u, t) for t in range(3) for u in range(40)] if SEQ == 1 else \
                    [(u, t) for u in range(40) for t in range(2)] + [(u, 2) for u in range(40)]
            vLP = [7, 9, 11]; vT2 = [2, 3]
            for t in range(3):
                a(f"v_xor_b32 v{vLP[t]}, {64*t}, v{vA0}")
            ybar = (36,) if UX2 == 36 else (UX2, min(39, UX2 + 7) + 1)
            seen = set()
            def rdi(i):
                u, t = order[i]
                if u in ybar and u not in seen:
                    seen.add(u); a("s_barrier")
                w = 64 + 4*(i % NB)
                a(f"v_add_u32 v{vT2[i & 1]}, {(R16 + 4096*u) % LDS_TOTAL}, v{vLP[t]}")
                for h in range(2):
                    a(f"ds_read_b64_tr_b16 v[{w+2*h}:{w+2*h+1}], v{vT2[i & 1]} offset:{1024*h}")
            for i in range(DIST): rdi(i)
            pend = []; vm_done = -1
            lastpos = {t: max(i for i, x in enumerate(order) if x[1] == t) for t in range(3)}
            for i, (u, t) in enumerate(order):
                nl = 2*min(DIST - 1, len(order) - 1 - i)
                w = f"lgkmcnt({nl})"
                if u > vm_done: w = f"vmcnt({39 - u}) " + w; vm_done = u
                a("s_waitcnt " + w)
                d = AC2 + 16*t; bb = 64 + 4*(i % NB)
                a(f"v_mfma_f32_32x32x16_bf16 v[{d}:{d+15}], v[{HA+4*u}:{HA+4*u+3}], v[{bb}:{bb+3}], v[{d}:{d+15}]")
                if i + DIST < len(order): rdi(i + DIST)
                for tt in range(3):
                    if i == lastpos[tt] + 3: pend += [(tt, r) for r in range(16)]
                if pend: ostore(*pend.pop(0))
                if self.prof and i % 30 == 29: self.stamp(3 + i // 30)
            rest = pend + [(2, r) for r in range(16)]
        else:
            HA = 120
            def wreg(buf, t): return 64 + 12*buf + 4*t
            a(f"s_mul_i32 s{sKS}, s{sROT2}, 5120")
            def ldA(u):
                kk = u % 5
                if kk == 0: a(f"s_add_u32 s{sKSW}, s{sKS}, 4096")
                r = HA + 4*(u % 32)
                so = sKS if kk < 4 else sKSW
                a(f"buffer_load_dwordx4 v[{r}:{r+3}], v{vF}, {ws}, s{so} offen offset:{1024*(kk & 3)} sc1")
                if kk == 4: self.adv(sKS, 5120, 40960)
            vLP = [7, 9, 11]; vT2 = [2, 3, 12]
            for t in range(3):
                a(f"v_xor_b32 v{vLP[t]}, {64*t}, v{vA0}")
            for u in range(32): ldA(u)
            ds = []
            def rd_issue(u, t):
                w = wreg(u % 3, t)
                a(f"v_add_u32 v{vT2[t]}, {(R16 + 4096*u) % LDS_TOTAL}, v{vLP[t]}")
                for h in range(2):
                    a(f"ds_read_b64_tr_b16 v[{w+2*h}:{w+2*h+1}], v{vT2[t]} offset:{1024*h}")
                ds.extend([(u, t)]*2)
            def rd_wait(u, t):
                idx = [i for i, l in enumerate(ds) if l == (u, t)]
                n = len(ds) - 1 - idx[-1] if idx else None
                if n is not None: del ds[:len(ds) - min(n, 15)]
                return n
            def ostore(t, r):
                a(f"s_mov_b32 s{sT4}, {(8*(r >> 2) + (r & 3))*5120}")
                a(f"buffer_store_dword v{AC2+16*t+r}, v{vO2 if t == 2 else vO}, {ro}, s{sT4} offen offset:{128*t} {['', 'nt', 'sc1'][OST]}")
            order = [(s_ - SKEW*t, t) for s_ in range(40 + 2*SKEW) for t in range(3) if 0 <= s_ - SKEW*t < 40]
            for t in range(3):
                for u in range(2): rd_issue(u, t)
            nld = 32; vm_done = -1; pend = []
            lastpos = {t: max(i for i, x in enumerate(order) if x[1] == t) for t in range(3)}
            for i, (u, t) in enumerate(order):
                if t == 0 and u + 2 in ((36,) if UX2 == 36 else (UX2, min(39, UX2 + 7) + 1)): a("s_barrier")
                n = rd_wait(u, t)
                w = []
                if u > vm_done:
                    w.append(f"vmcnt({min(63, nld - 1 - u)})"); vm_done = u
                if n is not None: w.append(f"lgkmcnt({min(n, 15)})")
                if w: a("s_waitcnt " + " ".join(w))
                h = HA + 4*(u % 32); d = AC2 + 16*t; bb = wreg(u % 3, t)
                a(f"v_mfma_f32_32x32x16_bf16 v[{d}:{d+15}], v[{h}:{h+3}], v[{bb}:{bb+3}], v[{d}:{d+15}]")
                if u + 2 < 40: rd_issue(u + 2, t)
                if t == 2 and u < 8: ldA(32 + u); nld += 1
                for tt in range(3):
                    if i == lastpos[tt] + 3: pend += [(tt, r) for r in range(16)]
                for _ in range(4):
                    if pend: ostore(*pend.pop(0))
                if self.prof and t == 0 and u % 10 == 9: self.stamp(3 + u // 10)
            done_t = {tt for tt in range(3) if lastpos[tt] + 3 < len(order)}
            rest = pend + [(tt, r) for tt in range(3) if tt not in done_t for r in range(16)]
        self.stamp(1)
        for x in rest: ostore(*x)
        self.bump(0, 0)
        self.finish()

    def bump(self, wg, off):
        a = self.a
        a(f"s_xor_b32 s{sT0}, s2, {wg}")
        a(f"s_or_b32 s{sT0}, s{sT0}, s{sW}")
        a(f"s_cmp_lg_u32 s{sT0}, 0")
        a(f"s_cselect_b32 s{sT1}, {OOB}, {off}")
        a(f"s_mul_i32 s{sTAG}, s{sTAG}, {pow(KMUL, -1, 1 << 32):#x}")
        self.flag_store(sT1, 2)

    def finish(self):
        a = self.a
        if self.prof: a("s_waitcnt vmcnt(0)")
        self.stamp(2)
        self.stamp_flush(230, 1)
        a("s_endpgm")

    def b_entry(self):
        a = self.a
        a.label("L_B")
        if MIX:
            a(f"s_bfe_u32 s{sT0}, s2, 0x20001")
            a(f"s_lshl_b32 s{sT0}, s{sT0}, 2")
            a(f"s_add_u32 s{sC}, s{sT0}, s{sT1}")
            a(f"s_and_b32 s{sT0}, s2, 1")
            a(f"s_lshl_b32 s{sT0}, s{sT0}, 2")
            a(f"s_add_u32 s{sG}, s{sT0}, s{sT2}")
        else:
            a(f"s_bfe_u32 s{sT0}, s2, 0x10001")
            a(f"s_lshl_b32 s{sT0}, s{sT0}, 3")
            a(f"s_add_u32 s{sC}, s{sT0}, s{sR2}")
            a(f"s_and_b32 s{sT0}, s2, 1")
            a(f"s_lshl_b32 s{sT0}, s{sT0}, 2")
            a(f"s_lshr_b32 s{sT1}, s2, 6")
            a(f"s_add_u32 s{sG}, s{sT0}, s{sT1}")
            a(f"s_mov_b32 s{sT2}, s{sR2}")
        self.rot()
        a(f"s_mul_i32 s{sROT2}, s{sR2}, 3")
        a(f"s_and_b32 s{sT0}, s{sC2}, {1 if MIX else 3}")
        a(f"s_mul_i32 s{sT0}, s{sT0}, 5")
        if not MIX: a(f"s_lshr_b32 s{sT0}, s{sT0}, 1")
        a(f"s_add_u32 s{sROT2}, s{sROT2}, s{sT0}")
        a(f"s_cmp_ge_u32 s{sROT2}, 10")
        a(f"s_cselect_b32 s{sT0}, 10, 0")
        a(f"s_sub_u32 s{sROT2}, s{sROT2}, s{sT0}")
        a(f"s_cmp_ge_u32 s{sROT2}, 10")
        a(f"s_cselect_b32 s{sT0}, 10, 0")
        a(f"s_sub_u32 s{sROT2}, s{sROT2}, s{sT0}")
        a(f"s_cmp_lt_u32 s{sW}, 4")
        a("s_cbranch_scc1 L_Bcomp")

    def b_loader(self):
        a = self.a
        vm = self.VM(a)
        SX, SB, SCc = S_R1, S_R2, S_R4
        rx = f"s[{SX}:{SX+3}]"; rb = f"s[{SB}:{SB+3}]"; rc = f"s[{SCc}:{SCc+3}]"
        self.stamp(0)
        vX = [4, 5, 6, 7]; vB = [8, 9, 10, 11, 12]; vC = [16, 17, 18, 19]
        if 'bprof' in self.opts: a("v_mov_b32 v255, 0")
        self.bstamp(32)
        self.swz()
        a(f"s_lshl_b32 s{sT0}, s{sC}, 7")
        a(f"s_lshl_b32 s{sT1}, s{sL}, 5")
        a(f"s_add_u32 s{sT0}, s{sT0}, s{sT1}")
        a(f"s_mul_i32 s{sT0}, s{sT0}, 1280")
        a(f"v_lshrrev_b32 v35, 2, v2")
        a(f"v_lshlrev_b32 v35, 3, v35")
        a(f"v_and_b32 v36, 3, v2")
        a(f"v_add_u32 v35, v35, v36")
        a(f"v_mul_u32_u24 v35, 1280, v35")
        for i in range(4):
            a(f"v_add3_u32 v{vX[i]}, v35, v{32 + (i & 1)}, s{sT0}")
            if i: a(f"v_add_u32 v{vX[i]}, {(16*(i & 1) + 4*(i >> 1))*1280 - i*1024}, v{vX[i]}")
        a(f"s_and_b32 s{sT1}, s{sL}, 1")
        a(f"s_lshl_b32 s{sT1}, s{sT1}, 6")
        a(f"v_xor_b32 v36, s{sT1}, v32")
        a(f"s_lshr_b32 s{sT2}, s{sL}, 1")
        a(f"s_lshl_b32 s{sT2}, s{sT2}, 3")
        a(f"s_mul_i32 s{sT3}, s{sG}, 80")
        a(f"s_add_u32 s{sT2}, s{sT2}, s{sT3}")
        a(f"s_mul_i32 s{sT2}, s{sT2}, 1280")
        a(f"v_add3_u32 v{vB[0]}, v34, v36, s{sT2}")
        for m in range(1, 5):
            a(f"v_add_u32 v{vB[m]}, {16*1280*m}, v{vB[0]}")
        a(f"s_lshl_b32 s{sLX}, s{sL}, 12")
        a(f"s_lshl_b32 s{sLW}, s{sL}, 10")
        a("s_waitcnt lgkmcnt(0)")
        a.srd(SX, P_BX, 2621440)
        a(f"s_cmp_eq_u32 s{sT1}, 64")
        a(f"s_cselect_b32 s{SB}, s{P_BIM}, s{P_BRE}")
        a(f"s_cselect_b32 s{SB+1}, s{P_BIM+1}, s{P_BRE+1}")
        a(f"s_and_b32 s{SB+1}, s{SB+1}, 0xffff")
        a(f"s_mov_b32 s{SB+2}, 819200")
        a(f"s_mov_b32 s{SB+3}, 0x00020000")
        def stage(S):
            sl = R16 + (S % 4) * BSLOT
            nt = 'nt' if S < NTS else ''
            a(f"s_add_u32 m0, s{sLX}, {sl}")
            for i in range(4):
                vm.issue(f"buffer_load_dwordx4 v{vX[i]}, {rx}, s{sROT} offen offset:{1024*i} {nt} lds", f'st{S}')
            for m in range(5):
                a(f"s_add_u32 m0, s{sLW}, {sl + 16384 + 4096*m}")
                vm.issue(f"buffer_load_dwordx4 v{vB[m]}, {rb}, s{sROT} offen {nt} lds", f'st{S}')
            self.adv(sROT, 128, 1280)
        stage(0); stage(1)
        a(f"s_cmp_ge_u32 s{sL}, 2")
        a(f"s_cselect_b32 s{SCc}, s{P_CIM}, s{P_CRE}")
        a(f"s_cselect_b32 s{SCc+1}, s{P_CIM+1}, s{P_CRE+1}")
        a(f"s_and_b32 s{SCc+1}, s{SCc+1}, 0xffff")
        a(f"s_mov_b32 s{SCc+2}, 819200")
        a(f"s_mov_b32 s{SCc+3}, 0x00020000")
        a(f"s_mul_i32 s{sT0}, s{sR2}, 96")
        a(f"s_and_b32 s{sT1}, s{sL}, 1")
        a(f"s_mul_i32 s{sT1}, s{sT1}, 48")
        a(f"s_add_u32 s{sT0}, s{sT0}, s{sT1}")
        a(f"s_mul_i32 s{sT0}, s{sT0}, 1280")
        for i in range(4):
            a(f"v_add3_u32 v{vC[i]}, v34, v{32 + (i & 1)}, s{sT0}")
            if i: a(f"v_add_u32 v{vC[i]}, {i*8*1280 - i*1024}, v{vC[i]}")
        a(f"s_lshl_b32 s{sROT2}, s{sROT2}, 7")
        a(f"s_mul_i32 s{sL2X}, s{sL}, 6144")
        def cst(j):
            base = R16 + CSLOT*(j % 6)
            a(f"s_add_u32 m0, s{sL2X}, {base}")
            a(f"s_add_u32 s{sKS}, s{sROT2}, {32*1280}")
            for i in range(4):
                vm.issue(f"buffer_load_dwordx4 v{vC[i]}, {rc}, s{sROT2} offen offset:{1024*i} lds", f'c{j}')
            a(f"s_add_u32 m0, s{sL2X}, {base + 4096}")
            for i in range(2):
                vm.issue(f"buffer_load_dwordx4 v{vC[i]}, {rc}, s{sKS} offen offset:{1024*i} lds", f'c{j}')
            self.adv(sROT2, 128, 1280)
        for S in range(10):
            vm.wait(f'st{S}')
            a("s_barrier")
            self.bstamp(S)
            if S == 0:
                self.stamp(1)
                stage(2); stage(3)
            elif S + 3 < 10: stage(S + 3)
        a("s_barrier")
        if 'bprof' in self.opts: a.srd(S_WS, P_WS, WS_BYTES)
        self.bstamp(10); self.bflush()
        a("s_barrier")
        a("s_barrier")
        for j in range(CPRE): cst(j)
        a("s_barrier")
        for j in range(CPRE, 5): cst(j)
        a("s_barrier")
        a(f"s_cmp_eq_u32 s{sR2}, 7")
        a("s_cbranch_scc1 L_end")
        cst(5)
        vm.wait('c1'); a("s_barrier")
        vm.wait('c3'); a("s_barrier")
        cst(6); cst(7)
        vm.wait('c5'); a("s_barrier")
        cst(8); cst(9)
        vm.wait('c7'); a("s_barrier")
        vm.wait('c9'); a("s_barrier")
        a("s_endpgm")

    def b_compute(self):
        a = self.a; ws = self.ws
        vN, vHH, vJ, vGm = 12, 13, 14, 15
        U = 16; OPS = 96; SC = 192; TMP = 232
        vX0, vX1, vW0, vW1, vXL, vWLp = 4, 5, 6, 7, 8, 9
        self.stamp(0)
        a(f"v_and_b32 v{vJ}, 15, v1")
        a(f"v_lshrrev_b32 v{vGm}, 4, v1")
        a(f"v_and_b32 v{vN}, 31, v1")
        a(f"v_lshrrev_b32 v{vHH}, 5, v1")
        a(f"v_min_u32 v3, 39, v1")
        a(f"s_sub_u32 s{sT1}, s{sW}, 1")
        a(f"s_mul_i32 s{sT0}, s{sG}, 80")
        a(f"s_mul_i32 s{sT2}, s{sT1}, 40")
        a(f"s_add_u32 s{sT0}, s{sT0}, s{sT2}")
        a(f"s_lshl_b32 s{sT0}, s{sT0}, 1")
        a(f"v_lshlrev_b32 v3, 1, v3")
        a(f"s_cmp_lt_u32 s{sT1}, 2")
        a(f"s_cselect_b32 s{sT3}, s{sT0}, {OOB}")
        a("s_waitcnt lgkmcnt(0)")
        a.srd(S_WS, P_WS, WS_BYTES)
        a("v_mov_b32 v2, 128")
        a(f"buffer_load_dword v250, v2, {ws}, 0 offen sc1")
        vS = 130
        a.srd(S_R1, P_LRE, 1280); a.srd(S_R2, P_LIM, 1280); a.srd(S_R3, P_LDT, 1280)
        a(f"buffer_load_ushort v{vS+1}, v3, s[{S_R1}:{S_R1+3}], s{sT3} offen")
        a(f"buffer_load_ushort v{vS+2}, v3, s[{S_R2}:{S_R2+3}], s{sT3} offen")
        a(f"buffer_load_ushort v{vS+3}, v3, s[{S_R3}:{S_R3+3}], s{sT3} offen")
        self.codepf("L_pcB")
        a(f"v_lshrrev_b32 v2, 1, v{vJ}")
        a(f"v_xor_b32 v2, v2, v{vGm}")
        a(f"v_lshlrev_b32 v2, 4, v2")
        a(f"v_lshl_add_u32 v2, v{vJ}, 7, v2")
        a(f"s_lshl_b32 s{sT0}, s{sW}, 12")
        a(f"v_add_u32 v{vXL}, s{sT0}, v2")
        a(f"v_add_u32 v{vWLp}, 16384, v2")
        a(f"v_mov_b32 v{vX0}, v{vXL}")
        a(f"v_mov_b32 v{vW0}, v{vWLp}")
        a(f"v_xor_b32 v{vX1}, 64, v{vX0}")
        a(f"v_xor_b32 v{vW1}, 64, v{vW0}")
        a("s_waitcnt vmcnt(1)")
        self.tag_from(250)
        a(f"s_cmp_ge_u32 s{sT1}, 2")
        a("s_cbranch_scc1 LB_nossm")
        self.ssm_job(vS, sT1)
        a.label("LB_nossm")
        for i in range(80): a(f"v_mov_b32 v{U+i}, 0")
        a(f"s_mov_b32 s{sSLOT}, 0")
        a(f"s_mov_b32 s{sIT}, 0")
        a("s_barrier")
        self.stamp(1)
        def rd(st, kx, kw):
            b = OPS + 48*st
            return ([f"ds_read_b128 v[{b+4*tr}:{b+4*tr+3}], v{kx} offset:{R16 + 2048*tr}" for tr in range(2)] +
                    [f"ds_read_b128 v[{b+8+4*tc}:{b+8+4*tc+3}], v{kw} offset:{R16 + 2048*tc}" for tc in range(10)])
        def mm(st):
            b = OPS + 48*st
            return [f"v_mfma_f32_16x16x32_bf16 v[{U+8*tc+4*tr}:{U+8*tc+4*tr+3}], v[{b+4*tr}:{b+4*tr+3}], v[{b+8+4*tc}:{b+8+4*tc+3}], v[{U+8*tc+4*tr}:{U+8*tc+4*tr+3}]"
                    for tc in range(10) for tr in range(2)]
        for x in rd(0, vX0, vW0): a(x)
        a("s_waitcnt lgkmcnt(0)")
        a.label("LB_loop")
        self.adv(sSLOT, BSLOT, 4*BSLOT)
        m0 = mm(0)
        self.inter(m0[:13], rd(1, vX1, vW1), 1)
        self.inter(m0[13:], [f"v_add_u32 v{vX0}, s{sSLOT}, v{vXL}", f"v_add_u32 v{vW0}, s{sSLOT}, v{vWLp}",
                             f"v_xor_b32 v{vX1}, 64, v{vX0}", f"v_xor_b32 v{vW1}, 64, v{vW0}"], 1)
        a("s_waitcnt lgkmcnt(0)")
        m1 = mm(1)
        for m in m1[:3]: a(m)
        a("s_barrier")
        self.inter(m1[3:], rd(0, vX0, vW0), 1)
        a(f"s_add_u32 s{sIT}, s{sIT}, 1")
        a(f"s_cmp_lt_u32 s{sIT}, 10")
        a("s_waitcnt lgkmcnt(0)")
        a("s_cbranch_scc1 LB_loop")
        self.stamp(2)
        a(f"v_lshlrev_b32 v2, 5, v{vJ}")
        for tc in range(10):
            a(f"ds_read_b128 v[{SC+4*tc}:{SC+4*tc+3}], v2 offset:{LB_TAB + 512*tc}")
        vSEG = 4
        a(f"v_mul_u32_u24 v{vSEG}, 80, v{vJ}")
        a(f"v_lshl_add_u32 v{vSEG}, v{vGm}, 2, v{vSEG}")
        a(f"s_lshl_b32 s{sT0}, s{sW}, 4")
        a(f"s_add_u32 s{sT0}, s{sT0}, {LB_SEG}")
        a(f"v_add_u32 v{vSEG}, s{sT0}, v{vSEG}")
        vQ, vSA = 5, 6
        a(f"s_lshl_b32 s{sT0}, s{sW}, 6")
        a(f"v_add_u32 v{vQ}, s{sT0}, v1")
        a(f"v_add_u32 v3, 128, v{vN}")
        a(f"v_cmp_lt_u32 vcc, 127, v{vQ}")
        a(f"v_cndmask_b32 v{vQ}, v{vQ}, v3, vcc")
        a(f"v_mul_u32_u24 v{vSA}, 80, v{vQ}")
        a(f"v_add_u32 v{vSA}, {LB_SEG}, v{vSA}")
        a("s_waitcnt lgkmcnt(0)")
        def ureg(tc, tt): return U + 8*tc + tt
        A0, A1 = TMP, TMP + 10
        prev = [ureg(tc, 0) for tc in range(10)]
        for tt in range(1, 8):
            cur = A0 if tt % 2 else A1
            for tc in range(10):
                a(f"v_fma_f32 v{cur+tc}, v{SC+4*tc}, v{prev[tc]}, v{ureg(tc, tt)}")
            for tc in range(10):
                a(f"v_fmac_f32_dpp v{cur+tc}, v{prev[tc]}, v{SC+4*tc+1} {DPP}")
            prev = [cur + tc for tc in range(10)]
        for tc in range(10):
            a(f"ds_write_b32 v{vSEG}, v{prev[tc]} offset:{1280*tc}")
        a("s_waitcnt lgkmcnt(0)")
        a("s_barrier")
        SG, TB, AG, SS = 96, 112, 116, 132
        for m in range(4):
            a(f"ds_read_b128 v[{SG+4*m}:{SG+4*m+3}], v{vSA} offset:{16*m}")
        a(f"v_lshlrev_b32 v2, 5, v{vQ}")
        a(f"ds_read_b128 v[{TB}:{TB+3}], v2 offset:{LB_TAB + 16}")
        a(f"s_mul_i32 s{sT0}, s{sG}, {16*AGP}")
        a(f"s_add_u32 s{sT0}, s{sT0}, {WS_AGG}")
        a(f"v_lshl_add_u32 v7, v{vQ}, 2, s{sT0}")
        a(f"s_mul_i32 s{sT5}, s{sC}, {AGP}")
        a(f"s_cmp_eq_u32 s{sW}, 3")
        a(f"s_cselect_b32 s{sT5}, {OOB}, s{sT5}")
        a(f"v_mov_b32 v2, 0xfff")
        a("s_waitcnt lgkmcnt(0)")
        prev = SG
        for sg in range(1, 16):
            cur = 148 + (sg & 1)
            a(f"v_fma_f32 v{cur}, v{TB}, v{prev}, v{SG+sg}")
            a(f"v_fmac_f32_dpp v{cur}, v{prev}, v{TB+1} {DPP}")
            prev = cur
        a(f"v_bfi_b32 v{prev}, v2, s{sTAG}, v{prev}")
        a(f"buffer_store_dword v{prev}, v7, {ws}, s{sT5} offen sc1")
        a("s_barrier")
        self.stamp(3)
        SO, SXB = S_R1, S_R2
        ro = f"s[{SO}:{SO+3}]"; rxb = f"s[{SXB}:{SXB+3}]"
        a.srd(SO, P_OUT, 2048*1280*4)
        a.srd(SXB, P_BX, 2621440)
        a.srd(S_R3, P_DSK, 1280)
        vF, vO, vA0, vO2, vPA, vXS, vDS = 240, 241, 242, 243, 244, 245, 246
        vHW, vHR, vHS = 247, 248, 249
        a(f"s_lshl_b32 s{sT0}, s{sC2}, 2")
        a(f"s_add_u32 s{sT0}, s{sT0}, s{sW}")
        a(f"s_lshl_b32 s{sT2}, s{sT0}, 5")
        a(f"v_lshl_add_u32 v2, v{vHH}, 2, s{sT2}")
        a(f"s_mul_i32 s{sT3}, s{sR2}, 96")
        a(f"v_add_lshl_u32 v{vDS}, v{vN}, s{sT3}, 1")
        a(f"v_mul_u32_u24 v{vXS}, 1280, v2")
        a(f"v_add_u32 v{vXS}, v{vXS}, v{vDS}")
        a(f"v_mul_u32_u24 v{vO}, 5120, v2")
        a(f"v_lshl_add_u32 v{vO}, v{vDS}, 1, v{vO}")
        a(f"v_add_u32 v{vO}, 2560, v{vO}")
        a(f"s_cmp_eq_u32 s{sR2}, 6")
        a(f"s_cselect_b32 s{sT3}, {OOB}, 0")
        a(f"v_add_u32 v{vO2}, s{sT3}, v{vO}")
        a(f"s_mul_i32 s{sT4}, s{sT0}, 81920")
        a(f"s_add_u32 s{sT4}, s{sT4}, {WS_H}")
        a(f"v_lshl_add_u32 v{vF}, v1, 4, s{sT4}")
        a(f"v_bfe_u32 v{vA0}, v1, 1, 3")
        a(f"v_lshlrev_b32 v{vA0}, 4, v{vA0}")
        a(f"v_lshl_add_u32 v{vA0}, v{vN}, 7, v{vA0}")
        a(f"v_mul_u32_u24 v3, 12288, v{vHH}")
        a(f"v_add_u32 v{vA0}, v{vA0}, v3")
        a(f"s_lshl_b32 s{sT1}, s{sW}, 6")
        self.poll_addr(vPA, WS_FLAG_H, sC2, 7, sT1)
        self.flag_addr(sM2, WS_FLAG_H, sC, sW, 16, sG)
        a(f"s_lshl_b32 s{sT0}, s{sW}, 11")
        a(f"s_add_u32 s{sT0}, s{sT0}, {LB_HT}")
        a(f"v_lshlrev_b32 v{vHW}, 6, v{vJ}")
        a(f"v_lshl_add_u32 v{vHW}, v{vGm}, 4, v{vHW}")
        a(f"v_add_u32 v{vHW}, s{sT0}, v{vHW}")
        a(f"v_bfe_u32 v{vHR}, v1, 2, 2")
        a(f"v_lshl_add_u32 v{vHR}, v{vHH}, 3, v{vHR}")
        a(f"v_lshlrev_b32 v{vHR}, 6, v{vHR}")
        a(f"v_bfe_u32 v2, v1, 4, 1")
        a(f"v_lshl_add_u32 v{vHR}, v2, 5, v{vHR}")
        a(f"v_and_b32 v2, 3, v1")
        a(f"v_lshl_add_u32 v{vHR}, v2, 3, v{vHR}")
        a(f"v_add_u32 v{vHR}, s{sT0}, v{vHR}")
        a(f"s_lshl_b32 s{sT1}, s{sC}, 2")
        a(f"s_add_u32 s{sT1}, s{sT1}, s{sW}")
        a(f"s_mul_i32 s{sT2}, s{sT1}, 81920")
        a(f"s_mul_i32 s{sT3}, s{sG}, 10240")
        a(f"s_add_u32 s{sT2}, s{sT2}, s{sT3}")
        a(f"s_add_u32 s{sT2}, s{sT2}, {WS_H}")
        a(f"v_lshl_add_u32 v{vHS}, v1, 4, s{sT2}")
        a(f"s_mov_b32 s{sT7}, 0")
        a.label("LB_ag")
        for m in range(15):
            a(f"s_sub_u32 s{sT1}, s{sC}, {15 - m}")
            a(f"s_mul_i32 s{sT2}, s{sT1}, {AGP}")
            a(f"s_cmp_lt_i32 s{sT1}, 0")
            a(f"s_cselect_b32 s{sT2}, {OOB}, s{sT2}")
            a(f"buffer_load_dword v{AG+m}, v7, {ws}, s{sT2} offen sc1")
        a("v_mov_b32 v150, 0")
        a(f"s_add_u32 s{sT7}, s{sT7}, 1")
        a("s_waitcnt vmcnt(0)")
        for m in range(15):
            a(f"s_cmp_ge_u32 s{sC}, {15 - m}")
            a(f"s_cselect_b32 s{sT0}, 0xfff, 0")
            a(f"v_xor_b32 v151, s{sTAG}, v{AG+m}")
            a(f"v_and_or_b32 v150, v151, s{sT0}, v150")
        a(f"v_cmp_ne_u32 vcc, 0, v150")
        a(f"s_cmp_ge_u32 s{sT7}, 0x40000")
        a("s_cbranch_scc1 LB_agok")
        a(f"s_cmp_lg_u64 vcc, 0")
        a("s_cbranch_scc1 LB_ag")
        a.label("LB_agok")
        prev = AG
        for m in range(1, 15):
            cur = 148 + (m & 1) if m < 14 else SS
            a(f"v_fma_f32 v{cur}, v{TB+2}, v{prev}, v{AG+m}")
            a(f"v_fmac_f32_dpp v{cur}, v{prev}, v{TB+3} {DPP}")
            prev = cur
        for sg in range(15):
            a(f"v_fma_f32 v{SS+sg+1}, v{TB}, v{SS+sg}, v{SG+sg}")
            a(f"v_fmac_f32_dpp v{SS+sg+1}, v{SS+sg}, v{TB+1} {DPP}")
        for m in range(4):
            a(f"ds_write_b128 v{vSA}, v[{SS+4*m}:{SS+4*m+3}] offset:{16*m}")
        a("s_waitcnt lgkmcnt(0)")
        a("s_barrier")
        self.stamp(4)
        SV = 96
        for tc in range(10):
            a(f"ds_read_b32 v{SV+tc}, v{vSEG} offset:{1280*tc}")
        a("s_waitcnt lgkmcnt(0)")
        prev = [SV + tc for tc in range(10)]
        for tt in range(8):
            for tc in range(10):
                u = ureg(tc, tt)
                a(f"v_fma_f32 v{u}, v{SC+4*tc}, v{prev[tc]}, v{u}")
            for tc in range(10):
                u = ureg(tc, tt)
                a(f"v_fmac_f32_dpp v{u}, v{prev[tc]}, v{SC+4*tc+1} {DPP}")
            prev = [ureg(tc, tt) for tc in range(10)]
        OTm = [108, 116]; HPm = [124, 128]; HFm = [132, 136]
        def hst(tc):
            hf = HFm[tc & 1]
            a(f"s_movk_i32 s{sT0}, {4096*(tc >> 2)}")
            a("s_waitcnt lgkmcnt(0)")
            a(f"buffer_store_dwordx4 v[{hf}:{hf+3}], v{vHS}, {ws}, s{sT0} offen offset:{1024*(tc & 3)} sc1")
        for tc in range(10):
            o = OTm[tc & 1]; hp = HPm[tc & 1]; hf = HFm[tc & 1]
            for tt in range(8):
                a(f"v_mul_f32 v{o+tt}, v{SC+4*tc+2}, v{ureg(tc, tt)}")
            for tt in range(8):
                a(f"v_fmac_f32_dpp v{o+tt}, v{ureg(tc, tt)}, v{SC+4*tc+3} {DPP}")
            if tc: hst(tc - 1)
            for i in range(4):
                a(f"v_cvt_pk_bf16_f32 v{hp+i}, v{o+2*i}, v{o+2*i+1}")
            a(f"ds_write_b128 v{vHW}, v[{hp}:{hp+3}] offset:{1024*(tc & 1)}")
            for h in range(2):
                a(f"ds_read_b64_tr_b16 v[{hf+2*h}:{hf+2*h+1}], v{vHR} offset:{1024*(tc & 1) + 256*h}")
        hst(9)
        self.stamp(5)
        AC2, SK, HR, WB = 16, 64, 112, 176
        for i in range(96): a(f"v_mov_b32 v{AC2+i}, 0")
        a("s_waitcnt vmcnt(0)")
        self.flag_store(sM2, 2)
        self.stamp(6)
        a("s_barrier")
        a(f"s_cmp_eq_u32 s{sR2}, 7")
        a("s_cbranch_scc1 LB_idle")
        for t in range(3):
            a(f"buffer_load_ushort v{8+t}, v{vDS}, s[{S_R3}:{S_R3+3}], 0 offen offset:{64*t}")
        for r in range(16):
            a(f"s_mov_b32 s{sT6}, {(8*(r >> 2) + (r & 3))*1280}")
            for t in range(3):
                a(f"buffer_load_short_d16_hi v{SK+16*t+r}, v{vXS}, {rxb}, s{sT6} offen offset:{64*t}")
        self.poll_issue(vPA, 13)
        a("s_waitcnt vmcnt(1)")
        for t in range(3):
            a(f"v_lshlrev_b32 v{8+t}, 16, v{8+t}")
            for r in range(0, 16, 2):
                x = SK + 16*t + r; y = AC2 + 16*t + r
                a(f"v_mul_f32 v{x}, v{x}, v{8+t}")
                a(f"v_mul_f32 v{x+1}, v{x+1}, v{8+t}")
                a(f"v_cvt_pk_bf16_f32 v{x+1}, v{x}, v{x+1}")
                a(f"v_lshlrev_b32 v{y}, 16, v{x+1}")
                a(f"v_and_b32 v{y+1}, 0xffff0000, v{x+1}")
        self.poll_wait(vPA, 13)
        self.stamp(7)
        self.stamp_flush(64, 0)
        self.stamp(0)
        a(f"s_lshl_b32 s{sKS}, s{sROT2}, 13")
        def ld(slot, kk):
            r = HR + 4*slot
            so = sKS if kk < 4 else sKSW
            return f"buffer_load_dwordx4 v[{r}:{r+3}], v{vF}, {ws}, s{so} offen offset:{1024*(kk & 3)} sc1"
        def adv(step, lim):
            a(f"s_add_u32 s{sKS}, s{sKS}, {step}")
            a(f"s_cmp_eq_u32 s{sKS}, {lim}")
            a(f"s_cselect_b32 s{sKS}, 0, s{sKS}")
        vAD = [4, 5, 6]
        def lds_adv():
            a(f"v_add_u32 v{vAD[0]}, s{sSLOT}, v{vA0}")
            a(f"s_add_u32 s{sSLOT}, s{sSLOT}, {CSLOT}")
            a(f"s_cmp_ge_u32 s{sSLOT}, {LDS_TOTAL}")
            a(f"s_cselect_b32 s{sSLOT}, {R16}, s{sSLOT}")
        for st in range(2):
            a(f"s_add_u32 s{sKSW}, s{sKS}, 4096")
            for kk in range(8): a(ld(8*st + kk, kk))
            adv(8192, 81920)
        a(f"s_mov_b32 s{sIT}, 0")
        a(f"s_mov_b32 s{sSLOT}, {R16}")
        def rdB(rho):
            b = WB + 12*(rho & 3)
            return [f"v_xor_b32 v{vAD[1 + (rho & 1)]}, {16*(rho & 7)}, v{vAD[0]}"] + \
                   [f"ds_read_b128 v[{b+4*t}:{b+4*t+3}], v{vAD[1 + (rho & 1)]} offset:{4096*t}" for t in range(3)]
        a("s_barrier")
        lds_adv()
        for rho in range(2):
            for x in rdB(rho): a(x)
        a.label("LP2B_loop")
        a(f"s_cmp_ge_u32 s{sIT}, 4")
        a(f"s_cselect_b32 s{sKS}, {OOB}, s{sKS}")
        for sidx in range(16):
            kk = sidx & 7
            rho = sidx + 2
            if kk == 0: a(f"s_add_u32 s{sKSW}, s{sKS}, 4096")
            if rho == 16:
                a(f"s_cmp_ge_u32 s{sIT}, 4")
                a("s_cbranch_scc1 LP2B_nb")
                a("s_waitcnt lgkmcnt(0)")
                a("s_barrier")
                a.label("LP2B_nb")
            if rho in (8, 16): lds_adv()
            rr = rdB(rho)
            a(rr[0])
            a(f"s_waitcnt vmcnt(15) lgkmcnt(3)")
            b = WB + 12*(sidx & 3); h = HR + 4*sidx
            for t in range(3):
                d = AC2 + 16*t
                a(f"v_mfma_f32_32x32x16_bf16 v[{d}:{d+15}], v[{h}:{h+3}], v[{b+4*t}:{b+4*t+3}], v[{d}:{d+15}]")
                a(rr[1+t])
            a(ld(sidx, kk))
            if kk == 7: adv(8192, 81920)
        self.itstamp()
        a(f"s_add_u32 s{sIT}, s{sIT}, 1")
        a(f"s_cmp_lt_u32 s{sIT}, 5")
        a("s_cbranch_scc1 LP2B_loop")
        self.stamp(1)
        for r in range(16):
            a(f"s_mov_b32 s{sT4}, {(8*(r >> 2) + (r & 3))*5120}")
            for t in range(3):
                a(f"buffer_store_dword v{AC2+16*t+r}, v{vO2 if t == 2 else vO}, {ro}, s{sT4} offen offset:{128*t} {['', 'nt', 'sc1'][OST]}")
        self.bump(143 if MIX else 8*24 + 7, 128)
        self.finish()
        a.label("LB_idle")
        self.stamp_flush(64, 0)
        a("s_endpgm")

    def ssm_job(self, vS, sH):
        a = self.a
        n0 = len(a.items)
        G.L_TAB = 0
        self.side_jobs(vS)
        from asm2 import Ins
        items = a.items[n0:]
        del a.items[n0:]
        start = next(i for i, it in enumerate(items) if isinstance(it, Ins) and it.text.startswith("v_lshlrev_b32 v64, 16"))
        end = next(i for i, it in enumerate(items) if isinstance(it, Ins) and it.op == 's_branch')
        body = items[start:end]
        a(f"s_mul_i32 s{sT0}, s{sH}, 2560")
        for it in body:
            if it.text.startswith("v_lshlrev_b32 v67, 5, v67"):
                a(f"v_lshl_add_u32 v67, v67, 5, s{sT0}")
            else:
                a.items.append(it)
        a("s_waitcnt lgkmcnt(0)")

    def build(self):
        a = self.a
        a.kernel_begin(KNAME, 256, 512, LDS_TOTAL)
        if 'single' in self.opts: a.launch = [f"; @launch grid=(256,1,1) block=(512,1,1) lds={LDS_TOTAL}"]
        self.prologue()
        self.a_loader()
        a.label("L_Acomp")
        if PRIO: a(f"s_setprio {PRIO}")
        self.a_compute()
        self.b_entry()
        self.b_loader()
        a.label("L_Bcomp")
        if PRIO: a(f"s_setprio {PRIO}")
        self.b_compute()
        a.label("L_end")
        a("s_endpgm")
        a.kernel_end(KNAME, 256)
        return a

if __name__ == "__main__":
    for o in sys.argv[2:]:
        if '=' in o:
            kk, vv = o.split('='); globals()[kk] = int(vv)
    k = K2(prof='prof' in sys.argv, opts=sys.argv[2:])
    a = k.build()
    hdr = "".join(open("concat_heads__linear_kernel_hedgehog__ssm_conv_s5__prompt.s.ref").read().splitlines(True)[:17]) if 'final' in sys.argv else ""
    open(sys.argv[1], "w").write(a.text(hdr))
```

```python
import sys
import gen as G
from gen import *

R16 = 16384
LA_WPH = 0; LA_KVI = 5632; LA_DUM = 12800 + 64; ASLOT = 49152
LA_IMG = LDS_TOTAL - 67600
LB_TAB = 0; BSLOT = 36864; LB_SEG = LDS_TOTAL - 24576; LB_HT = LB_SEG + 12800; CSLOT = 24576
AGP = 640
NTS = 0
OST = 1
UX2 = 36
CPRE = 5
PRIO = 2
SEQ = 0
ALN = 6
SKEW = 4
MIX = 1
TICKET = 0
sSLOT = sLW

class K2(K):
    def inter(self, ms, rs, per=None):
        a = self.a
        if per is None: per = -(-len(rs) // max(1, len(ms) - 1)) if rs else 0
        ri = 0
        for m in ms:
            a(m)
            for _ in range(per):
                if ri < len(rs): a(rs[ri]); ri += 1
        while ri < len(rs): a(rs[ri]); ri += 1

    def prologue(self):
        a = self.a
        a("s_cmp_ge_u32 s2, 256")
        a("s_cbranch_scc1 L_end")
        a("s_load_dwordx16 s[4:19], s[0:1], 0")
        a("s_load_dwordx16 s[20:35], s[0:1], 64")
        a("v_lshrrev_b32 v2, 6, v0")
        a("v_and_b32 v1, 63, v0")
        a(f"v_readfirstlane_b32 s{sW}, v2")
        if TICKET:
            a(f"s_getreg_b32 s{sT0}, hwreg(HW_REG_XCC_ID)")
            a(f"s_and_b32 s{sT0}, s{sT0}, 7")
            a("v_mov_b32 v4, 16320")
            a(f"s_cmp_lg_u32 s{sW}, 0")
            a("s_cbranch_scc1 L_tkw")
            a("s_waitcnt lgkmcnt(0)")
            a.srd(S_R1, P_DBG, 256)
            a(f"s_mov_b32 s{sT2}, 0")
            a("s_mov_b64 exec, 1")
            a.label("L_tk")
            a(f"s_lshl_b32 s{sT1}, s{sT0}, 5")
            a(f"v_mov_b32 v2, s{sT1}")
            a("v_mov_b32 v3, 1")
            a(f"buffer_atomic_add v3, v2, s[{S_R1}:{S_R1+3}], 0 offen sc0 sc1")
            a(f"s_add_u32 s{sT2}, s{sT2}, 1")
            a("s_waitcnt vmcnt(0)")
            a(f"v_readfirstlane_b32 s{sT1}, v3")
            a(f"s_cmp_lt_u32 s{sT1}, 32")
            a("s_cbranch_scc1 L_tko")
            a(f"s_add_u32 s{sT0}, s{sT0}, 1")
            a(f"s_and_b32 s{sT0}, s{sT0}, 7")
            a(f"s_cmp_lt_u32 s{sT2}, 8")
            a("s_cbranch_scc1 L_tk")
            a.label("L_tko")
            a(f"s_lshl_b32 s{sT1}, s{sT1}, 3")
            a(f"s_add_u32 s{sT1}, s{sT1}, s{sT0}")
            a(f"s_and_b32 s{sT1}, s{sT1}, 255")
            a(f"v_mov_b32 v3, s{sT1}")
            a("ds_write_b32 v4, v3")
            a("s_mov_b64 exec, -1")
            a("s_waitcnt lgkmcnt(0)")
            a.label("L_tkw")
            a("s_barrier")
            a("ds_read_b32 v3, v4")
            a("s_waitcnt lgkmcnt(0)")
            a("v_readfirstlane_b32 s2, v3")
            a("s_and_b32 s2, s2, 255")
        if MIX:
            a(f"s_and_b32 s{sC2}, s2, 7")
            a(f"s_lshl_b32 s{sC2}, s{sC2}, 1")
            a(f"s_lshr_b32 s{sT0}, s2, 7")
            a(f"s_add_u32 s{sC2}, s{sC2}, s{sT0}")
            a(f"s_bfe_u32 s{sR2}, s2, 0x30004")
            a(f"s_mov_b32 s{sLOG2E}, 0x3fb8aa3b")
            a(f"s_mov_b32 s{sLOG2E+1}, 0x3fb8aa3b")
            a(f"s_sub_u32 s{sL}, s{sW}, 4")
            a(f"s_bfe_u32 s{sT1}, s2, 0x20004")
            a(f"s_lshr_b32 s{sT2}, s2, 6")
            a("s_bitcmp1_b32 s2, 3")
            a("s_cbranch_scc1 L_B")
            a(f"s_and_b32 s{sT0}, s2, 4")
            a(f"s_add_u32 s{sC}, s{sT0}, s{sT1}")
            a(f"s_and_b32 s{sT0}, s2, 3")
            a(f"s_lshl_b32 s{sT0}, s{sT0}, 2")
            a(f"s_add_u32 s{sG}, s{sT0}, s{sT2}")
            a(f"s_xor_b32 s{sD0}, s{sG}, 1")
            a(f"s_and_b32 s{sROT2}, s{sC2}, 1")
            a(f"s_lshl_b32 s{sROT2}, s{sROT2}, 2")
            a(f"s_add_u32 s{sROT2}, s{sROT2}, s{sR2}")
            a(f"s_and_b32 s{sROT2}, s{sROT2}, 7")
        else:
            a(f"s_and_b32 s{sC2}, s2, 3")
            a(f"s_lshl_b32 s{sC2}, s{sC2}, 2")
            a(f"s_lshr_b32 s{sT0}, s2, 6")
            a(f"s_add_u32 s{sC2}, s{sC2}, s{sT0}")
            a(f"s_bfe_u32 s{sR2}, s2, 0x30003")
            a(f"s_mov_b32 s{sLOG2E}, 0x3fb8aa3b")
            a(f"s_mov_b32 s{sLOG2E+1}, 0x3fb8aa3b")
            a(f"s_sub_u32 s{sL}, s{sW}, 4")
            a("s_bitcmp1_b32 s2, 2")
            a("s_cbranch_scc1 L_B")
            a(f"s_bfe_u32 s{sT0}, s2, 0x10001")
            a(f"s_lshl_b32 s{sT0}, s{sT0}, 2")
            a(f"s_bfe_u32 s{sT1}, s2, 0x20003")
            a(f"s_add_u32 s{sC}, s{sT0}, s{sT1}")
            a(f"s_and_b32 s{sT0}, s2, 1")
            a(f"s_lshl_b32 s{sT0}, s{sT0}, 3")
            a(f"s_lshr_b32 s{sT2}, s2, 5")
            a(f"s_add_u32 s{sG}, s{sT0}, s{sT2}")
            a(f"s_xor_b32 s{sD0}, s{sG}, 1")
            a(f"s_and_b32 s{sROT2}, s{sC2}, 3")
            a(f"s_lshl_b32 s{sROT2}, s{sROT2}, 1")
            a(f"s_add_u32 s{sROT2}, s{sROT2}, s{sR2}")
            a(f"s_and_b32 s{sROT2}, s{sROT2}, 7")
        self.rot()
        a(f"s_cmp_lt_u32 s{sW}, 4")
        a("s_cbranch_scc1 L_Acomp")

    def rot(self):
        a = self.a
        a(f"s_mul_i32 s{sT1}, s{sT1}, 3")
        a(f"s_add_u32 s{sROT}, s{sT1}, s{sT2}")
        a(f"s_cmp_ge_u32 s{sROT}, 10")
        a(f"s_cselect_b32 s{sT0}, 10, 0")
        a(f"s_sub_u32 s{sROT}, s{sROT}, s{sT0}")
        a(f"s_lshl_b32 s{sROT}, s{sROT}, 7")

    def codepf(self, lab):
        a = self.a
        a(f"s_getpc_b64 s[{sM}:{sM+1}]")
        a.label(lab)
        a(f"s_lshr_b32 s{sT0}, s2, 3")
        a(f"s_lshl_b32 s{sT0}, s{sT0}, 2")
        a(f"s_add_u32 s{sT0}, s{sT0}, s{sW}")
        a(f"s_mul_i32 s{sT0}, s{sT0}, 384")
        a(f"v_min_u32 v2, 2, v1")
        a(f"v_lshl_add_u32 v2, v2, 7, s{sT0}")
        a(f"s_sub_u32 s{sM}, s{sM}, {lab}-{KNAME}")
        a(f"s_subb_u32 s{sM+1}, s{sM+1}, 0")
        a(f"v_min_u32 v2, L_end-{KNAME}, v2")
        a(f"global_load_dword v255, v2, s[{sM}:{sM+1}]")

    class VM:
        def __init__(s, a): s.a = a; s.out = []
        def issue(s, t, lab): s.a(t); s.out.append(lab)
        def wait(s, lab):
            idx = max(i for i, l in enumerate(s.out) if l == lab)
            n = len(s.out) - 1 - idx
            assert n <= 63
            s.a(f"s_waitcnt vmcnt({n})")
            del s.out[:idx+1]

    def adv(self, reg, step, lim):
        a = self.a
        a(f"s_add_u32 s{reg}, s{reg}, {step}")
        a(f"s_cmp_ge_u32 s{reg}, {lim}")
        a(f"s_cselect_b32 s{reg}, 0, s{reg}")

    def swz(self):
        a = self.a
        a(f"v_lshrrev_b32 v2, 3, v1")
        a(f"v_and_b32 v3, 7, v1")
        a(f"v_lshrrev_b32 v34, 1, v2")
        a(f"v_xor_b32 v32, v3, v34")
        a(f"v_xor_b32 v33, 4, v32")
        a(f"v_lshlrev_b32 v32, 4, v32")
        a(f"v_lshlrev_b32 v33, 4, v33")
        a(f"v_mul_u32_u24 v34, 1280, v2")

    def a_loader(self):
        a = self.a; ws = self.ws
        vm = self.VM(a)
        SX, SQ, SO_ = S_R1, S_R2, S_R4
        rx = f"s[{SX}:{SX+3}]"; rq = f"s[{SQ}:{SQ+3}]"; rw = f"s[{SO_}:{SO_+3}]"
        self.stamp(0)
        vX = [4, 5, 6, 7]; vWq = [8, 9, 10, 11]
        if 'bprof' in self.opts: a("v_mov_b32 v255, 0")
        self.bstamp(32)
        self.swz()
        a(f"s_lshl_b32 s{sT0}, s{sC}, 8")
        a(f"s_lshl_b32 s{sT1}, s{sL}, 6")
        a(f"s_add_u32 s{sT0}, s{sT0}, s{sT1}")
        a(f"s_mul_i32 s{sT0}, s{sT0}, 1280")
        for i in range(4):
            a(f"v_add3_u32 v{vX[i]}, v34, v{32 + (i & 1)}, s{sT0}")
            if i: a(f"v_add_u32 v{vX[i]}, {i*8*1280 - i*1024}, v{vX[i]}")
        a(f"v_lshrrev_b32 v2, 4, v1")
        a(f"v_lshlrev_b32 v3, 2, v2")
        a(f"v_sub_u32 v3, v1, v3")
        a(f"v_and_b32 v3, 15, v3")
        a(f"v_min_u32 v3, 14, v3")
        a(f"v_mul_u32_u24 v12, 52, v3")
        a(f"v_lshrrev_b32 v12, 8, v12")
        a(f"v_mul_u32_u24 v12, 1200, v12")
        a(f"v_lshl_add_u32 v12, v3, 4, v12")
        a(f"v_mul_u32_u24 v2, 3840, v2")
        a(f"s_mul_i32 s{sT0}, s{sG}, 80")
        a(f"s_mul_i32 s{sT1}, s{sD0}, 80")
        a(f"v_mov_b32 v13, s{sT0}")
        a(f"v_mov_b32 v14, s{sT1}")
        a(f"v_cmp_gt_u32 vcc, 5, v3")
        a(f"v_cndmask_b32 v13, v13, v14, vcc")
        a(f"s_mul_i32 s{sT0}, s{sL}, {16*3840}")
        a(f"v_add3_u32 v12, v12, v2, v13")
        a(f"v_add_u32 v{vWq[0]}, s{sT0}, v12")
        for i in range(1, 4):
            a(f"v_add_u32 v{vWq[i]}, {i*(4*3840 - 1024)}, v{vWq[0]}")
        a(f"s_lshl_b32 s{sLX}, s{sL}, 13")
        a(f"s_lshl_b32 s{sLW}, s{sL}, 12")
        a("s_waitcnt lgkmcnt(0)")
        a.srd(SX, P_AX, 2621440)
        a.srd(SQ, P_WQKV, 2457600)
        if 'now' in self.opts: a(f"s_mov_b32 s{SQ+2}, 0")
        if 'nox' in self.opts: a(f"s_mov_b32 s{SX+2}, 0")
        def stage(S):
            sl = R16 + (S % 3) * ASLOT
            nt = 'nt' if S < NTS else ''
            a(f"s_add_u32 m0, s{sLW}, {sl + 32768}")
            a(f"s_mul_i32 s{sKSW}, s{sROT}, 1920")
            for i in range(4):
                vm.issue(f"buffer_load_dwordx4 v{vWq[i]}, {rq}, s{sKSW} offen offset:{1024*i} {nt} lds", f'st{S}')
            a(f"s_add_u32 m0, s{sLX}, {sl}")
            a(f"s_add_u32 s{sKS}, s{sROT}, {32*1280}")
            for i in range(4):
                vm.issue(f"buffer_load_dwordx4 v{vX[i]}, {rx}, s{sROT} offen offset:{1024*i} {nt} lds", f'st{S}')
            a(f"s_add_u32 m0, s{sLX}, {sl + 4096}")
            for i in range(4):
                vm.issue(f"buffer_load_dwordx4 v{vX[i]}, {rx}, s{sKS} offen offset:{1024*i} {nt} lds", f'st{S}')
            self.adv(sROT, 128, 1280)
        stage(0)
        a.srd(S_WS, P_WS, WS_BYTES)
        a("v_mov_b32 v2, 0")
        vm.issue(f"buffer_load_dword v26, v2, {ws}, 0 offen sc1", 'ep')
        G.L_KVI = 0
        sv = (self.__dict__.get('_'),)
        a(f"s_mov_b32 s{sM2}, s{sG}")
        a(f"s_mov_b32 s{sG}, s{sD0}")
        self.reduce_addrs8()
        a(f"s_mov_b32 s{sG}, s{sM2}")
        a.srd(SO_, P_WO, 819200)
        a(f"v_lshrrev_b32 v110, 4, v1")
        a(f"v_bfe_u32 v111, v1, 2, 2")
        a(f"v_xor_b32 v111, v111, v110")
        a(f"v_min_u32 v111, 2, v111")
        a(f"v_lshlrev_b32 v111, 6, v111")
        a(f"v_and_b32 v2, 3, v1")
        a(f"v_lshl_add_u32 v111, v2, 4, v111")
        a(f"s_mul_i32 s{sT0}, s{sR2}, 192")
        a(f"v_add_u32 v111, s{sT0}, v111")
        a(f"s_lshr_b32 s{sT0}, s{sL}, 1")
        a(f"s_mul_i32 s{sT0}, s{sT0}, 10")
        a(f"s_and_b32 s{sT1}, s{sL}, 1")
        a(f"s_lshl_b32 s{sT2}, s{sT1}, 2")
        a(f"v_add_u32 v108, s{sT2}, v110")
        for st in range(4):
            a(f"v_add_u32 v109, {8*(st & 1)}, v108")
            a(f"v_add_u32 v2, 10, v109")
            a(f"v_cmp_lt_u32 vcc, 9, v109")
            a(f"v_cndmask_b32 v109, v109, v2, vcc")
            a(f"s_add_u32 s{sT3}, s{sT0}, {40*(st >> 1)}")
            a(f"v_add_u32 v109, s{sT3}, v109")
            a(f"v_mul_u32_u24 v109, 1280, v109")
            a(f"v_add_u32 v{100+st}, v109, v111")
        a(f"s_mul_i32 s{sT3}, s{sT1}, 40")
        a(f"s_add_u32 s{sT3}, s{sT3}, s{sT0}")
        a(f"s_add_u32 s{sT3}, s{sT3}, 26")
        a(f"v_add_u32 v109, s{sT3}, v110")
        a(f"v_mul_u32_u24 v109, 1280, v109")
        a(f"v_add_u32 v104, v109, v111")
        a(f"s_mul_i32 s{sROT2}, s{sROT2}, {80*1280}")
        a(f"s_lshl_b32 s{sL2X}, s{sL}, 10")
        a(f"v_mov_b32 v60, 0")
        a(f"v_mov_b32 v61, 0")
        a(f"v_mul_u32_u24 v2, 112, v1")
        a(f"ds_write_b64 v2, v[60:61] offset:{LA_KVI+40}")
        a(f"ds_write_b64 v2, v[60:61] offset:{LA_KVI+88}")
        stage(1)
        def units(lo, hi):
            for u in range(lo, hi):
                a(f"s_add_u32 m0, s{sL2X}, {(R16 + 4096*u) % LDS_TOTAL}")
                vm.issue(f"buffer_load_dwordx4 v{100 + u % 5}, {rw}, s{sROT2} offen lds", f'u{u}')
                if u % 5 == 4: self.adv(sROT2, 80*1280, 640*1280)
        for S in range(10):
            vm.wait(f'st{S}')
            if S == 0: a("s_waitcnt lgkmcnt(0)")
            a("s_barrier")
            self.bstamp(S)
            if S == 0: self.stamp(1)
            if S + 2 < 10: stage(S + 2)
            if S == 1: self.tag_from(26)
        a("s_barrier")
        self.bstamp(10); self.bflush()
        self.stamp(2)
        units(0, 19)
        a("s_barrier")
        a("s_barrier")
        self.stamp(3)
        units(19, UX2)
        LA = [112 + 4*i for i in range(8)]
        vLA, vDA, vDA2, vDB, vDB2, vPR = 16, 18, 19, 20, 21, 23
        sP0, sP1, sCR = sT4, sT5, sM + 1
        self.tagpat(sP0, sP1)
        a(f"s_mov_b32 s{sT7}, 0")
        a(f"s_and_b32 s{sCR}, s{sC}, 3")
        a(f"s_mul_i32 s{sCR}, s{sCR}, {2*KVPITCH}")
        def chk(r):
            for i in range(4):
                a(f"v_xor_b32 v{64+i}, s{sP0 if i % 2 == 0 else sP1}, v{r+i}")
            a(f"v_or3_b32 v72, v72, v64, v65")
            a(f"v_or3_b32 v72, v72, v66, v67")
        a.label("LAl_probe")
        a(f"buffer_load_dwordx4 v[76:79], v{vPR}, {ws}, 0 offen sc1")
        a(f"s_add_u32 s{sT7}, s{sT7}, 1")
        a(f"s_cmp_ge_u32 s{sT7}, 0x40000")
        a("s_cbranch_scc1 LAl_sum")
        a("v_mov_b32 v72, 0")
        a("s_waitcnt vmcnt(0)")
        chk(76)
        a(f"v_and_b32 v72, 0x10001, v72")
        a(f"v_cmp_ne_u32 vcc, 0, v72")
        a(f"s_cmp_lg_u64 vcc, 0")
        a("s_cbranch_scc1 LAl_probe")
        self.stamp(4)
        a(f"s_mov_b32 s{sT0}, s{sCR}")
        for cc in range(8):
            a(f"buffer_load_dwordx4 v[{LA[cc]}:{LA[cc]+3}], v{vLA}, {ws}, s{sT0} offen sc1")
            if cc < 7:
                a(f"s_add_u32 s{sT0}, s{sT0}, {KVPITCH}")
                if cc % 2 == 1:
                    a(f"s_cmp_eq_u32 s{sT0}, {8*KVPITCH}")
                    a(f"s_cselect_b32 s{sT0}, 0, s{sT0}")
        AC, TP = 80, 88
        for cc in range(8):
            a(f"s_waitcnt vmcnt({7-cc})")
            chk(LA[cc])
            d = AC if cc == 0 else TP
            for i in range(4):
                a(f"v_lshlrev_b32 v{d+2*i}, 16, v{LA[cc]+i}")
                a(f"v_and_b32 v{d+2*i+1}, 0xffff0000, v{LA[cc]+i}")
            if cc:
                for i in range(4):
                    a(f"v_pk_add_f32 v[{AC+2*i}:{AC+2*i+1}], v[{AC+2*i}:{AC+2*i+1}], v[{TP+2*i}:{TP+2*i+1}]")
        a(f"v_and_b32 v72, v24, v72")
        a(f"v_cmp_ne_u32 vcc, 0, v72")
        a(f"s_cmp_lg_u64 vcc, 0")
        a("s_cbranch_scc1 LAl_probe")
        a.label("LAl_sum")
        for i in range(4):
            a(f"v_cvt_pk_bf16_f32 v{TP+i}, v{AC+2*i}, v{AC+2*i+1}")
        a(f"ds_write_b64 v{vDA}, v[{TP}:{TP+1}] offset:{LA_KVI}")
        a(f"ds_write_b64 v{vDA2}, v[{TP}:{TP+1}] offset:{LA_KVI}")
        a(f"ds_write_b64 v{vDB}, v[{TP+2}:{TP+3}] offset:{LA_KVI}")
        a(f"ds_write_b64 v{vDB2}, v[{TP+2}:{TP+3}] offset:{LA_KVI}")
        a("s_waitcnt lgkmcnt(0)")
        self.stamp(5)
        a("s_barrier")
        self.stamp_flush(112, 0)
        a("s_barrier")
        a(f"s_cmp_eq_u32 s{sR2}, 7")
        a("s_cbranch_scc1 L_end")
        vm.out[:] = []
        units(UX2, 40)
        if UX2 < 36:
            vm.wait('u%d' % min(39, UX2 + 7)); a("s_barrier")
        a("s_waitcnt vmcnt(0)")
        a("s_barrier")
        a("s_endpgm")

    def reduce_addrs8(self):
        a = self.a
        G.L_DUM = LA_DUM - LA_KVI
        globals()['L_DUM'] = LA_DUM - LA_KVI
        n0 = len(a.items)
        self.reduce_addrs(0); self.reduce_addrs(1)
        from asm2 import Ins
        for i in range(n0, len(a.items)):
            it = a.items[i]
            if isinstance(it, Ins):
                t = it.text.replace(f", {16*KVPITCH}", f", {8*KVPITCH}").replace("v_and_b32 v23, 15, v1", "v_and_b32 v23, 7, v1")
                if t != it.text: a.items[i] = Ins(t)

    def a_compute(self):
        a = self.a; ws = self.ws
        vN, vHH, vJ, vGm = 12, 13, 14, 15
        ACC = 16; OPS = 144; vXL = 240; vWL = [241, 242, 243, 244]
        vX = [4, 5, 6, 7]; vWr = [8, 9, 10, 11]
        self.stamp(0)
        a(f"v_and_b32 v{vJ}, 15, v1")
        a(f"v_lshrrev_b32 v{vGm}, 4, v1")
        a(f"v_and_b32 v{vN}, 31, v1")
        a(f"v_lshrrev_b32 v{vHH}, 5, v1")
        a(f"v_min_u32 v3, 39, v1")
        a(f"v_mul_u32_u24 v3, 40, v3")
        a(f"s_cmp_eq_u32 s{sW}, 1")
        a(f"s_cselect_b32 s{sT0}, s{sG}, s{sD0}")
        a(f"s_mul_i32 s{sT0}, s{sT0}, 1600")
        a(f"s_sub_u32 s{sT1}, s{sW}, 1")
        a(f"s_cmp_lt_u32 s{sT1}, 2")
        a(f"s_cselect_b32 s{sT3}, s{sT0}, {OOB}")
        a("s_waitcnt lgkmcnt(0)")
        a.srd(S_WS, P_WS, WS_BYTES)
        a("v_mov_b32 v2, 0")
        a(f"buffer_load_dword v250, v2, {ws}, 0 offen sc1")
        a.srd(S_R4, P_WPHI, 25600)
        vS = 150
        for i in range(5):
            a(f"buffer_load_dwordx2 v[{vS+2*i}:{vS+1+2*i}], v3, s[{S_R4}:{S_R4+3}], s{sT3} offen offset:{8*i}")
        self.codepf("L_pcA")
        a(f"v_bfe_u32 v2, v1, 1, 3")
        a(f"v_xor_b32 v2, v2, v{vHH}")
        a(f"v_lshlrev_b32 v2, 4, v2")
        a(f"v_lshl_add_u32 v2, v{vN}, 7, v2")
        a(f"s_lshl_b32 s{sT0}, s{sW}, 13")
        a(f"v_add_u32 v{vXL}, s{sT0}, v2")
        t = 170
        a(f"v_bfe_u32 v{t}, v1, 2, 2")
        a(f"v_lshl_add_u32 v{t+1}, v{vHH}, 3, v{t}")
        a(f"v_lshlrev_b32 v{t+1}, 8, v{t+1}")
        a(f"v_and_b32 v{t+2}, 3, v1")
        a(f"v_lshl_add_u32 v{t+1}, v{t+2}, 3, v{t+1}")
        a(f"v_bfe_u32 v{t+2}, v1, 4, 1")
        a(f"v_lshl_add_u32 v{t+1}, v{t+2}, 5, v{t+1}")
        a(f"v_add_u32 v{t+1}, 32768, v{t+1}")
        for f in range(4):
            a(f"v_add_u32 v{t+2}, {f}, v{t}")
            a(f"v_and_b32 v{t+2}, 3, v{t+2}")
            a(f"v_lshl_add_u32 v{vWL[f]}, v{t+2}, 6, v{t+1}")
        for k in range(4):
            a(f"v_xor_b32 v{vX[k]}, {32*k}, v{vXL}")
            a(f"v_mov_b32 v{vWr[k]}, v{vWL[k]}")
        a("s_waitcnt vmcnt(1)")
        self.tag_from(250)
        a(f"s_cmp_ge_u32 s{sT1}, 2")
        a("s_cbranch_scc1 LA_nowp")
        a(f"s_mul_i32 s{sT0}, s{sT1}, 2688")
        for i in range(4): a(f"v_mov_b32 v{64+i}, 0")
        a(f"v_lshl_add_u32 v68, v1, 4, s{sT0}")
        a(f"ds_write_b128 v68, v[64:67] offset:{LA_WPH}")
        a(f"ds_write_b128 v68, v[64:67] offset:{LA_WPH+1024}")
        a(f"v_min_u32 v69, 39, v1")
        a(f"v_lshl_add_u32 v68, v69, 4, s{sT0}")
        a(f"ds_write_b128 v68, v[64:67] offset:{LA_WPH+2048}")
        a(f"v_add_u32 v65, 1, v69")
        a(f"v_cmp_lt_u32 vcc, 19, v69")
        a(f"v_cndmask_b32 v64, v69, v65, vcc")
        a(f"v_lshl_add_u32 v64, v64, 6, s{sT0}")
        for i, (o0, o1) in enumerate([(0, 1), (4, 5), (8, 2), (3, 6), (7, 10)]):
            a(f"ds_write2_b32 v64, v{vS+2*i}, v{vS+1+2*i} offset0:{o0} offset1:{o1}")
        a("s_waitcnt lgkmcnt(0)")
        a.label("LA_nowp")
        for i in range(128): a(f"v_mov_b32 v{ACC+i}, 0")
        a(f"s_mov_b32 s{sSLOT}, 0")
        a(f"s_mov_b32 s{sIT}, 0")
        a("s_barrier")
        self.stamp(1)
        def rd(k):
            b = OPS + 24*(k & 1)
            r = [f"ds_read_b128 v[{b+4*tt}:{b+4*tt+3}], v{vX[k]} offset:{R16 + 4096*tt}" for tt in range(2)]
            for f in range(4):
                for h in range(2):
                    r.append(f"ds_read_b64_tr_b16 v[{b+8+4*f+2*h}:{b+9+4*f+2*h}], v{vWr[f]} offset:{R16 + (16*k + 4*h)*256}")
            return r
        def mm(k):
            b = OPS + 24*(k & 1)
            return [f"v_mfma_f32_32x32x16_bf16 v[{ACC+64*tt+16*f}:{ACC+64*tt+16*f+15}], v[{b+8+4*f}:{b+11+4*f}], v[{b+4*tt}:{b+4*tt+3}], v[{ACC+64*tt+16*f}:{ACC+64*tt+16*f+15}]"
                    for f in range(4) for tt in range(2)] if 'nomm' not in self.opts else ["s_nop 0"]*8
        for x in rd(0): a(x)
        if ALN: a.raw(f".p2align {ALN}")
        a.label("LA_loop")
        for k in range(2):
            a("s_waitcnt lgkmcnt(0)")
            self.inter(mm(k), rd(k + 1), 2)
        a("s_waitcnt lgkmcnt(0)")
        self.adv(sSLOT, ASLOT, 3*ASLOT)
        upd = [f"v_add_u32 v{vX[0]}, s{sSLOT}, v{vXL}"] + [f"v_xor_b32 v{vX[k]}, {32*k}, v{vX[0]}" for k in range(1, 4)] + \
              [f"v_add_u32 v{vWr[f]}, s{sSLOT}, v{vWL[f]}" for f in range(4)]
        m2 = mm(2)
        self.inter(m2[:5], rd(3), 2)
        self.inter(m2[5:], upd, 3)
        a("s_waitcnt lgkmcnt(0)")
        m3 = mm(3)
        a(m3[0]); a(m3[1])
        a("s_barrier")
        self.inter(m3[2:], rd(0), 2)
        a(f"s_add_u32 s{sIT}, s{sIT}, 1")
        a(f"s_cmp_lt_u32 s{sIT}, 10")
        a("s_cbranch_scc1 LA_loop")
        self.stamp(2)
        PK = 144; WF = 208
        def pk(tt, e): return PK + 32*tt + 16*e
        v1a, v3a, v5a = 4, 5, 6
        a(f"v_bfe_u32 v7, v1, 2, 2")
        a(f"v_and_b32 v8, 3, v1")
        a(f"v_lshlrev_b32 v8, 3, v8")
        a(f"v_bfe_u32 v9, v1, 4, 1")
        a(f"v_lshl_add_u32 v8, v9, 5, v8")
        a(f"v_lshl_add_u32 v{v1a}, v{vHH}, 2, v7")
        a(f"v_lshl_add_u32 v{v1a}, v{v1a}, 6, v8")
        a(f"v_add_u32 v9, 16, v7")
        a(f"v_mov_b32 v2, 20")
        a(f"v_cmp_lt_u32 vcc, 31, v1")
        a(f"v_cndmask_b32 v{v3a}, v9, v2, vcc")
        a(f"v_cndmask_b32 v{v5a}, v2, v7, vcc")
        a(f"v_lshl_add_u32 v{v3a}, v{v3a}, 6, v8")
        a(f"v_lshl_add_u32 v{v5a}, v{v5a}, 6, v8")
        a("s_waitcnt lgkmcnt(0)")
        for qk in range(2):
            for e in range(2):
                w = WF + 16*qk + 8*e; o = LA_WPH + 2688*qk + 1344*e
                if e == 0:
                    a(f"ds_read_b64_tr_b16 v[{w}:{w+1}], v{v1a} offset:{o}")
                    a(f"ds_read_b64_tr_b16 v[{w+2}:{w+3}], v{v1a} offset:{o+512}")
                    a(f"ds_read_b64_tr_b16 v[{w+4}:{w+5}], v{v3a} offset:{o}")
                else:
                    a(f"ds_read_b64_tr_b16 v[{w}:{w+1}], v{v5a} offset:{o}")
                    a(f"ds_read_b64_tr_b16 v[{w+2}:{w+3}], v{v1a} offset:{o+256}")
                    a(f"ds_read_b64_tr_b16 v[{w+4}:{w+5}], v{v1a} offset:{o+768}")
                for z in (6, 7): a(f"v_mov_b32 v{w+z}, 0")
        vIP, vIV, vIV2, vIV3 = 7, 8, 10, 11
        a(f"v_mul_u32_u24 v{vIP}, {IMGP}, v{vN}")
        a(f"s_mul_i32 s{sT0}, s{sW}, {64*IMGP}")
        a(f"s_add_u32 s{sT0}, s{sT0}, {LA_IMG}")
        a(f"v_add_u32 v{vIP}, s{sT0}, v{vIP}")
        a(f"v_lshl_add_u32 v{vIV}, v{vHH}, 3, v{vIP}")
        a(f"v_lshl_add_u32 v{vIV2}, v{vHH}, 4, v{vIP}")
        a(f"v_mul_u32_u24 v2, 48, v{vHH}")
        a(f"v_add_u32 v{vIV3}, v{vIP}, v2")
        a(f"v_mul_u32_u24 v2, 40, v{vHH}")
        a(f"v_add_u32 v{vIP}, v{vIP}, v2")
        def DK(tt, e): return 16 + 64*tt + 16*e
        def DQ(tt, e): return 48 + 64*tt + 16*e
        for tt in range(2):
            for i in range(30):
                s_ = ACC + 64*tt + 2*i
                a(f"v_cvt_pk_bf16_f32 v{PK+32*tt+i}, v{s_}, v{s_+1}")
            a(f"v_mov_b32 v{PK+32*tt+30}, 0x3f80")
            a(f"v_mov_b32 v{PK+32*tt+31}, 0")
            if tt == 0: a("s_waitcnt lgkmcnt(0)")
            for qk, D in ((0, DK), (1, DQ)):
                for st in range(2):
                    for e in range(2):
                        w = WF + 16*qk + 8*e + 4*st; d = D(tt, e)
                        p = PK + 32*tt + (10 if qk == 0 else 0) + 4*e + 4*st
                        c = "0" if st == 0 else f"v[{d}:{d+15}]"
                        a(f"v_mfma_f32_32x32x16_bf16 v[{d}:{d+15}], v[{w}:{w+3}], v[{p}:{p+3}], {c}")
                        if qk == 1 and e == 1:
                            for U_, va, off in ([(10, vIV, 0), (11, vIV, 16), (12, vIV2, 32)] if st == 0 else [(13, vIV, 56), (14, vIV, 72), (15, vIV3, 40)]):
                                r = PK + 32*tt + 2*U_
                                a(f"ds_write_b64 v{va}, v[{r}:{r+1}] offset:{32*IMGP*tt + 160 + off}")
        E = [208, 228]; T = [248, 252]
        for tt in range(2):
            self.softmax2([DK(tt, 0), DK(tt, 1)], [pk(tt, 0), pk(tt, 1)], E, T)
            for e in range(2):
                for m in range(5):
                    a(f"ds_write_b64 v{vIP}, v[{pk(tt, e)+2*m}:{pk(tt, e)+2*m+1}] offset:{32*IMGP*tt + 80*e + 8*m}")
        a(f"v_and_b32 v2, 1, v{vGm}")
        a(f"v_lshlrev_b32 v2, 4, v2")
        a(f"v_bfe_u32 v3, v1, 2, 2")
        a(f"v_lshl_add_u32 v2, v3, 2, v2")
        a(f"v_lshl_add_u32 v2, v{vHH}, 1, v2")
        a(f"v_mul_u32_u24 v2, {IMGP}, v2")
        a(f"v_and_b32 v3, 3, v1")
        a(f"v_lshl_add_u32 v2, v3, 3, v2")
        a(f"s_lshr_b32 s{sT0}, s{sW}, 1")
        a(f"s_and_b32 s{sT1}, s{sW}, 1")
        a(f"s_mul_i32 s{sT2}, s{sT0}, 80")
        a(f"s_add_u32 s{sT2}, s{sT2}, {LA_IMG}")
        vKA, vKB, vKS, vKS2 = 6, 4, 5, 9
        a(f"v_add_u32 v{vKA}, s{sT2}, v2")
        a(f"s_mul_i32 s{sT2}, s{sT0}, 48")
        a(f"s_lshl_b32 s{sT3}, s{sT1}, 5")
        a(f"s_add_u32 s{sT2}, s{sT2}, s{sT3}")
        a(f"s_add_u32 s{sT2}, s{sT2}, {LA_IMG + 160}")
        a(f"v_add_u32 v{vKB}, s{sT2}, v2")
        a(f"s_lshl_b32 s{sT2}, s{sG}, 3")
        a(f"s_add_u32 s{sT2}, s{sT2}, s{sC}")
        a(f"s_mul_i32 s{sT2}, s{sT2}, {KVPITCH}")
        a(f"s_mul_i32 s{sT3}, s{sT0}, 1680")
        a(f"s_add_u32 s{sT2}, s{sT2}, s{sT3}")
        a(f"s_add_u32 s{sT2}, s{sT2}, {WS_KVP}")
        a(f"s_lshl_b32 s{sT3}, s{sT1}, 4")
        a(f"v_add_u32 v2, s{sT3}, v{vJ}")
        a(f"v_mul_u32_u24 v3, 21, v{vGm}")
        a(f"v_add_u32 v3, v3, v2")
        a(f"v_lshl_add_u32 v{vKS}, v3, 3, s{sT2}")
        a(f"v_mov_b32 v3, {OOB}")
        a(f"v_cmp_lt_u32 vcc, 20, v2")
        a(f"v_cndmask_b32 v{vKS}, v{vKS}, v3, vcc")
        a(f"v_cmp_lt_u32 vcc, 31, v1")
        a(f"v_cndmask_b32 v{vKS2}, v{vKS}, v3, vcc")
        self.tagpat(sT0, sT1)
        a("s_waitcnt lgkmcnt(0)")
        a("s_barrier")
        self.stamp(3)
        DKV = 208
        KB = [144, 160, 176, 192, 16, 32, 80, 96]
        def kvr(k):
            b = KB[k]
            r = [f"ds_read_b64_tr_b16 v[{b+2*h}:{b+2*h+1}], v{vKB} offset:{k*32*IMGP + h*IMGP}" for h in range(2)]
            for ft in range(3):
                for h in range(2):
                    r.append(f"ds_read_b64_tr_b16 v[{b+4+4*ft+2*h}:{b+5+4*ft+2*h}], v{vKA} offset:{k*32*IMGP + h*IMGP + 32*ft}")
            return r
        for x in kvr(0): a(x)
        for k in range(8):
            if k < 7:
                for x in kvr(k + 1): a(x)
            a(f"s_waitcnt lgkmcnt({8 if k < 7 else 0})")
            b = KB[k]
            for ft in range(3):
                d = DKV + 4*ft
                c = "0" if k == 0 else f"v[{d}:{d+3}]"
                a(f"v_mfma_f32_16x16x32_bf16 v[{d}:{d+3}], v[{b+4+4*ft}:{b+7+4*ft}], v[{b}:{b+3}], {c}")
        a(f"v_mov_b32 v2, 0x10001")
        for i in range(6):
            a(f"v_cvt_pk_bf16_f32 v{DKV+12+i}, v{DKV+2*i}, v{DKV+2*i+1}")
        for i in range(6):
            a(f"v_bfi_b32 v{DKV+12+i}, v2, s{sT0 + (i & 1)}, v{DKV+12+i}")
        for ft in range(3):
            d = DKV + 12 + 2*ft
            a(f"buffer_store_dwordx2 v[{d}:{d+1}], v{vKS2 if ft == 2 else vKS}, {ws}, 0 offen offset:{672*ft} sc1")
        a("s_barrier")
        self.stamp(4)
        def PQ(tt, e): return 144 + 24*tt + 12*e
        E = [16, 80]; T = [36, 40]
        for tt in range(2):
            self.softmax2([DQ(tt, 0), DQ(tt, 1)], [PQ(tt, 0), PQ(tt, 1)], E, T)
            for e in range(2):
                a(f"v_mov_b32 v{PQ(tt, e)+10}, 0")
                a(f"v_mov_b32 v{PQ(tt, e)+11}, 0")
        self.stamp(5)
        SO = S_R1; ro = f"s[{SO}:{SO+3}]"
        a.srd(SO, P_OUT, 2048*1280*4)
        vF, vO, vA0, vO2, vPA = 4, 5, 6, 8, 10
        a(f"s_lshl_b32 s{sT0}, s{sC2}, 2")
        a(f"s_add_u32 s{sT0}, s{sT0}, s{sW}")
        a(f"s_lshl_b32 s{sT2}, s{sT0}, 5")
        a(f"v_lshl_add_u32 v2, v{vHH}, 2, s{sT2}")
        a(f"s_mul_i32 s{sT3}, s{sR2}, 96")
        a(f"v_add_lshl_u32 v3, v{vN}, s{sT3}, 2")
        a(f"v_mul_u32_u24 v{vO}, 5120, v2")
        a(f"v_add_u32 v{vO}, v{vO}, v3")
        a(f"s_cmp_eq_u32 s{sR2}, 6")
        a(f"s_cselect_b32 s{sT3}, {OOB}, 0")
        a(f"v_add_u32 v{vO2}, s{sT3}, v{vO}")
        a(f"s_mul_i32 s{sT4}, s{sT0}, 40960")
        a(f"s_add_u32 s{sT4}, s{sT4}, {WS_O}")
        a(f"v_lshl_add_u32 v{vF}, v1, 4, s{sT4}")
        a(f"v_bfe_u32 v3, v1, 2, 2")
        a(f"v_mul_u32_u24 v{vA0}, 320, v3")
        a(f"v_lshl_add_u32 v{vA0}, v{vHH}, 11, v{vA0}")
        a(f"v_bfe_u32 v3, v1, 4, 1")
        a(f"v_lshl_add_u32 v{vA0}, v3, 5, v{vA0}")
        a(f"v_and_b32 v3, 3, v1")
        a(f"v_lshl_add_u32 v{vA0}, v3, 3, v{vA0}")
        a(f"s_and_b32 s{sT1}, s{sC2}, 1")
        a(f"s_lshl_b32 s{sT1}, s{sT1}, 1")
        a(f"s_lshr_b32 s{sT2}, s{sW}, 1")
        a(f"s_add_u32 s{sT1}, s{sT1}, s{sT2}")
        a(f"s_lshl_b32 s{sT1}, s{sT1}, 6")
        a(f"s_lshr_b32 s{sT2}, s{sC2}, 1")
        self.poll_addr(vPA, WS_FLAG_O, sT2, 15, sT1)
        self.flag_addr(sT5, WS_FLAG_O, sC, sW, 16, sD0)
        a(f"v_mul_u32_u24 v2, 112, v{vN}")
        a(f"v_mul_u32_u24 v3, 48, v{vHH}")
        a(f"v_add_u32 v7, v2, v3")
        a(f"s_lshl_b32 s{sT1}, s{sC}, 3")
        a(f"s_lshl_b32 s{sT2}, s{sW}, 1")
        a(f"s_add_u32 s{sT1}, s{sT1}, s{sT2}")
        a(f"s_mul_i32 s{sT2}, s{sT1}, 40960")
        a(f"s_lshr_b32 s{sT3}, s{sD0}, 1")
        a(f"s_mul_i32 s{sT3}, s{sT3}, 5120")
        a(f"s_add_u32 s{sT2}, s{sT2}, s{sT3}")
        a(f"s_add_u32 s{sT2}, s{sT2}, {WS_O}")
        a(f"v_lshl_add_u32 v9, v1, 4, s{sT2}")
        a(f"s_and_b32 s{sT3}, s{sD0}, 1")
        a(f"s_lshl_b32 s{sT4}, s{sT3}, 11")
        a(f"s_lshl_b32 s{sT3}, s{sT3}, 3")
        a(f"s_add_u32 s{sT3}, s{sT3}, 4096")
        a(f"s_add_u32 s{sT1}, s{sT4}, 40960")
        a(f"s_add_u32 s{sT2}, s{sT3}, 40960")
        a("s_barrier")
        self.stamp(6)
        KF = 48
        for e in range(2):
            for k in range(3):
                r = KF + 12*e + 4*k
                a(f"ds_read_b128 v[{r}:{r+3}], v7 offset:{LA_KVI + 3584*e + 16*k}")
        a("s_waitcnt lgkmcnt(0)")
        for tt in range(2):
            for k in range(3):
                for e in range(2):
                    r = KF + 12*e + 4*k; d = DK(tt, e); p = PQ(tt, e) + 4*k
                    c = "0" if k == 0 else f"v[{d}:{d+15}]"
                    a(f"v_mfma_f32_32x32x16_bf16 v[{d}:{d+15}], v[{r}:{r+3}], v[{p}:{p+3}], {c}")
        for tt in range(2):
            OP = 192 + 12*tt
            for e in range(2):
                a(f"v_add_f32 v{DK(tt, e)+10}, 0x358637bd, v{DK(tt, e)+10}")
            for e in range(2):
                a(f"v_rcp_f32 v{DK(tt, e)+10}, v{DK(tt, e)+10}")
            for i in range(5):
                for e in range(2):
                    d = DK(tt, e)
                    a(f"v_pk_mul_f32 v[{d+2*i}:{d+2*i+1}], v[{d+2*i}:{d+2*i+1}], v[{d+10}:{d+11}] op_sel:[0,0] op_sel_hi:[1,0]")
            for e in range(2):
                for i in range(5):
                    a(f"v_cvt_pk_bf16_f32 v{OP+5*e+i}, v{DK(tt, e)+2*i}, v{DK(tt, e)+2*i+1}")
            s4, s3 = (sT4, sT3) if tt == 0 else (sT1, sT2)
            a(f"buffer_store_dwordx4 v[{OP}:{OP+3}], v9, {ws}, s{s4} offen sc1")
            a(f"buffer_store_dwordx4 v[{OP+4}:{OP+7}], v9, {ws}, s{s4} offen offset:1024 sc1")
            a(f"buffer_store_dwordx2 v[{OP+8}:{OP+9}], v9, {ws}, s{s3} offen sc1")
        AC2 = 16
        for i in range(48): a(f"v_mov_b32 v{AC2+i}, 0")
        a("s_waitcnt vmcnt(0)")
        self.flag_store(sT5, 2)
        self.stamp(7)
        self.stamp_flush(64, 0)
        a("s_barrier")
        a(f"s_cmp_eq_u32 s{sR2}, 7")
        a("s_cbranch_scc1 L_end")
        self.poll_issue(vPA, 13)
        self.poll_wait(vPA, 13)
        self.stamp(0)
        def ostore(t, r):
            a(f"s_mov_b32 s{sT4}, {(8*(r >> 2) + (r & 3))*5120}")
            a(f"buffer_store_dword v{AC2+16*t+r}, v{vO2 if t == 2 else vO}, {ro}, s{sT4} offen offset:{128*t} {['', 'nt', 'sc1'][OST]}")
        if SEQ:
            HA = 96; NB = 6; DIST = 5
            a(f"s_mul_i32 s{sKS}, s{sROT2}, 5120")
            for u in range(40):
                kk = u % 5
                if kk == 0: a(f"s_add_u32 s{sKSW}, s{sKS}, 4096")
                so = sKS if kk < 4 else sKSW
                a(f"buffer_load_dwordx4 v[{HA+4*u}:{HA+4*u+3}], v{vF}, {ws}, s{so} offen offset:{1024*(kk & 3)} sc1")
                if kk == 4: self.adv(sKS, 5120, 40960)
            order = [(u, t) for t in range(3) for u in range(40)] if SEQ == 1 else \
                    [(u, t) for u in range(40) for t in range(2)] + [(u, 2) for u in range(40)]
            vLP = [7, 9, 11]; vT2 = [2, 3]
            for t in range(3):
                a(f"v_xor_b32 v{vLP[t]}, {64*t}, v{vA0}")
            ybar = (36,) if UX2 == 36 else (UX2, min(39, UX2 + 7) + 1)
            seen = set()
            def rdi(i):
                u, t = order[i]
                if u in ybar and u not in seen:
                    seen.add(u); a("s_barrier")
                w = 64 + 4*(i % NB)
                a(f"v_add_u32 v{vT2[i & 1]}, {(R16 + 4096*u) % LDS_TOTAL}, v{vLP[t]}")
                for h in range(2):
                    a(f"ds_read_b64_tr_b16 v[{w+2*h}:{w+2*h+1}], v{vT2[i & 1]} offset:{1024*h}")
            for i in range(DIST): rdi(i)
            pend = []; vm_done = -1
            lastpos = {t: max(i for i, x in enumerate(order) if x[1] == t) for t in range(3)}
            for i, (u, t) in enumerate(order):
                nl = 2*min(DIST - 1, len(order) - 1 - i)
                w = f"lgkmcnt({nl})"
                if u > vm_done: w = f"vmcnt({39 - u}) " + w; vm_done = u
                a("s_waitcnt " + w)
                d = AC2 + 16*t; bb = 64 + 4*(i % NB)
                a(f"v_mfma_f32_32x32x16_bf16 v[{d}:{d+15}], v[{HA+4*u}:{HA+4*u+3}], v[{bb}:{bb+3}], v[{d}:{d+15}]")
                if i + DIST < len(order): rdi(i + DIST)
                for tt in range(3):
                    if i == lastpos[tt] + 3: pend += [(tt, r) for r in range(16)]
                if pend: ostore(*pend.pop(0))
                if self.prof and i % 30 == 29: self.stamp(3 + i // 30)
            rest = pend + [(2, r) for r in range(16)]
        else:
            HA = 120
            def wreg(buf, t): return 64 + 12*buf + 4*t
            a(f"s_mul_i32 s{sKS}, s{sROT2}, 5120")
            def ldA(u):
                kk = u % 5
                if kk == 0: a(f"s_add_u32 s{sKSW}, s{sKS}, 4096")
                r = HA + 4*(u % 32)
                so = sKS if kk < 4 else sKSW
                a(f"buffer_load_dwordx4 v[{r}:{r+3}], v{vF}, {ws}, s{so} offen offset:{1024*(kk & 3)} sc1")
                if kk == 4: self.adv(sKS, 5120, 40960)
            vLP = [7, 9, 11]; vT2 = [2, 3, 12]
            for t in range(3):
                a(f"v_xor_b32 v{vLP[t]}, {64*t}, v{vA0}")
            for u in range(32): ldA(u)
            ds = []
            def rd_issue(u, t):
                w = wreg(u % 3, t)
                a(f"v_add_u32 v{vT2[t]}, {(R16 + 4096*u) % LDS_TOTAL}, v{vLP[t]}")
                for h in range(2):
                    a(f"ds_read_b64_tr_b16 v[{w+2*h}:{w+2*h+1}], v{vT2[t]} offset:{1024*h}")
                ds.extend([(u, t)]*2)
            def rd_wait(u, t):
                idx = [i for i, l in enumerate(ds) if l == (u, t)]
                n = len(ds) - 1 - idx[-1] if idx else None
                if n is not None: del ds[:len(ds) - min(n, 15)]
                return n
            def ostore(t, r):
                a(f"s_mov_b32 s{sT4}, {(8*(r >> 2) + (r & 3))*5120}")
                a(f"buffer_store_dword v{AC2+16*t+r}, v{vO2 if t == 2 else vO}, {ro}, s{sT4} offen offset:{128*t} {['', 'nt', 'sc1'][OST]}")
            order = [(s_ - SKEW*t, t) for s_ in range(40 + 2*SKEW) for t in range(3) if 0 <= s_ - SKEW*t < 40]
            for t in range(3):
                for u in range(2): rd_issue(u, t)
            nld = 32; vm_done = -1; pend = []
            lastpos = {t: max(i for i, x in enumerate(order) if x[1] == t) for t in range(3)}
            for i, (u, t) in enumerate(order):
                if t == 0 and u + 2 in ((36,) if UX2 == 36 else (UX2, min(39, UX2 + 7) + 1)): a("s_barrier")
                n = rd_wait(u, t)
                w = []
                if u > vm_done:
                    w.append(f"vmcnt({min(63, nld - 1 - u)})"); vm_done = u
                if n is not None: w.append(f"lgkmcnt({min(n, 15)})")
                if w: a("s_waitcnt " + " ".join(w))
                h = HA + 4*(u % 32); d = AC2 + 16*t; bb = wreg(u % 3, t)
                a(f"v_mfma_f32_32x32x16_bf16 v[{d}:{d+15}], v[{h}:{h+3}], v[{bb}:{bb+3}], v[{d}:{d+15}]")
                if u + 2 < 40: rd_issue(u + 2, t)
                if t == 2 and u < 8: ldA(32 + u); nld += 1
                for tt in range(3):
                    if i == lastpos[tt] + 3: pend += [(tt, r) for r in range(16)]
                for _ in range(4):
                    if pend: ostore(*pend.pop(0))
                if self.prof and t == 0 and u % 10 == 9: self.stamp(3 + u // 10)
            done_t = {tt for tt in range(3) if lastpos[tt] + 3 < len(order)}
            rest = pend + [(tt, r) for tt in range(3) if tt not in done_t for r in range(16)]
        self.stamp(1)
        for x in rest: ostore(*x)
        self.bump(0, 0)
        self.finish()

    def bump(self, wg, off):
        a = self.a
        a(f"s_xor_b32 s{sT0}, s2, {wg}")
        a(f"s_or_b32 s{sT0}, s{sT0}, s{sW}")
        a(f"s_cmp_lg_u32 s{sT0}, 0")
        a(f"s_cselect_b32 s{sT1}, {OOB}, {off}")
        a(f"s_mul_i32 s{sTAG}, s{sTAG}, {pow(KMUL, -1, 1 << 32):#x}")
        self.flag_store(sT1, 2)

    def finish(self):
        a = self.a
        if self.prof: a("s_waitcnt vmcnt(0)")
        self.stamp(2)
        self.stamp_flush(230, 1)
        a("s_endpgm")

    def b_entry(self):
        a = self.a
        a.label("L_B")
        if MIX:
            a(f"s_bfe_u32 s{sT0}, s2, 0x20001")
            a(f"s_lshl_b32 s{sT0}, s{sT0}, 2")
            a(f"s_add_u32 s{sC}, s{sT0}, s{sT1}")
            a(f"s_and_b32 s{sT0}, s2, 1")
            a(f"s_lshl_b32 s{sT0}, s{sT0}, 2")
            a(f"s_add_u32 s{sG}, s{sT0}, s{sT2}")
        else:
            a(f"s_bfe_u32 s{sT0}, s2, 0x10001")
            a(f"s_lshl_b32 s{sT0}, s{sT0}, 3")
            a(f"s_add_u32 s{sC}, s{sT0}, s{sR2}")
            a(f"s_and_b32 s{sT0}, s2, 1")
            a(f"s_lshl_b32 s{sT0}, s{sT0}, 2")
            a(f"s_lshr_b32 s{sT1}, s2, 6")
            a(f"s_add_u32 s{sG}, s{sT0}, s{sT1}")
            a(f"s_mov_b32 s{sT2}, s{sR2}")
        self.rot()
        a(f"s_mul_i32 s{sROT2}, s{sR2}, 3")
        a(f"s_and_b32 s{sT0}, s{sC2}, {1 if MIX else 3}")
        a(f"s_mul_i32 s{sT0}, s{sT0}, 5")
        if not MIX: a(f"s_lshr_b32 s{sT0}, s{sT0}, 1")
        a(f"s_add_u32 s{sROT2}, s{sROT2}, s{sT0}")
        a(f"s_cmp_ge_u32 s{sROT2}, 10")
        a(f"s_cselect_b32 s{sT0}, 10, 0")
        a(f"s_sub_u32 s{sROT2}, s{sROT2}, s{sT0}")
        a(f"s_cmp_ge_u32 s{sROT2}, 10")
        a(f"s_cselect_b32 s{sT0}, 10, 0")
        a(f"s_sub_u32 s{sROT2}, s{sROT2}, s{sT0}")
        a(f"s_cmp_lt_u32 s{sW}, 4")
        a("s_cbranch_scc1 L_Bcomp")

    def b_loader(self):
        a = self.a
        vm = self.VM(a)
        SX, SB, SCc = S_R1, S_R2, S_R4
        rx = f"s[{SX}:{SX+3}]"; rb = f"s[{SB}:{SB+3}]"; rc = f"s[{SCc}:{SCc+3}]"
        self.stamp(0)
        vX = [4, 5, 6, 7]; vB = [8, 9, 10, 11, 12]; vC = [16, 17, 18, 19]
        if 'bprof' in self.opts: a("v_mov_b32 v255, 0")
        self.bstamp(32)
        self.swz()
        a(f"s_lshl_b32 s{sT0}, s{sC}, 7")
        a(f"s_lshl_b32 s{sT1}, s{sL}, 5")
        a(f"s_add_u32 s{sT0}, s{sT0}, s{sT1}")
        a(f"s_mul_i32 s{sT0}, s{sT0}, 1280")
        a(f"v_lshrrev_b32 v35, 2, v2")
        a(f"v_lshlrev_b32 v35, 3, v35")
        a(f"v_and_b32 v36, 3, v2")
        a(f"v_add_u32 v35, v35, v36")
        a(f"v_mul_u32_u24 v35, 1280, v35")
        for i in range(4):
            a(f"v_add3_u32 v{vX[i]}, v35, v{32 + (i & 1)}, s{sT0}")
            if i: a(f"v_add_u32 v{vX[i]}, {(16*(i & 1) + 4*(i >> 1))*1280 - i*1024}, v{vX[i]}")
        a(f"s_and_b32 s{sT1}, s{sL}, 1")
        a(f"s_lshl_b32 s{sT1}, s{sT1}, 6")
        a(f"v_xor_b32 v36, s{sT1}, v32")
        a(f"s_lshr_b32 s{sT2}, s{sL}, 1")
        a(f"s_lshl_b32 s{sT2}, s{sT2}, 3")
        a(f"s_mul_i32 s{sT3}, s{sG}, 80")
        a(f"s_add_u32 s{sT2}, s{sT2}, s{sT3}")
        a(f"s_mul_i32 s{sT2}, s{sT2}, 1280")
        a(f"v_add3_u32 v{vB[0]}, v34, v36, s{sT2}")
        for m in range(1, 5):
            a(f"v_add_u32 v{vB[m]}, {16*1280*m}, v{vB[0]}")
        a(f"s_lshl_b32 s{sLX}, s{sL}, 12")
        a(f"s_lshl_b32 s{sLW}, s{sL}, 10")
        a("s_waitcnt lgkmcnt(0)")
        a.srd(SX, P_BX, 2621440)
        a(f"s_cmp_eq_u32 s{sT1}, 64")
        a(f"s_cselect_b32 s{SB}, s{P_BIM}, s{P_BRE}")
        a(f"s_cselect_b32 s{SB+1}, s{P_BIM+1}, s{P_BRE+1}")
        a(f"s_and_b32 s{SB+1}, s{SB+1}, 0xffff")
        a(f"s_mov_b32 s{SB+2}, 819200")
        a(f"s_mov_b32 s{SB+3}, 0x00020000")
        def stage(S):
            sl = R16 + (S % 4) * BSLOT
            nt = 'nt' if S < NTS else ''
            a(f"s_add_u32 m0, s{sLX}, {sl}")
            for i in range(4):
                vm.issue(f"buffer_load_dwordx4 v{vX[i]}, {rx}, s{sROT} offen offset:{1024*i} {nt} lds", f'st{S}')
            for m in range(5):
                a(f"s_add_u32 m0, s{sLW}, {sl + 16384 + 4096*m}")
                vm.issue(f"buffer_load_dwordx4 v{vB[m]}, {rb}, s{sROT} offen {nt} lds", f'st{S}')
            self.adv(sROT, 128, 1280)
        stage(0); stage(1)
        a(f"s_cmp_ge_u32 s{sL}, 2")
        a(f"s_cselect_b32 s{SCc}, s{P_CIM}, s{P_CRE}")
        a(f"s_cselect_b32 s{SCc+1}, s{P_CIM+1}, s{P_CRE+1}")
        a(f"s_and_b32 s{SCc+1}, s{SCc+1}, 0xffff")
        a(f"s_mov_b32 s{SCc+2}, 819200")
        a(f"s_mov_b32 s{SCc+3}, 0x00020000")
        a(f"s_mul_i32 s{sT0}, s{sR2}, 96")
        a(f"s_and_b32 s{sT1}, s{sL}, 1")
        a(f"s_mul_i32 s{sT1}, s{sT1}, 48")
        a(f"s_add_u32 s{sT0}, s{sT0}, s{sT1}")
        a(f"s_mul_i32 s{sT0}, s{sT0}, 1280")
        for i in range(4):
            a(f"v_add3_u32 v{vC[i]}, v34, v{32 + (i & 1)}, s{sT0}")
            if i: a(f"v_add_u32 v{vC[i]}, {i*8*1280 - i*1024}, v{vC[i]}")
        a(f"s_lshl_b32 s{sROT2}, s{sROT2}, 7")
        a(f"s_mul_i32 s{sL2X}, s{sL}, 6144")
        def cst(j):
            base = R16 + CSLOT*(j % 6)
            a(f"s_add_u32 m0, s{sL2X}, {base}")
            a(f"s_add_u32 s{sKS}, s{sROT2}, {32*1280}")
            for i in range(4):
                vm.issue(f"buffer_load_dwordx4 v{vC[i]}, {rc}, s{sROT2} offen offset:{1024*i} lds", f'c{j}')
            a(f"s_add_u32 m0, s{sL2X}, {base + 4096}")
            for i in range(2):
                vm.issue(f"buffer_load_dwordx4 v{vC[i]}, {rc}, s{sKS} offen offset:{1024*i} lds", f'c{j}')
            self.adv(sROT2, 128, 1280)
        for S in range(10):
            vm.wait(f'st{S}')
            a("s_barrier")
            self.bstamp(S)
            if S == 0:
                self.stamp(1)
                stage(2); stage(3)
            elif S + 3 < 10: stage(S + 3)
        a("s_barrier")
        if 'bprof' in self.opts: a.srd(S_WS, P_WS, WS_BYTES)
        self.bstamp(10); self.bflush()
        a("s_barrier")
        a("s_barrier")
        for j in range(CPRE): cst(j)
        a("s_barrier")
        for j in range(CPRE, 5): cst(j)
        a("s_barrier")
        a(f"s_cmp_eq_u32 s{sR2}, 7")
        a("s_cbranch_scc1 L_end")
        cst(5)
        vm.wait('c1'); a("s_barrier")
        vm.wait('c3'); a("s_barrier")
        cst(6); cst(7)
        vm.wait('c5'); a("s_barrier")
        cst(8); cst(9)
        vm.wait('c7'); a("s_barrier")
        vm.wait('c9'); a("s_barrier")
        a("s_endpgm")

    def b_compute(self):
        a = self.a; ws = self.ws
        vN, vHH, vJ, vGm = 12, 13, 14, 15
        U = 16; OPS = 96; SC = 192; TMP = 232
        vX0, vX1, vW0, vW1, vXL, vWLp = 4, 5, 6, 7, 8, 9
        self.stamp(0)
        a(f"v_and_b32 v{vJ}, 15, v1")
        a(f"v_lshrrev_b32 v{vGm}, 4, v1")
        a(f"v_and_b32 v{vN}, 31, v1")
        a(f"v_lshrrev_b32 v{vHH}, 5, v1")
        a(f"v_min_u32 v3, 39, v1")
        a(f"s_sub_u32 s{sT1}, s{sW}, 1")
        a(f"s_mul_i32 s{sT0}, s{sG}, 80")
        a(f"s_mul_i32 s{sT2}, s{sT1}, 40")
        a(f"s_add_u32 s{sT0}, s{sT0}, s{sT2}")
        a(f"s_lshl_b32 s{sT0}, s{sT0}, 1")
        a(f"v_lshlrev_b32 v3, 1, v3")
        a(f"s_cmp_lt_u32 s{sT1}, 2")
        a(f"s_cselect_b32 s{sT3}, s{sT0}, {OOB}")
        a("s_waitcnt lgkmcnt(0)")
        a.srd(S_WS, P_WS, WS_BYTES)
        a("v_mov_b32 v2, 128")
        a(f"buffer_load_dword v250, v2, {ws}, 0 offen sc1")
        vS = 130
        a.srd(S_R1, P_LRE, 1280); a.srd(S_R2, P_LIM, 1280); a.srd(S_R3, P_LDT, 1280)
        a(f"buffer_load_ushort v{vS+1}, v3, s[{S_R1}:{S_R1+3}], s{sT3} offen")
        a(f"buffer_load_ushort v{vS+2}, v3, s[{S_R2}:{S_R2+3}], s{sT3} offen")
        a(f"buffer_load_ushort v{vS+3}, v3, s[{S_R3}:{S_R3+3}], s{sT3} offen")
        self.codepf("L_pcB")
        a(f"v_lshrrev_b32 v2, 1, v{vJ}")
        a(f"v_xor_b32 v2, v2, v{vGm}")
        a(f"v_lshlrev_b32 v2, 4, v2")
        a(f"v_lshl_add_u32 v2, v{vJ}, 7, v2")
        a(f"s_lshl_b32 s{sT0}, s{sW}, 12")
        a(f"v_add_u32 v{vXL}, s{sT0}, v2")
        a(f"v_add_u32 v{vWLp}, 16384, v2")
        a(f"v_mov_b32 v{vX0}, v{vXL}")
        a(f"v_mov_b32 v{vW0}, v{vWLp}")
        a(f"v_xor_b32 v{vX1}, 64, v{vX0}")
        a(f"v_xor_b32 v{vW1}, 64, v{vW0}")
        a("s_waitcnt vmcnt(1)")
        self.tag_from(250)
        a(f"s_cmp_ge_u32 s{sT1}, 2")
        a("s_cbranch_scc1 LB_nossm")
        self.ssm_job(vS, sT1)
        a.label("LB_nossm")
        for i in range(80): a(f"v_mov_b32 v{U+i}, 0")
        a(f"s_mov_b32 s{sSLOT}, 0")
        a(f"s_mov_b32 s{sIT}, 0")
        a("s_barrier")
        self.stamp(1)
        def rd(st, kx, kw):
            b = OPS + 48*st
            return ([f"ds_read_b128 v[{b+4*tr}:{b+4*tr+3}], v{kx} offset:{R16 + 2048*tr}" for tr in range(2)] +
                    [f"ds_read_b128 v[{b+8+4*tc}:{b+8+4*tc+3}], v{kw} offset:{R16 + 2048*tc}" for tc in range(10)])
        def mm(st):
            b = OPS + 48*st
            return [f"v_mfma_f32_16x16x32_bf16 v[{U+8*tc+4*tr}:{U+8*tc+4*tr+3}], v[{b+4*tr}:{b+4*tr+3}], v[{b+8+4*tc}:{b+8+4*tc+3}], v[{U+8*tc+4*tr}:{U+8*tc+4*tr+3}]"
                    for tc in range(10) for tr in range(2)]
        for x in rd(0, vX0, vW0): a(x)
        a("s_waitcnt lgkmcnt(0)")
        if ALN: a.raw(f".p2align {ALN}")
        a.label("LB_loop")
        self.adv(sSLOT, BSLOT, 4*BSLOT)
        m0 = mm(0)
        self.inter(m0[:13], rd(1, vX1, vW1), 1)
        self.inter(m0[13:], [f"v_add_u32 v{vX0}, s{sSLOT}, v{vXL}", f"v_add_u32 v{vW0}, s{sSLOT}, v{vWLp}",
                             f"v_xor_b32 v{vX1}, 64, v{vX0}", f"v_xor_b32 v{vW1}, 64, v{vW0}"], 1)
        a("s_waitcnt lgkmcnt(0)")
        m1 = mm(1)
        for m in m1[:3]: a(m)
        a("s_barrier")
        self.inter(m1[3:], rd(0, vX0, vW0), 1)
        a(f"s_add_u32 s{sIT}, s{sIT}, 1")
        a(f"s_cmp_lt_u32 s{sIT}, 10")
        a("s_waitcnt lgkmcnt(0)")
        a("s_cbranch_scc1 LB_loop")
        self.stamp(2)
        a(f"v_lshlrev_b32 v2, 5, v{vJ}")
        for tc in range(10):
            a(f"ds_read_b128 v[{SC+4*tc}:{SC+4*tc+3}], v2 offset:{LB_TAB + 512*tc}")
        vSEG = 4
        a(f"v_mul_u32_u24 v{vSEG}, 80, v{vJ}")
        a(f"v_lshl_add_u32 v{vSEG}, v{vGm}, 2, v{vSEG}")
        a(f"s_lshl_b32 s{sT0}, s{sW}, 4")
        a(f"s_add_u32 s{sT0}, s{sT0}, {LB_SEG}")
        a(f"v_add_u32 v{vSEG}, s{sT0}, v{vSEG}")
        vQ, vSA = 5, 6
        a(f"s_lshl_b32 s{sT0}, s{sW}, 6")
        a(f"v_add_u32 v{vQ}, s{sT0}, v1")
        a(f"v_add_u32 v3, 128, v{vN}")
        a(f"v_cmp_lt_u32 vcc, 127, v{vQ}")
        a(f"v_cndmask_b32 v{vQ}, v{vQ}, v3, vcc")
        a(f"v_mul_u32_u24 v{vSA}, 80, v{vQ}")
        a(f"v_add_u32 v{vSA}, {LB_SEG}, v{vSA}")
        a("s_waitcnt lgkmcnt(0)")
        def ureg(tc, tt): return U + 8*tc + tt
        A0, A1 = TMP, TMP + 10
        prev = [ureg(tc, 0) for tc in range(10)]
        for tt in range(1, 8):
            cur = A0 if tt % 2 else A1
            for tc in range(10):
                a(f"v_fma_f32 v{cur+tc}, v{SC+4*tc}, v{prev[tc]}, v{ureg(tc, tt)}")
            for tc in range(10):
                a(f"v_fmac_f32_dpp v{cur+tc}, v{prev[tc]}, v{SC+4*tc+1} {DPP}")
            prev = [cur + tc for tc in range(10)]
        for tc in range(10):
            a(f"ds_write_b32 v{vSEG}, v{prev[tc]} offset:{1280*tc}")
        a("s_waitcnt lgkmcnt(0)")
        a("s_barrier")
        SG, TB, AG, SS = 96, 112, 116, 132
        for m in range(4):
            a(f"ds_read_b128 v[{SG+4*m}:{SG+4*m+3}], v{vSA} offset:{16*m}")
        a(f"v_lshlrev_b32 v2, 5, v{vQ}")
        a(f"ds_read_b128 v[{TB}:{TB+3}], v2 offset:{LB_TAB + 16}")
        a(f"s_mul_i32 s{sT0}, s{sG}, {16*AGP}")
        a(f"s_add_u32 s{sT0}, s{sT0}, {WS_AGG}")
        a(f"v_lshl_add_u32 v7, v{vQ}, 2, s{sT0}")
        a(f"s_mul_i32 s{sT5}, s{sC}, {AGP}")
        a(f"s_cmp_eq_u32 s{sW}, 3")
        a(f"s_cselect_b32 s{sT5}, {OOB}, s{sT5}")
        a(f"v_mov_b32 v2, 0xfff")
        a("s_waitcnt lgkmcnt(0)")
        prev = SG
        for sg in range(1, 16):
            cur = 148 + (sg & 1)
            a(f"v_fma_f32 v{cur}, v{TB}, v{prev}, v{SG+sg}")
            a(f"v_fmac_f32_dpp v{cur}, v{prev}, v{TB+1} {DPP}")
            prev = cur
        a(f"v_bfi_b32 v{prev}, v2, s{sTAG}, v{prev}")
        a(f"buffer_store_dword v{prev}, v7, {ws}, s{sT5} offen sc1")
        a("s_barrier")
        self.stamp(3)
        SO, SXB = S_R1, S_R2
        ro = f"s[{SO}:{SO+3}]"; rxb = f"s[{SXB}:{SXB+3}]"
        a.srd(SO, P_OUT, 2048*1280*4)
        a.srd(SXB, P_BX, 2621440)
        a.srd(S_R3, P_DSK, 1280)
        vF, vO, vA0, vO2, vPA, vXS, vDS = 240, 241, 242, 243, 244, 245, 246
        vHW, vHR, vHS = 247, 248, 249
        a(f"s_lshl_b32 s{sT0}, s{sC2}, 2")
        a(f"s_add_u32 s{sT0}, s{sT0}, s{sW}")
        a(f"s_lshl_b32 s{sT2}, s{sT0}, 5")
        a(f"v_lshl_add_u32 v2, v{vHH}, 2, s{sT2}")
        a(f"s_mul_i32 s{sT3}, s{sR2}, 96")
        a(f"v_add_lshl_u32 v{vDS}, v{vN}, s{sT3}, 1")
        a(f"v_mul_u32_u24 v{vXS}, 1280, v2")
        a(f"v_add_u32 v{vXS}, v{vXS}, v{vDS}")
        a(f"v_mul_u32_u24 v{vO}, 5120, v2")
        a(f"v_lshl_add_u32 v{vO}, v{vDS}, 1, v{vO}")
        a(f"v_add_u32 v{vO}, 2560, v{vO}")
        a(f"s_cmp_eq_u32 s{sR2}, 6")
        a(f"s_cselect_b32 s{sT3}, {OOB}, 0")
        a(f"v_add_u32 v{vO2}, s{sT3}, v{vO}")
        a(f"s_mul_i32 s{sT4}, s{sT0}, 81920")
        a(f"s_add_u32 s{sT4}, s{sT4}, {WS_H}")
        a(f"v_lshl_add_u32 v{vF}, v1, 4, s{sT4}")
        a(f"v_bfe_u32 v{vA0}, v1, 1, 3")
        a(f"v_lshlrev_b32 v{vA0}, 4, v{vA0}")
        a(f"v_lshl_add_u32 v{vA0}, v{vN}, 7, v{vA0}")
        a(f"v_mul_u32_u24 v3, 12288, v{vHH}")
        a(f"v_add_u32 v{vA0}, v{vA0}, v3")
        a(f"s_lshl_b32 s{sT1}, s{sW}, 6")
        self.poll_addr(vPA, WS_FLAG_H, sC2, 7, sT1)
        self.flag_addr(sM2, WS_FLAG_H, sC, sW, 16, sG)
        a(f"s_lshl_b32 s{sT0}, s{sW}, 11")
        a(f"s_add_u32 s{sT0}, s{sT0}, {LB_HT}")
        a(f"v_lshlrev_b32 v{vHW}, 6, v{vJ}")
        a(f"v_lshl_add_u32 v{vHW}, v{vGm}, 4, v{vHW}")
        a(f"v_add_u32 v{vHW}, s{sT0}, v{vHW}")
        a(f"v_bfe_u32 v{vHR}, v1, 2, 2")
        a(f"v_lshl_add_u32 v{vHR}, v{vHH}, 3, v{vHR}")
        a(f"v_lshlrev_b32 v{vHR}, 6, v{vHR}")
        a(f"v_bfe_u32 v2, v1, 4, 1")
        a(f"v_lshl_add_u32 v{vHR}, v2, 5, v{vHR}")
        a(f"v_and_b32 v2, 3, v1")
        a(f"v_lshl_add_u32 v{vHR}, v2, 3, v{vHR}")
        a(f"v_add_u32 v{vHR}, s{sT0}, v{vHR}")
        a(f"s_lshl_b32 s{sT1}, s{sC}, 2")
        a(f"s_add_u32 s{sT1}, s{sT1}, s{sW}")
        a(f"s_mul_i32 s{sT2}, s{sT1}, 81920")
        a(f"s_mul_i32 s{sT3}, s{sG}, 10240")
        a(f"s_add_u32 s{sT2}, s{sT2}, s{sT3}")
        a(f"s_add_u32 s{sT2}, s{sT2}, {WS_H}")
        a(f"v_lshl_add_u32 v{vHS}, v1, 4, s{sT2}")
        a(f"s_mov_b32 s{sT7}, 0")
        a.label("LB_ag")
        for m in range(15):
            a(f"s_sub_u32 s{sT1}, s{sC}, {15 - m}")
            a(f"s_mul_i32 s{sT2}, s{sT1}, {AGP}")
            a(f"s_cmp_lt_i32 s{sT1}, 0")
            a(f"s_cselect_b32 s{sT2}, {OOB}, s{sT2}")
            a(f"buffer_load_dword v{AG+m}, v7, {ws}, s{sT2} offen sc1")
        a("v_mov_b32 v150, 0")
        a(f"s_add_u32 s{sT7}, s{sT7}, 1")
        a("s_waitcnt vmcnt(0)")
        for m in range(15):
            a(f"s_cmp_ge_u32 s{sC}, {15 - m}")
            a(f"s_cselect_b32 s{sT0}, 0xfff, 0")
            a(f"v_xor_b32 v151, s{sTAG}, v{AG+m}")
            a(f"v_and_or_b32 v150, v151, s{sT0}, v150")
        a(f"v_cmp_ne_u32 vcc, 0, v150")
        a(f"s_cmp_ge_u32 s{sT7}, 0x40000")
        a("s_cbranch_scc1 LB_agok")
        a(f"s_cmp_lg_u64 vcc, 0")
        a("s_cbranch_scc1 LB_ag")
        a.label("LB_agok")
        prev = AG
        for m in range(1, 15):
            cur = 148 + (m & 1) if m < 14 else SS
            a(f"v_fma_f32 v{cur}, v{TB+2}, v{prev}, v{AG+m}")
            a(f"v_fmac_f32_dpp v{cur}, v{prev}, v{TB+3} {DPP}")
            prev = cur
        for sg in range(15):
            a(f"v_fma_f32 v{SS+sg+1}, v{TB}, v{SS+sg}, v{SG+sg}")
            a(f"v_fmac_f32_dpp v{SS+sg+1}, v{SS+sg}, v{TB+1} {DPP}")
        for m in range(4):
            a(f"ds_write_b128 v{vSA}, v[{SS+4*m}:{SS+4*m+3}] offset:{16*m}")
        a("s_waitcnt lgkmcnt(0)")
        a("s_barrier")
        self.stamp(4)
        SV = 96
        for tc in range(10):
            a(f"ds_read_b32 v{SV+tc}, v{vSEG} offset:{1280*tc}")
        a("s_waitcnt lgkmcnt(0)")
        prev = [SV + tc for tc in range(10)]
        for tt in range(8):
            for tc in range(10):
                u = ureg(tc, tt)
                a(f"v_fma_f32 v{u}, v{SC+4*tc}, v{prev[tc]}, v{u}")
            for tc in range(10):
                u = ureg(tc, tt)
                a(f"v_fmac_f32_dpp v{u}, v{prev[tc]}, v{SC+4*tc+1} {DPP}")
            prev = [ureg(tc, tt) for tc in range(10)]
        OTm = [108, 116]; HPm = [124, 128]; HFm = [132, 136]
        def hst(tc):
            hf = HFm[tc & 1]
            a(f"s_movk_i32 s{sT0}, {4096*(tc >> 2)}")
            a("s_waitcnt lgkmcnt(0)")
            a(f"buffer_store_dwordx4 v[{hf}:{hf+3}], v{vHS}, {ws}, s{sT0} offen offset:{1024*(tc & 3)} sc1")
        for tc in range(10):
            o = OTm[tc & 1]; hp = HPm[tc & 1]; hf = HFm[tc & 1]
            for tt in range(8):
                a(f"v_mul_f32 v{o+tt}, v{SC+4*tc+2}, v{ureg(tc, tt)}")
            for tt in range(8):
                a(f"v_fmac_f32_dpp v{o+tt}, v{ureg(tc, tt)}, v{SC+4*tc+3} {DPP}")
            if tc: hst(tc - 1)
            for i in range(4):
                a(f"v_cvt_pk_bf16_f32 v{hp+i}, v{o+2*i}, v{o+2*i+1}")
            a(f"ds_write_b128 v{vHW}, v[{hp}:{hp+3}] offset:{1024*(tc & 1)}")
            for h in range(2):
                a(f"ds_read_b64_tr_b16 v[{hf+2*h}:{hf+2*h+1}], v{vHR} offset:{1024*(tc & 1) + 256*h}")
        hst(9)
        self.stamp(5)
        AC2, SK, HR, WB = 16, 64, 112, 176
        for i in range(96): a(f"v_mov_b32 v{AC2+i}, 0")
        a("s_waitcnt vmcnt(0)")
        self.flag_store(sM2, 2)
        self.stamp(6)
        a("s_barrier")
        a(f"s_cmp_eq_u32 s{sR2}, 7")
        a("s_cbranch_scc1 LB_idle")
        for t in range(3):
            a(f"buffer_load_ushort v{8+t}, v{vDS}, s[{S_R3}:{S_R3+3}], 0 offen offset:{64*t}")
        for r in range(16):
            a(f"s_mov_b32 s{sT6}, {(8*(r >> 2) + (r & 3))*1280}")
            for t in range(3):
                a(f"buffer_load_short_d16_hi v{SK+16*t+r}, v{vXS}, {rxb}, s{sT6} offen offset:{64*t}")
        self.poll_issue(vPA, 13)
        a("s_waitcnt vmcnt(1)")
        for t in range(3):
            a(f"v_lshlrev_b32 v{8+t}, 16, v{8+t}")
            for r in range(0, 16, 2):
                x = SK + 16*t + r; y = AC2 + 16*t + r
                a(f"v_mul_f32 v{x}, v{x}, v{8+t}")
                a(f"v_mul_f32 v{x+1}, v{x+1}, v{8+t}")
                a(f"v_cvt_pk_bf16_f32 v{x+1}, v{x}, v{x+1}")
                a(f"v_lshlrev_b32 v{y}, 16, v{x+1}")
                a(f"v_and_b32 v{y+1}, 0xffff0000, v{x+1}")
        self.poll_wait(vPA, 13)
        self.stamp(7)
        self.stamp_flush(64, 0)
        self.stamp(0)
        a(f"s_lshl_b32 s{sKS}, s{sROT2}, 13")
        def ld(slot, kk):
            r = HR + 4*slot
            so = sKS if kk < 4 else sKSW
            return f"buffer_load_dwordx4 v[{r}:{r+3}], v{vF}, {ws}, s{so} offen offset:{1024*(kk & 3)} sc1"
        def adv(step, lim):
            a(f"s_add_u32 s{sKS}, s{sKS}, {step}")
            a(f"s_cmp_eq_u32 s{sKS}, {lim}")
            a(f"s_cselect_b32 s{sKS}, 0, s{sKS}")
        vAD = [4, 5, 6]
        def lds_adv():
            a(f"v_add_u32 v{vAD[0]}, s{sSLOT}, v{vA0}")
            a(f"s_add_u32 s{sSLOT}, s{sSLOT}, {CSLOT}")
            a(f"s_cmp_ge_u32 s{sSLOT}, {LDS_TOTAL}")
            a(f"s_cselect_b32 s{sSLOT}, {R16}, s{sSLOT}")
        for st in range(2):
            a(f"s_add_u32 s{sKSW}, s{sKS}, 4096")
            for kk in range(8): a(ld(8*st + kk, kk))
            adv(8192, 81920)
        a(f"s_mov_b32 s{sIT}, 0")
        a(f"s_mov_b32 s{sSLOT}, {R16}")
        def rdB(rho):
            b = WB + 12*(rho & 3)
            return [f"v_xor_b32 v{vAD[1 + (rho & 1)]}, {16*(rho & 7)}, v{vAD[0]}"] + \
                   [f"ds_read_b128 v[{b+4*t}:{b+4*t+3}], v{vAD[1 + (rho & 1)]} offset:{4096*t}" for t in range(3)]
        a("s_barrier")
        lds_adv()
        for rho in range(2):
            for x in rdB(rho): a(x)
        if ALN: a.raw(f".p2align {ALN}")
        a.label("LP2B_loop")
        a(f"s_cmp_ge_u32 s{sIT}, 4")
        a(f"s_cselect_b32 s{sKS}, {OOB}, s{sKS}")
        for sidx in range(16):
            kk = sidx & 7
            rho = sidx + 2
            if kk == 0: a(f"s_add_u32 s{sKSW}, s{sKS}, 4096")
            if rho == 16:
                a(f"s_cmp_ge_u32 s{sIT}, 4")
                a("s_cbranch_scc1 LP2B_nb")
                a("s_waitcnt lgkmcnt(0)")
                a("s_barrier")
                a.label("LP2B_nb")
            if rho in (8, 16): lds_adv()
            rr = rdB(rho)
            a(rr[0])
            a(f"s_waitcnt vmcnt(15) lgkmcnt(3)")
            b = WB + 12*(sidx & 3); h = HR + 4*sidx
            for t in range(3):
                d = AC2 + 16*t
                a(f"v_mfma_f32_32x32x16_bf16 v[{d}:{d+15}], v[{h}:{h+3}], v[{b+4*t}:{b+4*t+3}], v[{d}:{d+15}]")
                a(rr[1+t])
            a(ld(sidx, kk))
            if kk == 7: adv(8192, 81920)
        self.itstamp()
        a(f"s_add_u32 s{sIT}, s{sIT}, 1")
        a(f"s_cmp_lt_u32 s{sIT}, 5")
        a("s_cbranch_scc1 LP2B_loop")
        self.stamp(1)
        for r in range(16):
            a(f"s_mov_b32 s{sT4}, {(8*(r >> 2) + (r & 3))*5120}")
            for t in range(3):
                a(f"buffer_store_dword v{AC2+16*t+r}, v{vO2 if t == 2 else vO}, {ro}, s{sT4} offen offset:{128*t} {['', 'nt', 'sc1'][OST]}")
        self.bump(143 if MIX else 8*24 + 7, 128)
        self.finish()
        a.label("LB_idle")
        self.stamp_flush(64, 0)
        a("s_endpgm")

    def ssm_job(self, vS, sH):
        a = self.a
        n0 = len(a.items)
        G.L_TAB = 0
        self.side_jobs(vS)
        from asm2 import Ins
        items = a.items[n0:]
        del a.items[n0:]
        start = next(i for i, it in enumerate(items) if isinstance(it, Ins) and it.text.startswith("v_lshlrev_b32 v64, 16"))
        end = next(i for i, it in enumerate(items) if isinstance(it, Ins) and it.op == 's_branch')
        body = items[start:end]
        a(f"s_mul_i32 s{sT0}, s{sH}, 2560")
        for it in body:
            if it.text.startswith("v_lshlrev_b32 v67, 5, v67"):
                a(f"v_lshl_add_u32 v67, v67, 5, s{sT0}")
            else:
                a.items.append(it)
        a("s_waitcnt lgkmcnt(0)")

    def build(self):
        a = self.a
        a.kernel_begin(KNAME, 256, 512, LDS_TOTAL)
        if 'single' in self.opts: a.launch = [f"; @launch grid=(256,1,1) block=(512,1,1) lds={LDS_TOTAL}"]
        self.prologue()
        self.a_loader()
        a.label("L_Acomp")
        if PRIO: a(f"s_setprio {PRIO}")
        self.a_compute()
        self.b_entry()
        self.b_loader()
        a.label("L_Bcomp")
        if PRIO: a(f"s_setprio {PRIO}")
        self.b_compute()
        a.label("L_end")
        a("s_endpgm")
        a.kernel_end(KNAME, 256)
        return a

if __name__ == "__main__":
    for o in sys.argv[2:]:
        if '=' in o:
            kk, vv = o.split('='); globals()[kk] = int(vv)
    k = K2(prof='prof' in sys.argv, opts=sys.argv[2:])
    a = k.build()
    hdr = "".join(open("concat_heads__linear_kernel_hedgehog__ssm_conv_s5__prompt.s.ref").read().splitlines(True)[:17]) if 'final' in sys.argv else ""
    open(sys.argv[1], "w").write(a.text(hdr))
```
